```python
import torch

def _softmax(x, axis=-1):
    return torch.softmax(x, dim=axis)
def _gelu(x):
    return torch.nn.functional.gelu(x, approximate="tanh")
def _silu(x):
    return torch.nn.functional.silu(x)
def _sigmoid(x):
    return torch.sigmoid(x)
def _layernorm(x, axis=-1, eps=1e-5):
    m = x.mean(dim=axis, keepdim=True)
    v = x.var(dim=axis, keepdim=True, unbiased=False)
    return (x - m) / torch.sqrt(v + eps)
def _scatter_add(tgt, idx, src, axis=0):
    return tgt.clone().index_add_(axis, idx, src)
def _segment_sum(src, seg, n):
    out = torch.zeros((n,) + src.shape[1:], dtype=src.dtype)
    return out.index_add_(0, seg, src)
def _pad(x, pw):
    flat = tuple(v for pair in reversed(pw) for v in pair)
    return torch.nn.functional.pad(x, flat)

kernel_name = 'recurrent_scan__spectral_gfnet__mixer_channel_mlp__prompt'

def setup_inputs():

    _w = (lambda a: (lambda t: t.to(torch.bfloat16) if t.is_floating_point() else t)(torch.as_tensor(a)))
    def _A_setup():
        B, S, D = 1, 2048, 576
        Df = D // 2 + 1
        return {
            "x": _w((lambda *s: torch.randn(*s, dtype=torch.bfloat16) * 0.05)(B, S, D)),
            "w_r": _w((lambda *s: torch.randn(*s, dtype=torch.bfloat16) * 0.8)(S, Df) * 0.02),
            "w_i": _w((lambda *s: torch.randn(*s, dtype=torch.bfloat16) * 0.8)(S, Df) * 0.02),
        }
    _A_in = _A_setup()

    def _B_setup():
        B, S, D, F = 1, 2048, 576, 4608
        return {
            "x": _w((lambda *s: torch.randn(*s, dtype=torch.bfloat16) * 0.05)(B, S, D)),
            "w1": _w((lambda *s: torch.randn(*s, dtype=torch.bfloat16) * 0.8)(D, F) * (D ** -0.5)),
            "b1": _w((lambda *s: torch.randn(*s, dtype=torch.bfloat16) * 0.8)(F)),
            "w2": _w((lambda *s: torch.randn(*s, dtype=torch.bfloat16) * 0.8)(F, D) * (F ** -0.5)),
            "b2": _w((lambda *s: torch.randn(*s, dtype=torch.bfloat16) * 0.2)(D)),
        }
    _B_in = _B_setup()

    return {
        "A_x": _A_in["x"],
        "A_w_r": _A_in["w_r"],
        "A_w_i": _A_in["w_i"],
        "B_x": _B_in["x"],
        "B_w1": _B_in["w1"],
        "B_b1": _B_in["b1"],
        "B_w2": _B_in["w2"],
        "B_b2": _B_in["b2"],
    }

def reference(A_x, A_w_r, A_w_i, B_x, B_w1, B_b1, B_w2, B_b2):
    def _A_ref(x, w_r, w_i):
        B, S, D = x.shape
        X = (lambda x, axes=(-2,-1): torch.fft.rfft2(x.float(), dim=axes))(x, axes=(-2, -1))
        W = w_r + 1j * w_i
        X = X * W
        y = (lambda x, s, axes=(-2,-1): torch.fft.irfft2(x, s=s, dim=axes).to(torch.bfloat16))(X, (S, D), axes=(-2, -1))
        return y

    def _B_ref(x, w1, b1, w2, b2):
        y = _layernorm(x, axis=-1)
        h = _gelu(torch.einsum("bsd,df->bsf", y, w1) + b1)
        return torch.einsum("bsf,fd->bsd", h, w2) + b2

    x = A_x
    xn = _layernorm(x, axis=-1)
    s = _A_ref(xn, A_w_r, A_w_i)
    g = _silu(_B_ref(xn, B_w1, B_b1, B_w2, B_b2))
    return x + s * g
```

```python
import re

REG_RE = re.compile(r'^(-?)\|?(?:(v|a|s)(\d+)|(v|a|s)\[(\d+):(\d+)\])\|?$')
TRANS = ('v_exp_f32', 'v_log_f32', 'v_rcp_f32', 'v_rsq_f32', 'v_sqrt_f32', 'v_sin_f32', 'v_cos_f32')


def regs_of(op):
    op = op.strip()
    if op.startswith('abs(') or op.startswith('neg('):
        op = op[4:-1]
    if op == 'vcc':
        return {('s', 106), ('s', 107)}
    if op == 'exec':
        return {('s', 126), ('s', 127)}
    if op == 'm0':
        return {('s', 124)}
    m = REG_RE.match(op)
    if not m:
        return set()
    if m.group(2):
        return {(m.group(2), int(m.group(3)))}
    return {(m.group(4), i) for i in range(int(m.group(5)), int(m.group(6)) + 1)}


class Ins:
    __slots__ = ('text', 'mn', 'ops', 'mods', 'rd', 'wr', 'kind', 'tok', 'needs', 'cond', 'srcA', 'srcB', 'srcC', 'sdata', 'isdpp', 'issdwa')

    def __init__(self, text):
        self.text = text
        self.needs = []
        self.tok = None
        self.cond = 0
        t = text.split(';')[0].strip()
        parts = t.split(None, 1)
        self.mn = parts[0]
        rest = parts[1] if len(parts) > 1 else ''
        ops = []
        cur = ''
        depth = 0
        for ch in rest:
            if ch in '[(':
                depth += 1
            if ch in '])':
                depth -= 1
            if ch == ',' and depth == 0:
                ops.append(cur.strip())
                cur = ''
            else:
                cur += ch
        if cur.strip():
            ops.append(cur.strip())
        self.mods = ''
        if ops:
            l = ops[-1].split(None, 1)
            ops[-1] = l[0]
            self.mods = l[1] if len(l) > 1 else ''
        self.ops = ops
        self.classify()

    def classify(self):
        mn, ops = self.mn, self.ops
        R = [regs_of(o) for o in ops]
        rd, wr = set(), set()
        self.srcA = self.srcB = self.srcC = set()
        self.sdata = set()
        self.isdpp = ('_dpp' in mn) or ('row_' in self.mods) or ('quad_perm' in self.mods)
        self.issdwa = ('_sdwa' in mn)
        if mn.startswith('v_mfma'):
            self.kind = 'mfma'
            wr |= R[0]
            self.srcA, self.srcB, self.srcC = R[1], R[2], R[3]
            rd |= R[1] | R[2] | R[3]
        elif mn.startswith('v_'):
            self.kind = 'valu'
            if mn.startswith('v_permlane') and 'swap' in mn:
                wr |= R[0] | R[1]
                rd |= R[0] | R[1]
            elif mn.startswith('v_add_co') or mn.startswith('v_sub_co') or mn.startswith('v_addc_co') or mn.startswith('v_subb_co'):
                wr |= R[0] | R[1]
                for r in R[2:]:
                    rd |= r
            elif mn == 'v_nop':
                pass
            else:
                wr |= R[0]
                for r in R[1:]:
                    rd |= r
                if mn.startswith('v_fmac') or mn.startswith('v_dot2c') or mn.startswith('v_pk_fmac') or self.isdpp or self.issdwa or mn.startswith('v_writelane'):
                    rd |= R[0]
                if mn.startswith('v_cndmask') and len(ops) == 3:
                    rd |= regs_of('vcc')
        elif mn.startswith('buffer_') or mn.startswith('global_'):
            self.kind = 'vmem'
            lds = re.search(r'\blds\b', self.mods) is not None
            if 'load' in mn and not lds:
                wr |= R[0]
                for r in R[1:]:
                    rd |= r
                if 'd16' in mn:
                    rd |= R[0]
            elif 'load' in mn and lds:
                for r in R:
                    rd |= r
                rd |= regs_of('m0')
            else:
                for r in R:
                    rd |= r
                self.sdata = R[0] if mn.startswith('buffer_') else R[1]
        elif mn.startswith('ds_'):
            self.kind = 'ds'
            if mn.startswith('ds_read') or mn.startswith('ds_bpermute') or mn.startswith('ds_permute') or mn.startswith('ds_swizzle') or '_rtn' in mn:
                wr |= R[0]
                for r in R[1:]:
                    rd |= r
                if 'd16' in mn:
                    rd |= R[0]
            else:
                for r in R:
                    rd |= r
        elif mn.startswith('s_load') or mn.startswith('s_buffer_load') or mn.startswith('s_memtime') or mn.startswith('s_memrealtime'):
            self.kind = 'smem'
            wr |= R[0]
            for r in R[1:]:
                rd |= r
        elif mn.startswith('s_'):
            self.kind = 'salu'
            if mn.startswith('s_cmp') or mn.startswith('s_cbranch') or mn in ('s_branch', 's_barrier', 's_waitcnt', 's_nop', 's_endpgm', 's_setprio', 's_sleep') or mn.startswith('s_bitcmp'):
                for r in R:
                    rd |= r
            else:
                if R:
                    wr |= R[0]
                for r in R[1:]:
                    rd |= r
                if 'saveexec' in mn:
                    wr |= regs_of('exec')
                    rd |= regs_of('exec')
        else:
            raise ValueError('unknown instruction ' + self.text)
        self.rd, self.wr = rd, wr


class Label:
    def __init__(self, name):
        self.name = name


class Raw:
    def __init__(self, text):
        self.text = text


class Stream:
    def __init__(self):
        self.items = []

    def __call__(self, text, needs=None, tok=None):
        i = Ins(text)
        if needs:
            i.needs = list(needs) if isinstance(needs, (list, tuple)) else [needs]
        i.tok = tok
        self.items.append(i)
        return i

    def label(self, name):
        self.items.append(Label(name))

    def raw(self, text):
        self.items.append(Raw(text))

    def cond_begin(self):
        self.items.append(Raw(';<cond>'))

    def cond_end(self):
        self.items.append(Raw(';</cond>'))

    def extend(self, other):
        self.items.extend(other.items)

    def wait_all(self, vm=True, lgkm=True):
        s = 's_waitcnt'
        if vm:
            s += ' vmcnt(0)'
        if lgkm:
            s += ' lgkmcnt(0)'
        return self(s)


def merge(main, filler, ratio=None, after=0):
    out = Stream()
    m, f = main.items, filler.items
    n = len(m) - after
    fi = 0
    for idx, it in enumerate(m):
        out.items.append(it)
        if idx >= after:
            want = (idx - after + 1) * len(f) // max(n, 1)
            while fi < want:
                out.items.append(f[fi])
                fi += 1
    while fi < len(f):
        out.items.append(f[fi])
        fi += 1
    return out


def finalize(stream, verbose=False):
    items = stream.items
    out = []
    vm = []
    lg = []
    cond_depth = 0
    cond_id = 0
    cur_cond = 0
    done = set()

    def count_after(lst, idx):
        n = 0
        for e in lst[idx + 1:]:
            if e['cond'] == 0 or e['cond'] == cur_cond:
                n += 1
        return n

    def retire(lst, idx):
        del lst[:idx + 1]

    for it in items:
        if isinstance(it, Raw):
            if it.text == ';<cond>':
                cond_id += 1
                cur_cond = cond_id
            elif it.text == ';</cond>':
                for lst in (vm, lg):
                    for e in lst:
                        if e['cond'] == cur_cond and e['ins'].wr:
                            e['orphan'] = True
                cur_cond = 0
            out.append(it)
            continue
        if isinstance(it, Label):
            out.append(it)
            continue
        touched = it.rd | it.wr
        need_vm = -1
        need_lg = -1
        for i, e in enumerate(vm):
            ins = e['ins']
            if cur_cond and e.get('wc') == cur_cond:
                continue
            if (ins.wr & touched) or (ins in it.needs) or (ins.tok is not None and ins.tok in it.needs):
                need_vm = i
            if it.kind == 'ds' and ins.sdata and (ins.sdata & it.wr):
                need_vm = i
        for i, e in enumerate(lg):
            ins = e['ins']
            if cur_cond and e.get('wc') == cur_cond:
                continue
            if (ins.wr & touched) or (ins in it.needs) or (ins.tok is not None and ins.tok in it.needs):
                need_lg = i
        w = ''
        if need_vm >= 0:
            n = min(count_after(vm, need_vm), 63)
            w += ' vmcnt(%d)' % n
            if cur_cond == 0 or vm[need_vm]['cond'] == cur_cond:
                pass
            keep = []
            for i, e in enumerate(vm):
                if i <= need_vm and (cur_cond == 0 or e['cond'] == cur_cond):
                    continue
                keep.append(e)
            if cur_cond != 0:
                for i, e in enumerate(vm):
                    if i <= need_vm and e['cond'] != cur_cond:
                        e['wc'] = cur_cond
            vm_new = keep
        else:
            vm_new = vm
        if need_lg >= 0:
            has_smem = any(e['ins'].kind == 'smem' for e in lg)
            n = 0 if has_smem else min(count_after(lg, need_lg), 15)
            w += ' lgkmcnt(%d)' % n
            upto = len(lg) - 1 if has_smem else need_lg
            keep = []
            for i, e in enumerate(lg):
                if i <= upto and (cur_cond == 0 or e['cond'] == cur_cond):
                    continue
                if i <= upto:
                    e['wc'] = cur_cond
                keep.append(e)
            lg_new = keep
        else:
            lg_new = lg
        if w:
            out.append(Ins('s_waitcnt' + w))
        vm, lg = vm_new, lg_new
        if it.mn == 's_waitcnt':
            m = re.search(r'vmcnt\((\d+)\)', it.text)
            if m and int(m.group(1)) == 0:
                vm = [e for e in vm if not (cur_cond == 0 or e['cond'] == cur_cond)]
            m = re.search(r'lgkmcnt\((\d+)\)', it.text)
            if m and int(m.group(1)) == 0:
                lg = [e for e in lg if not (cur_cond == 0 or e['cond'] == cur_cond)]
        if it.kind == 'vmem':
            vm.append(dict(ins=it, cond=cur_cond))
        elif it.kind in ('ds', 'smem'):
            lg.append(dict(ins=it, cond=cur_cond))
        out.append(it)

    res = []
    hist = []
    pos = 0

    def need_states(p, c):
        n = 0
        vr = lambda s: {r for r in s if r[0] in 'va'}
        sr = lambda s: {r for r in s if r[0] == 's'}
        if p.kind == 'valu':
            pw = vr(p.wr)
            if c.kind == 'mfma' and (pw & c.rd):
                n = max(n, 2)
            if c.kind == 'valu':
                if p.mn.split('_e')[0] in TRANS and (pw & c.rd):
                    n = max(n, 1)
                if (c.mn.startswith('v_readlane') or c.mn.startswith('v_readfirstlane')) and (pw & c.rd):
                    n = max(n, 1)
                if c.isdpp and (pw & c.rd):
                    n = max(n, 2)
                if c.mn.startswith('v_permlane') and (pw & c.rd):
                    n = max(n, 2)
                if (p.issdwa or 'op_sel' in p.mods) and (pw & (c.rd | c.wr)):
                    n = max(n, 1)
                if p.mn.startswith('v_dot') and (pw & (c.rd | c.wr)):
                    if c.mn == p.mn and not (pw & (regs_of(c.ops[1]) | regs_of(c.ops[2]))):
                        pass
                    else:
                        n = max(n, 3)
            if p.mn.startswith('v_dot') and c.kind in ('ds', 'vmem', 'mfma') and (pw & c.rd):
                n = max(n, 3)
            ps = sr(p.wr)
            if ps:
                if c.kind == 'valu' and (ps & c.rd):
                    n = max(n, 4 if (c.mn.startswith('v_readlane') or c.mn.startswith('v_writelane')) else 2)
                if c.kind == 'vmem' and (ps & c.rd):
                    n = max(n, 5)
                if c.kind in ('salu', 'smem') and (ps & c.rd):
                    n = max(n, 1)
        if p.kind == 'mfma':
            passes = 8 if '32x32' in p.mn else 4
            big = 12 if passes == 8 else 8
            ovl = 10 if passes == 8 else 6
            war = 7 if passes == 8 else 3
            if c.kind == 'mfma':
                if p.wr & (c.srcA | c.srcB):
                    n = max(n, big)
                if p.wr & c.srcC:
                    if p.wr == c.srcC and p.mn == c.mn:
                        pass
                    else:
                        n = max(n, ovl)
                elif p.wr & c.wr:
                    n = max(n, big)
            elif c.kind in ('valu', 'vmem', 'ds'):
                if p.wr & (c.rd | c.wr):
                    n = max(n, big)
                if c.kind == 'valu' and (p.srcC & c.wr):
                    n = max(n, war)
        if p.kind == 'salu' and ('s', 124) in p.wr:
            if ('s', 124) in c.rd and c.kind in ('vmem', 'ds'):
                n = max(n, 1)
        if p.kind == 'vmem' and p.sdata and len(p.sdata) >= 3:
            if p.sdata & c.wr:
                n = max(n, 2 if c.kind == 'valu' else 1)
        return n

    cond_pos0 = None
    for it in out:
        if isinstance(it, (Raw, Label)):
            if isinstance(it, Raw) and it.text == ';<cond>':
                cond_pos0 = pos
                cond_saved = list(hist)
            elif isinstance(it, Raw) and it.text == ';</cond>':
                d = pos - cond_pos0
                hist = [(p, pp + d) for (p, pp) in cond_saved] + [(p, pp) for (p, pp) in hist if pp >= cond_pos0]
                cond_pos0 = None
            res.append(it)
            continue
        req = 0
        for (p, ppos) in hist:
            dist = pos - ppos - 1
            if dist >= 20:
                continue
            ns = need_states(p, it)
            if ns > dist:
                req = max(req, ns - dist)
        while req > 0:
            k = min(req, 16)
            nop = Ins('s_nop %d' % (k - 1))
            res.append(nop)
            pos += k
            req -= k
        res.append(it)
        hist.append((it, pos))
        if it.mn == 's_nop':
            pos += int(it.ops[0]) + 1
        else:
            pos += 1
        if len(hist) > 40:
            hist = hist[-40:]
    lines = []
    for it in res:
        if isinstance(it, Label):
            lines.append(it.name + ':')
        elif isinstance(it, Raw):
            lines.append(it.text)
        else:
            lines.append('    ' + it.text)
    return lines
```

```python
import numpy as np
from asmgen import Stream
import tables as TB
from gen import *

W2_SZ = 4608 * 576 * 2
PROW = 2304


def wscale(e, S_WM, v, t, neg):
    e('v_max_u32 v%d, v%d, v%d' % (v, v, v + 1))
    e('v_max_u32 v%d, v%d, v%d' % (v + 2, v + 2, v + 3))
    e('v_max_u32 v%d, v%d, v%d' % (v, v, v + 2))
    allreduce_wave(e, v, t, 'v_max_u32')
    e('v_lshlrev_b32 v%d, 16, v%d' % (v, v))
    e('v_frexp_exp_i32_f32 v%d, v%d' % (v, v))
    if neg:
        e('v_sub_u32 v%d, 0, v%d' % (v, v))
    e('v_ldexp_f32 v%d, 1.0, v%d' % (v, v))


def cmul_regs(e, ore, oim, dre, dim, twr, twi):
    for r in range(4):
        e('v_mul_f32 v%d, v%d, v%d' % (ore + r, dre + r, twr + r))
        e('v_mul_f32 v%d, v%d, v%d' % (oim + r, dre + r, twi + r))
    for r in range(4):
        e('v_fma_f32 v%d, -v%d, v%d, v%d' % (ore + r, dim + r, twi + r, ore + r))
        e('v_fmac_f32 v%d, v%d, v%d' % (oim + r, dim + r, twr + r))


def gen_k2():
    e = Stream()
    NU = 144
    S_H, S_W2, S_P, S_XF, S_YF, S_WT, S_WM, S_TAB, S_ST = 16, 20, 24, 28, 32, 36, 40, 44, 48
    s_wave, s_ks, s_rb, s_cb, s_t0, s_t1 = 56, 57, 58, 59, 60, 61
    s_b0 = 62
    s_m0b = 63
    s_a0 = 64
    s_a1 = 65
    s_p0, s_p1 = 66, 67
    s_col = 68
    s_so = 70
    v_be, v_bo = 1, 2
    v_dma = [3, 4, 5]
    v_s0, v_s1 = 6, 7
    v_l16 = 8
    v_t0, v_t1 = 9, 10
    v_xa, v_wa, v_sc = 11, 12, 13
    vB = lambda f: 16 + 4 * f
    vC1 = lambda rt, t: 64 + (t * 2 + rt) * 4
    vC2 = lambda rt, t: 40 + (t * 2 + rt) * 4

    def rA(rt, k):
        i = (k * 2 + rt) * 4
        return ar(i, 4) if i < 256 else vr(224 + i - 256, 4)

    e.label('k2_kernel')
    e('s_cmp_ge_u32 s2, 256')
    e('s_cbranch_scc1 .Lk2_end')
    e('s_load_dwordx2 s[4:5], s[0:1], 48')
    e('s_load_dwordx2 s[10:11], s[0:1], 80')
    table_srd(e, S_TAB, 'k2')
    e('v_lshrrev_b32 v1, 6, v0')
    e('v_and_b32 v0, 63, v0')
    e('v_readfirstlane_b32 s%d, v1' % s_wave)
    e('s_and_b32 s%d, s2, 7' % s_t0)
    e('s_lshr_b32 s%d, s2, 3' % s_t1)
    e('s_lshr_b32 s%d, s%d, 1' % (s_ks, s_t0))
    e('s_and_b32 s%d, s%d, 1' % (s_rb, s_t0))
    e('s_lshl_b32 s%d, s%d, 3' % (s_rb, s_rb))
    e('s_and_b32 s%d, s%d, 7' % (s_cb, s_t1))
    e('s_add_u32 s%d, s%d, s%d' % (s_rb, s_rb, s_cb))
    e('s_lshr_b32 s%d, s%d, 3' % (s_cb, s_t1))
    e('s_mul_i32 s%d, s%d, %d' % (s_b0, s_ks, 1152 * 1152))
    e('s_mul_i32 s%d, s%d, 288' % (s_t0, s_cb))
    e('s_add_u32 s%d, s%d, s%d' % (s_b0, s_b0, s_t0))
    e('s_lshl_b32 s%d, s%d, 3' % (s_t0, s_rb))
    e('s_lshl_b32 s%d, s%d, 1' % (s_t1, s_wave))
    e('s_add_u32 s%d, s%d, s%d' % (s_t0, s_t0, s_t1))
    e('s_mul_i32 s%d, s%d, 144' % (s_a0, s_t0))
    e('s_mul_i32 s%d, s%d, 36' % (s_t1, s_ks))
    e('s_add_u32 s%d, s%d, s%d' % (s_a0, s_a0, s_t1))
    e('s_lshl_b32 s%d, s%d, 10' % (s_a0, s_a0))
    e('s_add_u32 s%d, s%d, %d' % (s_a1, s_a0, 144 * 1024))
    e('s_mul_i32 s%d, s%d, %d' % (s_p0, s_t0, 16 * PROW))
    e('s_mul_i32 s%d, s%d, %d' % (s_t1, s_ks, 2048 * PROW))
    e('s_add_u32 s%d, s%d, s%d' % (s_p0, s_p0, s_t1))
    e('s_mul_i32 s%d, s%d, 576' % (s_t1, s_cb))
    e('s_add_u32 s%d, s%d, s%d' % (s_p0, s_p0, s_t1))
    e('s_add_u32 s%d, s%d, %d' % (s_p1, s_p0, 16 * PROW))
    e('s_lshl_b32 s%d, s%d, 10' % (s_m0b, s_wave))
    e('v_lshlrev_b32 v%d, 4, v0' % v_l16)
    e('s_lshl_b32 s%d, s%d, 6' % (s_t0, s_wave))
    e('s_mov_b32 s%d, 0x15556' % s_t1)
    for q in range(3):
        d = v_dma[q]
        e('v_add_u32 v%d, s%d, v0' % (d, s_t0))
        if q:
            e('v_add_u32 v%d, %d, v%d' % (d, q * 256, d))
        e('v_mul_u32_u24 v1, s%d, v%d' % (s_t1, d))
        e('v_lshrrev_b32 v1, 20, v1')
        e('v_mul_u32_u24 v2, 12, v1')
        e('v_sub_u32 v2, v%d, v2' % d)
        e('v_bfe_u32 v%d, v1, 2, 1' % d)
        e('v_lshlrev_b32 v%d, 1, v%d' % (d, d))
        e('v_xor_b32 v2, v2, v%d' % d)
        e('v_mul_u32_u24 v1, 1152, v1')
        e('v_lshl_add_u32 v%d, v2, 4, v1' % d)
    make_srd(e, S_H, 10, H_SZ, H_OFF)
    make_srd(e, S_W2, 4, W2_SZ)

    def bdma(q):
        st = Stream()
        so = s_so + (q % 2)
        if q < 54:
            st('s_add_u32 s%d, s%d, 0x%x' % (so, s_b0, (q // 3) * 64 * 1152))
        else:
            st('s_add_u32 s%d, s%d, 0x%x' % (so, s_b0, ((q - 54) // 3) * 128 * 1152 + 192))
        st('s_add_u32 m0, s%d, 0x%x' % (s_m0b, (q % 36) * 4096))
        st('buffer_load_dwordx4 v%d, s[%d:%d], s%d offen lds' % (v_dma[q % 3], S_W2, S_W2 + 3, so), tok=('d', q))
        return st

    def aload(k):
        st = Stream()
        for rt in range(2):
            so = (s_a0, s_a1)[rt]
            if k >= 4:
                if k % 4 == 0:
                    st('s_add_u32 s%d, s%d, 4096' % (so, so))
            st('buffer_load_dwordx4 %s, v%d, s[%d:%d], s%d offen offset:%d' % (rA(rt, k), v_l16, S_H, S_H + 3, so, (k % 4) * 1024))
        return st

    e.extend(aload(0))
    e.extend(bdma(0))
    e.extend(bdma(1))
    e.extend(aload(1))
    e.extend(bdma(2))
    make_srd(e, S_XF, 10, XF_SZ, XF_OFF)
    make_srd(e, S_YF, 10, XF_SZ, YF_OFF)
    make_srd(e, S_WT, 10, XF_SZ, WT_OFF)
    make_srd(e, S_WM, 10, 1024, WM_OFF)
    make_srd(e, S_P, 10, P_SZ, P_OFF)
    if STAMP:
        make_srd(e, S_ST, 10, 1 << 20, ST_OFF)
    stamp(e, 0)
    TB2 = 112
    for q in range(4):
        e('s_movk_i32 s%d, 0x%x' % (s_t1, T2_OFF + q * 1024))
        e('buffer_load_dwordx4 %s, v%d, s[%d:%d], s%d offen' % (vr(TB2 + 4 * q, 4), v_l16, S_TAB, S_TAB + 3, s_t1))
    e('buffer_load_dwordx4 v[128:131], v%d, s[%d:%d], 0 offen' % (v_l16, S_WM, S_WM + 3))
    e('v_lshrrev_b32 v%d, 4, v0' % v_t0)
    e('v_and_b32 v%d, 15, v0' % v_t1)
    e('v_lshl_add_u32 v%d, v%d, 6, v%d' % (v_xa, v_t0, v_t1))
    e('v_mul_u32_u24 v%d, %d, v%d' % (v_xa, XF_ROW, v_xa))
    e('s_lshl_b32 s%d, s%d, 3' % (s_t0, s_wave))
    e('v_add_u32 v%d, s%d, v%d' % (v_xa, s_t0, v_xa))
    e('v_lshrrev_b32 v%d, 5, v0' % v_wa)
    e('v_lshlrev_b32 v%d, 4, v%d' % (v_wa, v_wa))
    e('v_add_u32 v%d, v%d, v%d' % (v_wa, v_wa, v_t1))
    e('v_lshlrev_b32 v%d, 3, v%d' % (v_wa, v_wa))
    e('s_lshl_b32 s%d, s%d, 1' % (s_t0, s_wave))
    e('v_add_u32 v%d, s%d, v%d' % (v_wa, s_t0, v_wa))
    e('v_mul_u32_u24 v%d, %d, v%d' % (v_wa, XF_ROW, v_wa))
    e('v_and_b32 v%d, 1, v%d' % (v_t0, v_t0))
    e('v_lshl_add_u32 v%d, v%d, 4, v%d' % (v_wa, v_t0, v_wa))

    def fft_loads(st, base, scol):
        for r in range(4):
            st('s_add_u32 s%d, s%d, %d' % (s_so + 2, scol, r * 16 * XF_ROW))
            st('buffer_load_dwordx2 %s, v%d, s[%d:%d], s%d offen' % (vr(base + 2 * r, 2), v_xa, S_XF, S_XF + 3, s_so + 2))
        for tk in range(2):
            st('s_add_u32 s%d, s%d, %d' % (s_so + 2, scol, tk * XF_ROW))
            st('buffer_load_dwordx4 %s, v%d, s[%d:%d], s%d offen' % (vr(base + 8 + 4 * tk, 4), v_wa, S_WT, S_WT + 3, s_so + 2))

    def fft_col(st, base, scol):
        F_re, F_im, twr, twi = TB2, TB2 + 4, TB2 + 8, TB2 + 12
        W = 168
        A = [W, W + 4]
        Dre = [W + 8, W + 16]
        Dim = [W + 12, W + 20]
        Tre = [W + 24, W + 32]
        Tim = [W + 28, W + 36]
        Wr = [W + 40, W + 48]
        Wi = [W + 44, W + 52]
        for tk in range(2):
            for r in range(4):
                st('v_mov_b32 v%d, v%d' % (A[tk] + r, base + 2 * r + tk))
        for half in range(2):
            for tk in range(2):
                st('v_mfma_f32_16x16x32_f16 %s, %s, %s, 0' % (vr(Dre[tk], 4), vr(A[tk], 4), vr(F_re, 4)))
                st('v_mfma_f32_16x16x32_f16 %s, %s, %s, 0' % (vr(Dim[tk], 4), vr(A[tk], 4), vr(F_im, 4)))
            if half == 0:
                for tk in range(2):
                    for r in range(4):
                        st('v_lshlrev_b32 v%d, 16, v%d' % (Wr[tk] + r, base + 8 + 4 * tk + r))
                        st('v_and_b32 v%d, 0xffff0000, v%d' % (Wi[tk] + r, base + 8 + 4 * tk + r))
                    for r in range(4):
                        st('v_mul_f32 v%d, v%d, v%d' % (Wr[tk] + r, v_sc, Wr[tk] + r))
                        st('v_mul_f32 v%d, v%d, v%d' % (Wi[tk] + r, v_sc, Wi[tk] + r))
            for tk in range(2):
                cmul_regs(st, Tre[tk], Tim[tk], Dre[tk], Dim[tk], twr, twi)
                for r in range(4):
                    st('v_cvt_pk_f16_f32 v%d, v%d, v%d' % (A[tk] + r, Tre[tk] + r, Tim[tk] + r))
            for tk in range(2):
                st('v_mfma_f32_16x16x32_f16 %s, %s, %s, 0' % (vr(Dre[tk], 4), vr(F_re, 4), vr(A[tk], 4)))
                st('v_mfma_f32_16x16x32_f16 %s, %s, %s, 0' % (vr(Dim[tk], 4), vr(F_im, 4), vr(A[tk], 4)))
            if half == 0:
                for tk in range(2):
                    cmul_regs(st, Tre[tk], Tim[tk], Dre[tk], Dim[tk], Wr[tk], Wi[tk])
                    for r in range(4):
                        st('v_cvt_pk_f16_f32 v%d, v%d, v%d' % (A[tk] + r, Tim[tk] + r, Tre[tk] + r))
            else:
                for tk in range(2):
                    for r in range(4):
                        st('v_cvt_pk_f16_f32 v%d, v%d, v%d' % (base + 2 * r + tk, Dim[tk] + r, Dre[tk] + r))
        for r in range(4):
            st('s_add_u32 s%d, s%d, %d' % (s_so + 2, scol, r * 16 * XF_ROW))
            st('buffer_store_dwordx2 %s, v%d, s[%d:%d], s%d offen' % (vr(base + 2 * r, 2), v_xa, S_YF, S_YF + 3, s_so + 2))

    e('s_lshl_b32 s%d, s2, 5' % s_col)
    fft_loads(e, 132, s_col)
    e('s_min_u32 s%d, s2, 32' % (s_col + 1))
    e('s_add_u32 s%d, s%d, 256' % (s_col + 1, s_col + 1))
    e('s_lshl_b32 s%d, s%d, 5' % (s_col + 1, s_col + 1))
    e('s_cmp_gt_u32 s2, 32')
    e('s_cbranch_scc1 .Lk2_nol2')
    e.cond_begin()
    fft_loads(e, 148, s_col + 1)
    e.cond_end()
    e.label('.Lk2_nol2')

    LA, LB = 10, 16
    nq = [3]
    na = [2]

    def issue_upto(st, ka, unit_lim):
        while True:
            did = False
            if nq[0] < 81 and nq[0] * 4 < unit_lim:
                if nq[0] == 54:
                    dma2_setup(st)
                st.extend(bdma(nq[0]))
                nq[0] += 1
                did = True
            if na[0] < min(ka, 36):
                st.extend(aload(na[0]))
                na[0] += 1
                did = True
            if not did:
                break

    def dma2_setup(st):
        st('s_lshl_b32 s%d, s%d, 6' % (s_t0, s_wave))
        st('s_mov_b32 s%d, 0x2aaab' % s_t1)
        for q in range(3):
            d = v_dma[q]
            st('v_add_u32 v%d, s%d, v0' % (d, s_t0))
            if q:
                st('v_add_u32 v%d, %d, v%d' % (d, q * 256, d))
            st('v_mul_u32_u24 v%d, s%d, v%d' % (v_t0, s_t1, d))
            st('v_lshrrev_b32 v%d, 20, v%d' % (v_t0, v_t0))
            st('v_mul_u32_u24 v%d, 6, v%d' % (v_t1, v_t0))
            st('v_sub_u32 v%d, v%d, v%d' % (d, d, v_t1))
            st('v_mul_u32_u24 v%d, 1152, v%d' % (v_t0, v_t0))
            st('v_lshl_add_u32 v%d, v%d, 4, v%d' % (d, d, v_t0))

    issue_upto(e, 8, 12 * 6)
    wscale(e, S_WM, 128, v_t0, True)
    e('v_mov_b32 v%d, v128' % v_sc)
    fft_col(e, 132, s_col)
    e('s_cmp_gt_u32 s2, 32')
    e('s_cbranch_scc1 .Lk2_noc2')
    e.cond_begin()
    fft_col(e, 148, s_col + 1)
    e.cond_end()
    e.label('.Lk2_noc2')
    stamp(e, 1)

    e('v_lshrrev_b32 v%d, 2, v0' % v_t0)
    e('v_mul_u32_u24 v%d, 192, v%d' % (v_be, v_t0))
    e('v_and_b32 v%d, 3, v0' % v_t1)
    e('v_lshl_add_u32 v%d, v%d, 3, v%d' % (v_be, v_t1, v_be))
    e('v_bfe_u32 v%d, v0, 4, 1' % v_t1)
    e('v_lshlrev_b32 v%d, 5, v%d' % (v_t1, v_t1))
    e('v_sub_u32 v%d, v%d, v%d' % (v_bo, v_be, v_t1))
    e('v_add_u32 v%d, 32, v%d' % (v_bo, v_bo))
    e('v_add_u32 v%d, v%d, v%d' % (v_be, v_be, v_t1))
    e('v_lshrrev_b32 v%d, 4, v0' % v_t0)
    e('v_mul_u32_u24 v%d, %d, v%d' % (v_s0, 4 * PROW, v_t0))
    e('v_and_b32 v%d, 15, v0' % v_t1)
    e('v_lshl_add_u32 v%d, v%d, 2, v%d' % (v_s0, v_t1, v_s0))
    e('v_add_u32 v%d, %d, v%d' % (v_s1, 2 * PROW, v_s0))

    WIN = 49152
    win = {'w': 0}

    def setwin(st, w_, regs):
        if win['w'] != w_:
            delta = (w_ - win['w']) * WIN
            for r_ in regs:
                st('v_add_u32 v%d, 0x%x, v%d' % (r_, delta & 0xffffffff, r_))
            win['w'] = w_

    ring1 = lambda k: (k % 24) * 6144
    ring2 = lambda k: ((72 + 3 * k) % NU) * 1024

    def bread1(k, t):
        st = Stream()
        base = v_be if t % 2 == 0 else v_bo
        koff = ring1(k) - win['w'] * WIN
        assert 0 <= koff < WIN
        for al in range(2):
            st('ds_read_b64_tr_b16 %s, v%d offset:%d' % (vr(vB(t) + 2 * al, 2), base, koff + al * 3072 + (t >> 1) * 64))
        return st

    def bread2(k, t):
        st = Stream()
        f = (k & 1) * 3 + t
        koff = ring2(k) - win['w'] * WIN
        assert 0 <= koff < WIN, (k, koff)
        for al in range(2):
            st('ds_read_b64_tr_b16 %s, v%d offset:%d' % (vr(vB(f) + 2 * al, 2), v_be, koff + al * 1536 + t * 32))
        return st

    def sync(units):
        st = Stream()
        st('s_barrier', needs=[('d', q) for q in range(min(-(-units // 4), 81))])
        return st

    def pstore(acc, t):
        st = Stream()
        for rt in range(2):
            for r in range(4):
                st('buffer_store_dword v%d, v%d, s[%d:%d], s%d offen offset:%d' % (acc(rt) + r, (v_s0, v_s1)[r >> 1], S_P, S_P + 3, (s_p0, s_p1)[rt], (r & 1) * PROW + t * 64))
        return st

    stamp(e, 2)
    e.extend(sync(12))
    stamp(e, 3)
    for t in range(6):
        e.extend(bread1(0, t))
    for k in range(36):
        main = Stream()
        fill = Stream()
        if k % 2 == 1:
            if k == 35:
                e.extend(sync(216 + 12))
            else:
                e.extend(sync((k + 3) * 6))
            issue_upto(fill, k + 1 + LA, min(k * 6 + NU, (k + 1 + LB) * 6))
        if k + 1 < 36:
            setwin(e, ring1(k + 1) // WIN, [v_be, v_bo])
        else:
            e('v_lshrrev_b32 v%d, 2, v0' % v_t0)
            e('v_mul_u32_u24 v%d, 96, v%d' % (v_be, v_t0))
            e('v_and_b32 v%d, 3, v0' % v_t1)
            e('v_lshl_add_u32 v%d, v%d, 3, v%d' % (v_be, v_t1, v_be))
            win['w'] = 0
            setwin(e, ring2(0) // WIN, [v_be])
        for t in range(6):
            for rt in range(2):
                c = vC1(rt, t)
                main('v_mfma_f32_16x16x32_bf16 %s, %s, %s, %s' % (vr(c, 4), rA(rt, k), vr(vB(t), 4), vr(c, 4) if k else '0'))
            if k + 1 < 36:
                main.extend(bread1(k + 1, t))
            else:
                main.extend(bread2(t // 3, t % 3))
        e.extend(merge_keep(main, fill))
    stamp(e, 4)
    stores = Stream()
    for t in range(6):
        stores.extend(pstore(lambda rt, t=t: vC1(rt, t), t))
    nst = len(stores.items)
    for sg in range(18):
        fill = Stream()
        knext = 2 * sg + 2
        if knext < 36 and knext % 4 == 0:
            e.extend(sync(216 + (knext + 4) * 3))
            issue_upto(fill, 36, 216 + 2 * sg * 3 + NU)
        if knext < 36:
            setwin(e, ring2(knext) // WIN, [v_be])
        main = Stream()
        for f in range(6):
            k = 2 * sg + f // 3
            t = f % 3
            for rt in range(2):
                c = vC2(rt, t)
                main('v_mfma_f32_16x16x32_bf16 %s, %s, %s, %s' % (vr(c, 4), rA(rt, k), vr(vB(f), 4), vr(c, 4) if k else '0'))
            if k + 2 < 36:
                main.extend(bread2(k + 2, t))
        if 2 <= sg < 14:
            fill.items.extend(stores.items[(sg - 2) * 4:(sg - 1) * 4])
        e.extend(merge_keep(main, fill))
    stamp(e, 5)
    for t in range(3):
        e.extend(pstore(lambda rt, t=t: vC2(rt, t), 6 + t))
    stamp(e, 6)
    if STAMP:
        e('s_waitcnt vmcnt(0)')
    stamp(e, 7)
    stamp_store(e, 8, S_ST, s_wave, 1, nw=4)
    e.label('.Lk2_end')
    e('s_endpgm')
    return e


def gen_k3():
    e = Stream()
    YL = 0
    OL = 9600
    S_X, S_B2, S_O, S_P, S_YF, S_WM, S_TAB, S_ST = 16, 20, 24, 28, 32, 36, 40, 44
    s_wave, s_t0, s_t1, s_row = 56, 57, 58, 59
    s_r2 = 60
    s_ex = 62
    s_tw = 64
    s_l2e = 80
    v_tid, v_l16, v_t0, v_t1, v_l8 = 1, 2, 3, 4, 5
    TB3 = 8
    e.label('k3_kernel')
    e('s_cmp_ge_u32 s2, 256')
    e('s_cbranch_scc1 .Lk3_end')
    e('s_load_dwordx2 s[4:5], s[0:1], 0')
    e('s_load_dwordx4 s[8:11], s[0:1], 56')
    e('s_load_dwordx2 s[12:13], s[0:1], 80')
    table_srd(e, S_TAB, 'k3')
    e('v_mov_b32 v%d, v0' % v_tid)
    e('v_lshrrev_b32 v2, 6, v0')
    e('v_and_b32 v0, 63, v0')
    e('v_readfirstlane_b32 s%d, v2' % s_wave)
    e('v_lshlrev_b32 v%d, 4, v0' % v_l16)
    e('v_lshlrev_b32 v%d, 3, v0' % v_l8)
    e('s_mov_b32 s%d, %s' % (s_r2, fbits(0.5 ** 0.5)))
    e('s_mov_b32 s%d, %s' % (s_r2 + 1, fbits(0.5 ** 0.5)))
    e('s_mov_b32 s%d, %s' % (s_l2e, fbits(-np.log2(np.e))))
    make_srd(e, S_YF, 12, XF_SZ, YF_OFF)
    e('s_lshl_b32 s%d, s2, 6' % s_t0)
    e('s_add_u32 s%d, s%d, 0x%x' % (s_t0, s_t0, TW8_OFF))
    e('s_add_u32 s%d, s%d, s%d' % (s_ex, S_TAB, s_t0))
    e('s_addc_u32 s%d, s%d, 0' % (s_ex + 1, S_TAB + 1))
    e('s_load_dwordx16 s[%d:%d], s[%d:%d], 0' % (s_tw, s_tw + 15, s_ex, s_ex + 1))
    e('s_mul_i32 s%d, s2, %d' % (s_t1, XF_ROW))
    e('v_lshlrev_b32 v%d, 5, v%d' % (v_t0, v_tid))
    e('buffer_load_dwordx4 v[64:67], v%d, s[%d:%d], s%d offen' % (v_t0, S_YF, S_YF + 3, s_t1))
    e('buffer_load_dwordx4 v[68:71], v%d, s[%d:%d], s%d offen offset:16' % (v_t0, S_YF, S_YF + 3, s_t1))
    make_srd(e, S_P, 12, P_SZ, P_OFF)
    make_srd(e, S_WM, 12, 1024, WM_OFF)
    make_srd(e, S_X, 4, X_SZ)
    make_srd(e, S_B2, 8, 1152)
    make_srd(e, S_O, 10, X_SZ)
    if STAMP:
        make_srd(e, S_ST, 12, 1 << 20, ST_OFF)
    stamp(e, 0)
    for q in range(14):
        off = T3_OFF + q * 1024
        if q == 0 or off % 4096 == 0:
            e('s_movk_i32 s%d, 0x%x' % (s_t1, off & ~0xfff))
        e('buffer_load_dwordx4 %s, v%d, s[%d:%d], s%d offen offset:%d' % (vr(TB3 + 4 * q, 4), v_l16, S_TAB, S_TAB + 3, s_t1, off & 0xfff))
    e('buffer_load_dwordx4 v[104:107], v%d, s[%d:%d], 0 offen' % (v_l16, S_WM, S_WM + 3))
    e('s_lshl_b32 s%d, s%d, 8' % (s_row, s_wave))
    e('s_add_u32 s%d, s%d, s2' % (s_row, s_row))
    e('v_cmp_gt_u32 vcc, 16, v0')
    e('v_mov_b32 v%d, 0x7ffffff0' % v_t1)
    e('v_cndmask_b32 v6, v%d, v%d, vcc' % (v_t1, v_l16))
    e('v_cndmask_b32 v7, v%d, v%d, vcc' % (v_t1, v_l8))
    PR = 108
    e('s_mul_i32 s%d, s%d, %d' % (s_t0, s_row, PROW))
    for ks in range(4):
        if ks:
            e('s_add_u32 s%d, s%d, 0x%x' % (s_t0, s_t0, 2048 * PROW))
        for j in range(3):
            e('buffer_load_dwordx4 %s, v%d, s[%d:%d], s%d offen offset:%d' % (vr(PR + (ks * 3 + j) * 4, 4), v_l16 if j < 2 else 6, S_P, S_P + 3, s_t0, j * 1024))
    XR, BR2 = 156, 162
    e('s_mul_i32 s%d, s%d, 1152' % (s_row, s_row))
    for j in range(3):
        e('buffer_load_dwordx2 %s, v%d, s[%d:%d], s%d offen offset:%d' % (vr(XR + 2 * j, 2), v_l8 if j < 2 else 7, S_X, S_X + 3, s_row, j * 512))
        e('buffer_load_dwordx2 %s, v%d, s[%d:%d], 0 offen offset:%d' % (vr(BR2 + 2 * j, 2), v_l8 if j < 2 else 7, S_B2, S_B2 + 3, j * 512))
    e('s_cmp_ge_u32 s%d, 5' % s_wave)
    e('s_cbranch_scc1 .Lk3_nor8')
    e.cond_begin()
    for k1 in range(8):
        c, s = s_tw + 2 * k1, s_tw + 2 * k1 + 1
        e('v_cvt_f32_f16 v%d, v%d' % (v_t0, 64 + k1))
        e('v_cvt_f32_f16_sdwa v%d, v%d dst_sel:DWORD dst_unused:UNUSED_PAD src0_sel:WORD_1' % (v_t1, 64 + k1))
        d = 72 + 2 * k1
        e('v_mul_f32 v%d, s%d, v%d' % (d, c, v_t0))
        e('v_mul_f32 v%d, s%d, v%d' % (d + 1, c, v_t1))
        e('v_fma_f32 v%d, v%d, s%d, v%d' % (d, v_t1, s, d))
        e('v_fma_f32 v%d, -v%d, s%d, v%d' % (d + 1, v_t0, s, d + 1))
    X = radix8(e, 72, 88, s_r2, inverse=True)
    e('v_cmp_ne_u32 vcc, 0, v%d' % v_tid)
    e('v_mov_b32 v%d, 0x120' % v_t0)
    e('v_cmp_ne_u32 s[%d:%d], v%d, v%d' % (s_ex, s_ex + 1, v_t0, v_tid))
    e('s_and_b64 vcc, vcc, s[%d:%d]' % (s_ex, s_ex + 1))
    e('v_lshlrev_b32 v%d, 2, v%d' % (v_t0, v_tid))
    e('v_min_u32 v%d, %d, v%d' % (v_t0, 295 * 4, v_t0))
    for n in range(8):
        e('v_cndmask_b32 v%d, 0, v%d, vcc' % (X[n] + 1, X[n] + 1))
        e('v_cvt_pk_f16_f32 v%d, v%d, v%d' % (64 + n, X[n], X[n] + 1))
        e('ds_write_b32 v%d, v%d offset:%d' % (v_t0, 64 + n, YL + n * TB.YL_ROW))
    e.cond_end()
    e.label('.Lk3_nor8')
    e('s_waitcnt lgkmcnt(0)')
    e('s_barrier')
    stamp(e, 1)
    e('s_mul_i32 s%d, s%d, %d' % (s_t0, s_wave, TB.YL_ROW))
    for i in range(8):
        e('v_add_u32 v%d, s%d, v%d' % (TB3 + 48 + i, s_t0, TB3 + 48 + i))
    for i in range(8):
        e('ds_read_b32 v%d, v%d offset:%d' % (64 + i, TB3 + 48 + i, YL))
    wscale(e, S_WM, 104, v_t0, False)
    for ct in range(2):
        e('v_mfma_f32_16x16x32_f16 %s, %s, %s, 0' % (vr(72 + ct * 8, 4), vr(64 + 4 * ct, 4), vr(TB3, 4)))
        e('v_mfma_f32_16x16x32_f16 %s, %s, %s, 0' % (vr(76 + ct * 8, 4), vr(64 + 4 * ct, 4), vr(TB3 + 4, 4)))
    for ct in range(2):
        cmul_regs(e, 88, 92, 72 + ct * 8, 76 + ct * 8, TB3 + 8 + ct * 8, TB3 + 12 + ct * 8)
        for r in range(4):
            e('v_cvt_pk_f16_f32 v%d, v%d, v%d' % (64 + 4 * ct + r, 88 + r, 92 + r))
    for ta in range(3):
        e('v_mfma_f32_16x16x32_f16 %s, v[64:67], %s, 0' % (vr(72 + 4 * ta, 4), vr(TB3 + 24 + ta * 8, 4)))
    for ta in range(3):
        e('v_mfma_f32_16x16x32_f16 %s, v[68:71], %s, %s' % (vr(72 + 4 * ta, 4), vr(TB3 + 28 + ta * 8, 4), vr(72 + 4 * ta, 4)))
    for j in range(3):
        for r in range(4):
            i0 = PR + j * 4 + r
            e('v_add_f32 v%d, v%d, v%d' % (i0, i0, i0 + 12))
            e('v_add_f32 v%d, v%d, v%d' % (i0 + 24, i0 + 24, i0 + 36))
    for j in range(3):
        for r in range(4):
            i0 = PR + j * 4 + r
            e('v_add_f32 v%d, v%d, v%d' % (i0, i0, i0 + 24))
    e('v_and_b32 v%d, 15, v0' % v_t0)
    e('v_lshrrev_b32 v%d, 4, v0' % v_t1)
    e('v_lshl_add_u32 v%d, v%d, 2, v%d' % (v_t0, v_t0, v_t1))
    e('v_lshlrev_b32 v%d, 4, v%d' % (v_t0, v_t0))
    e('s_mul_i32 s%d, s%d, 3072' % (s_t0, s_wave))
    e('s_add_u32 s%d, s%d, %d' % (s_t0, s_t0, OL))
    e('v_add_u32 v%d, s%d, v%d' % (v_t0, s_t0, v_t0))
    e('v_add_u32 v%d, s%d, v%d' % (v_t1, s_t0, v_l16))
    wr = []
    for ta in range(3):
        wr.append(e('ds_write_b128 v%d, %s offset:%d' % (v_t0, vr(72 + 4 * ta, 4), ta * 1024)))
    for ta in range(3):
        e('ds_read_b128 %s, v%d offset:%d' % (vr(84 + 4 * ta, 4), v_t1, ta * 1024), needs=wr)
    U = 120

    def round_pairs(regs):
        for i in range(0, len(regs), 2):
            e('v_cvt_pk_bf16_f32 v%d, v%d, v%d' % (regs[i + 1], regs[i], regs[i + 1]))
        for i in range(0, len(regs), 2):
            e('v_lshlrev_b32 v%d, 16, v%d' % (regs[i], regs[i + 1]))
            e('v_and_b32 v%d, 0xffff0000, v%d' % (regs[i + 1], regs[i + 1]))
    O = [PR + i for i in range(12)]
    Bv = [U + i for i in range(12)]
    Xv = [U + 12 + i for i in range(12)]
    Tv = [U + 24 + i for i in range(12)]
    Sv = [84 + i for i in range(12)]
    round_pairs(O)
    for i in range(6):
        e('v_lshlrev_b32 v%d, 16, v%d' % (Bv[2 * i], BR2 + i))
        e('v_and_b32 v%d, 0xffff0000, v%d' % (Bv[2 * i + 1], BR2 + i))
        e('v_lshlrev_b32 v%d, 16, v%d' % (Xv[2 * i], XR + i))
        e('v_and_b32 v%d, 0xffff0000, v%d' % (Xv[2 * i + 1], XR + i))
    for i in range(12):
        e('v_add_f32 v%d, v%d, v%d' % (O[i], O[i], Bv[i]))
    round_pairs(O)
    for i in range(12):
        e('v_mul_f32 v%d, s%d, v%d' % (Tv[i], s_l2e, O[i]))
    for i in range(12):
        e('v_exp_f32 v%d, v%d' % (Tv[i], Tv[i]))
    for i in range(12):
        e('v_add_f32 v%d, 1.0, v%d' % (Tv[i], Tv[i]))
    for i in range(12):
        e('v_rcp_f32 v%d, v%d' % (Tv[i], Tv[i]))
    for i in range(12):
        e('v_mul_f32 v%d, v%d, v%d' % (O[i], O[i], Tv[i]))
    round_pairs(O)
    for i in range(12):
        e('v_mul_f32 v%d, v104, v%d' % (Sv[i], Sv[i]))
    round_pairs(Sv)
    for i in range(12):
        e('v_mul_f32 v%d, v%d, v%d' % (O[i], O[i], Sv[i]))
    round_pairs(O)
    for i in range(12):
        e('v_add_f32 v%d, v%d, v%d' % (O[i], O[i], Xv[i]))
    for i in range(6):
        e('v_cvt_pk_bf16_f32 v%d, v%d, v%d' % (Tv[i], O[2 * i], O[2 * i + 1]))
    for j in range(3):
        e('buffer_store_dwordx2 %s, v%d, s[%d:%d], s%d offen offset:%d' % (vr(Tv[2 * j], 2), v_l8 if j < 2 else 7, S_O, S_O + 3, s_row, j * 512))
    stamp(e, 2)
    if STAMP:
        e('s_waitcnt vmcnt(0)')
    stamp(e, 3)
    stamp_store(e, 8, S_ST, s_wave, 2)
    e.label('.Lk3_end')
    e('s_endpgm')
    return e
```

```python
import numpy as np

L = np.arange(64)
G = L >> 4
I16 = L & 15

def h16(x):
    return np.asarray(x, dtype=np.float64).astype(np.float16).view(np.uint16).astype(np.uint32)

def pk(lo, hi):
    return h16(lo) | (h16(hi) << 16)

def f32(x):
    return np.asarray(x, dtype=np.float64).astype(np.float32).view(np.uint32)

def kidx(c, e):
    k = c + 36 * e
    return np.where(k <= 288, k, 576 - k)

XL_ROW = 2336
YL_ROW = 1184

def table_k1():
    regs = []
    for ct in range(2):
        c = 16 * ct + I16
        valid = (c <= 18)
        for ri in range(2):
            def val(a):
                th = 2 * np.pi * ((a * c) % 36) / 36
                v = np.cos(th) if ri == 0 else -np.sin(th)
                return np.where(valid, v, 0.0)
            for jj in range(4):
                regs.append(pk(val(8 * G + 2 * jj), val(8 * G + 2 * jj + 1)))
            regs.append(pk(val(32 + G), 0 * L))
            regs.append(pk(0 * L, 0 * L))
    for ct in range(2):
        c = 16 * ct + I16
        for ri in range(2):
            for r in range(4):
                b = 4 * G + r
                th = 2 * np.pi * ((b * c) % 576) / 576
                v = (np.cos(th) if ri == 0 else -np.sin(th)) / 6.0
                regs.append(f32(v))
    e = I16
    sg = np.where(e >= 8, -1.0, 1.0)
    for ri in range(2):
        for r in range(4):
            b = 4 * G + r
            th = 2 * np.pi * ((b * e) % 16) / 16
            if ri == 0:
                regs.append(pk(np.cos(th) / 4, np.sin(th) / 4))
            else:
                regs.append(pk(-np.sin(th) / 4 * sg, np.cos(th) / 4 * sg))
    for ct in range(2):
        c = 16 * ct + I16
        for r in range(4):
            e = 4 * G + r
            k = np.where(c <= 18, kidx(c, e), 290)
            regs.append((k * 8).astype(np.uint32))
    return np.array(regs, dtype=np.uint32)

def table_k2():
    regs = []
    e = I16
    for ri in range(2):
        for r in range(4):
            b = 4 * G + r
            th = 2 * np.pi * ((b * e) % 16) / 16
            if ri == 0:
                regs.append(pk(np.cos(th) / 4, np.sin(th) / 4))
            else:
                regs.append(pk(-np.sin(th) / 4, np.cos(th) / 4))
    for ri in range(2):
        for r in range(4):
            b = 4 * G + r
            th = 2 * np.pi * ((b * I16) % 256) / 256
            regs.append(f32(np.cos(th) if ri == 0 else -np.sin(th)))
    return np.array(regs, dtype=np.uint32)

def table_k3():
    regs = []
    b = I16
    for ri in range(2):
        for r in range(4):
            e = 4 * G + r
            sg = np.where(e >= 8, -1.0, 1.0)
            th = 2 * np.pi * ((b * e) % 16) / 16
            if ri == 0:
                regs.append(pk(np.cos(th) / 4, -sg * np.sin(th) / 4))
            else:
                regs.append(pk(np.sin(th) / 4, sg * np.cos(th) / 4))
    for ct in range(2):
        for ri in range(2):
            for r in range(4):
                c = 16 * ct + 4 * G + r
                th = 2 * np.pi * ((b * c) % 576) / 576
                v = (np.cos(th) if ri == 0 else np.sin(th)) / 6.0
                regs.append(f32(np.where(c <= 18, v, 0.0)))
    for ta in range(3):
        a = 16 * ta + I16
        for ct in range(2):
            for r in range(4):
                c = 16 * ct + 4 * G + r
                mu = np.where((c == 0) | (c == 18), 1.0, 2.0)
                mu = np.where((c <= 18) & (a <= 35), mu, 0.0)
                ph = 2 * np.pi * ((a * c) % 36) / 36
                regs.append(pk(mu * np.cos(ph), -mu * np.sin(ph)))
    for ct in range(2):
        c = 16 * ct + I16
        for r in range(4):
            e = 4 * G + r
            k = np.where(c <= 18, kidx(c, e), 0)
            regs.append((k * 4).astype(np.uint32))
    return np.array(regs, dtype=np.uint32)

def table_tw8():
    n2 = np.arange(256)[:, None]; k1 = np.arange(8)[None, :]
    th = 2 * np.pi * ((n2 * k1) % 2048) / 2048
    t = np.stack([np.cos(th), -np.sin(th)], -1) / np.sqrt(8)
    return f32(t).reshape(-1)

def image(regs):
    n = regs.shape[0]
    assert n % 4 == 0
    return regs.reshape(n // 4, 4, 64).transpose(0, 2, 1).reshape(-1)

def unpk(d):
    d = np.asarray(d, dtype=np.uint32)
    lo = (d & 0xffff).astype(np.uint16).view(np.float16).astype(np.float64)
    hi = (d >> 16).astype(np.uint16).view(np.float16).astype(np.float64)
    return lo, hi

def mfma(Aregs, Bregs, C=None):
    n = len(Aregs)
    A = np.zeros((16, 8 * n)); B = np.zeros((8 * n, 16))
    for j in range(n):
        alo, ahi = unpk(Aregs[j]); blo, bhi = unpk(Bregs[j])
        A[I16, 2 * n * G + 2 * j] = alo; A[I16, 2 * n * G + 2 * j + 1] = ahi
        B[2 * n * G + 2 * j, I16] = blo; B[2 * n * G + 2 * j + 1, I16] = bhi
    Dm = A @ B
    D = np.array([Dm[4 * G + r, I16] for r in range(4)])
    return D if C is None else D + C

def asf32(u):
    return np.asarray(u, dtype=np.uint32).view(np.float32).astype(np.float64)

def emu_rowfft(xn_row, T):
    b = I16
    xs = [xn_row[16 * (8 * G + j) + b] for j in range(8)]
    x9 = xn_row[16 * (32 + G) + b]
    A4 = [pk(xs[2 * j], xs[2 * j + 1]) for j in range(4)]
    A2 = [pk(x9, 0 * L), pk(0 * L, 0 * L)]
    XL = np.zeros(292, np.complex128)
    for ct in range(2):
        D = []
        for ri in range(2):
            base = (ct * 2 + ri) * 6
            d = mfma(A4, T[base:base + 4])
            d = mfma(A2, T[base + 4:base + 6], d)
            D.append(d)
        twr = asf32(T[24 + ct * 8: 24 + ct * 8 + 4]); twi = asf32(T[24 + ct * 8 + 4: 24 + ct * 8 + 8])
        re = D[0] * twr - D[1] * twi; im = D[0] * twi + D[1] * twr
        P = [pk(re[r], im[r]) for r in range(4)]
        o_re = mfma(T[40:44], P); o_im = mfma(T[44:48], P)
        for r in range(4):
            XL[T[48 + ct * 4 + r] // 8] = o_re[r] + 1j * o_im[r]
    return XL[:289]

def emu_col(u, Wcol, T):
    b = I16
    A = [pk(u[16 * (4 * G + r) + b].real, u[16 * (4 * G + r) + b].imag) for r in range(4)]
    twr = asf32(T[8:12]); twi = asf32(T[12:16])
    d_re = mfma(A, T[0:4]); d_im = mfma(A, T[4:8])
    re = d_re * twr - d_im * twi; im = d_re * twi + d_im * twr
    P = [pk(re[r], im[r]) for r in range(4)]
    o_re = mfma(T[0:4], P); o_im = mfma(T[4:8], P)
    Wl = np.array([Wcol[I16 + 16 * (4 * G + r)] for r in range(4)])
    yr = o_re * Wl.real - o_im * Wl.imag; yi = o_re * Wl.imag + o_im * Wl.real
    A = [pk(yi[r], yr[r]) for r in range(4)]
    d_re = mfma(A, T[0:4]); d_im = mfma(A, T[4:8])
    re = d_re * twr - d_im * twi; im = d_re * twi + d_im * twr
    P = [pk(re[r], im[r]) for r in range(4)]
    o_re = mfma(T[0:4], P); o_im = mfma(T[4:8], P)
    out = np.zeros(256, np.complex128)
    for r in range(4):
        out[16 * (4 * G + r) + b] = o_im[r] + 1j * o_re[r]
    return out

def emu_rowinv(Y1row, T):
    Ps = []
    for ct in range(2):
        idx = [T[48 + ct * 4 + r] // 4 for r in range(4)]
        A = [pk(Y1row[idx[r]].real, Y1row[idx[r]].imag) for r in range(4)]
        d_re = mfma(A, T[0:4]); d_im = mfma(A, T[4:8])
        twr = asf32(T[8 + ct * 8: 8 + ct * 8 + 4]); twi = asf32(T[8 + ct * 8 + 4: 8 + ct * 8 + 8])
        re = d_re * twr - d_im * twi; im = d_re * twi + d_im * twr
        Ps.append([pk(re[r], im[r]) for r in range(4)])
    y = np.zeros(48 * 16)
    for ta in range(3):
        d = mfma(Ps[0], T[24 + ta * 8: 24 + ta * 8 + 4])
        d = mfma(Ps[1], T[24 + ta * 8 + 4: 24 + ta * 8 + 8], d)
        for r in range(4):
            y[16 * (16 * ta + I16) + 4 * G + r] = d[r]
    return y[:576]

if __name__ == '__main__':
    rng = np.random.default_rng(1)
    x = rng.standard_normal(576)
    X = emu_rowfft(x, table_k1())
    ref = np.fft.rfft(x) / 24
    print('rowfft err', np.abs(X - ref).max(), np.abs(ref).max())
    u = rng.standard_normal(256) + 1j * rng.standard_normal(256)
    Wc = rng.standard_normal(256) + 1j * rng.standard_normal(256)
    o = emu_col(u, Wc, table_k2())
    ref = np.fft.ifft(np.fft.fft(u) * Wc)
    print('col err', np.abs(o - ref).max(), np.abs(ref).max())
    Y = rng.standard_normal(289) + 1j * rng.standard_normal(289); Y[0] = Y[0].real; Y[288] = Y[288].real
    y = emu_rowinv(Y, table_k3())
    ref = np.fft.irfft(Y, 576) * 24
    print('rowinv err', np.abs(y - ref).max(), np.abs(ref).max())
```

```python
import sys
import struct
import numpy as np
from asmgen import Stream, merge, finalize
import tables as TB

NAME = 'recurrent_scan__spectral_gfnet__mixer_channel_mlp__prompt'

H_OFF, P_OFF, XF_OFF, WT_OFF, YF_OFF, WM_OFF = 0, 0x1200000, 0x2400000, 0x2700000, 0x2A00000, 0x2D00000
H_SZ = 2048 * 4608 * 2
P_SZ = 4 * 2048 * 576 * 4
XF_ROW = 9344
XF_SZ = 256 * XF_ROW
X_SZ = 2048 * 576 * 2
W_SZ = 2048 * 289 * 2
W1_SZ = 576 * 4608 * 2

T1_OFF = 0
T2_OFF = T1_OFF + 56 * 256
T3_OFF = T2_OFF + 16 * 256
TW8_OFF = T3_OFF + 56 * 256
TAB_SZ = TW8_OFF + 256 * 64


def fbits(x):
    return '0x%08x' % struct.unpack('<I', struct.pack('<f', x))[0]


def vr(base, n=1):
    return 'v%d' % base if n == 1 else 'v[%d:%d]' % (base, base + n - 1)


def ar(base, n=1):
    return 'a%d' % base if n == 1 else 'a[%d:%d]' % (base, base + n - 1)


def sr(base, n=1):
    return 's%d' % base if n == 1 else 's[%d:%d]' % (base, base + n - 1)


def make_srd(e, d, ptr, size, off=0):
    if off:
        e('s_add_u32 s%d, s%d, 0x%x' % (d, ptr, off))
        e('s_addc_u32 s%d, s%d, 0' % (d + 1, ptr + 1))
    else:
        e('s_mov_b32 s%d, s%d' % (d, ptr))
        e('s_mov_b32 s%d, s%d' % (d + 1, ptr + 1))
    e('s_mov_b32 s%d, 0x%x' % (d + 2, size))
    e('s_mov_b32 s%d, 0x20000' % (d + 3))


def table_srd(e, d, tag):
    e('s_getpc_b64 s[%d:%d]' % (d, d + 1))
    e.label('.Lpc_%s' % tag)
    e('s_add_u32 s%d, s%d, const_tab-.Lpc_%s' % (d, d, tag))
    e('s_addc_u32 s%d, s%d, 0' % (d + 1, d + 1))
    e('s_mov_b32 s%d, 0x%x' % (d + 2, TAB_SZ))
    e('s_mov_b32 s%d, 0x20000' % (d + 3))


def allreduce_rows(e, v, t, op='v_add_f32'):
    e('v_mov_b32 v%d, v%d' % (t, v))
    e('v_permlane16_swap_b32 v%d, v%d' % (v, t))
    e('%s v%d, v%d, v%d' % (op, v, v, t))
    e('v_mov_b32 v%d, v%d' % (t, v))
    e('v_permlane32_swap_b32 v%d, v%d' % (v, t))
    e('%s v%d, v%d, v%d' % (op, v, v, t))


def allreduce_wave(e, v, t, op='v_add_f32'):
    for rot in (8, 4, 2, 1):
        e('%s_dpp v%d, v%d, v%d row_ror:%d row_mask:0xf bank_mask:0xf' % (op, v, v, v, rot))
    allreduce_rows(e, v, t, op)


def cadd(e, d, a, b):
    e('v_pk_add_f32 %s, %s, %s' % (vr(d, 2), vr(a, 2), vr(b, 2)))


def csub(e, d, a, b):
    e('v_pk_add_f32 %s, %s, %s neg_lo:[0,1] neg_hi:[0,1]' % (vr(d, 2), vr(a, 2), vr(b, 2)))


def cadd_mi(e, d, a, b):
    e('v_pk_add_f32 %s, %s, %s op_sel:[0,1] op_sel_hi:[1,0] neg_hi:[0,1]' % (vr(d, 2), vr(a, 2), vr(b, 2)))


def cadd_pi(e, d, a, b):
    e('v_pk_add_f32 %s, %s, %s op_sel:[0,1] op_sel_hi:[1,0] neg_lo:[0,1]' % (vr(d, 2), vr(a, 2), vr(b, 2)))


def radix8(e, a, t, s_r2, inverse=False):
    mi, pi = (cadd_mi, cadd_pi) if not inverse else (cadd_pi, cadd_mi)
    A = [a + 2 * n for n in range(8)]
    U = [t + 2 * n for n in range(4)]
    V = [t + 8 + 2 * n for n in range(4)]
    for n in range(4):
        cadd(e, U[n], A[n], A[n + 4])
        csub(e, V[n], A[n], A[n + 4])
    mi(e, V[1], V[1], V[1])
    e('v_pk_mul_f32 %s, %s, %s' % (vr(V[1], 2), vr(V[1], 2), sr(s_r2, 2)))
    pi(e, V[3], V[3], V[3])
    e('v_pk_mul_f32 %s, %s, %s neg_lo:[1,0] neg_hi:[1,0]' % (vr(V[3], 2), vr(V[3], 2), sr(s_r2, 2)))
    S = [A[0], A[1], A[2], A[3]]
    cadd(e, S[0], U[0], U[2])
    csub(e, S[1], U[0], U[2])
    cadd(e, S[2], U[1], U[3])
    csub(e, S[3], U[1], U[3])
    cadd(e, U[0], S[0], S[2])
    csub(e, U[2], S[0], S[2])
    mi(e, U[1], S[1], S[3])
    pi(e, U[3], S[1], S[3])
    S = [A[4], A[5], A[6], A[7]]
    mi(e, S[0], V[0], V[2])
    pi(e, S[1], V[0], V[2])
    cadd(e, S[2], V[1], V[3])
    csub(e, S[3], V[1], V[3])
    cadd(e, V[0], S[0], S[2])
    csub(e, V[2], S[0], S[2])
    mi(e, V[1], S[1], S[3])
    pi(e, V[3], S[1], S[3])
    return [U[0], V[0], U[1], V[1], U[2], V[2], U[3], V[3]]


def bf16_round1(e, v):
    e('v_cvt_pk_bf16_f32 v%d, v%d, v%d' % (v, v, v))
    e('v_lshlrev_b32 v%d, 16, v%d' % (v, v))


import os
STAMP = os.environ.get('STAMP')
ST_OFF = 0x2E00000


def stamp(e, idx, base=4):
    if not STAMP:
        return
    e('s_memtime s[100:101]')
    e('s_waitcnt lgkmcnt(0)')
    e('s_mov_b32 s%d, s100' % (base + idx))


def stamp_store(e, n, s_ws_srd, s_wave, kidx, base=4, nw=8):
    if not STAMP:
        return
    e('s_mul_i32 s98, s2, %d' % nw)
    e('s_add_u32 s98, s98, s%d' % s_wave)
    e('s_lshl_b32 s98, s98, 5')
    e('s_add_u32 s98, s98, %d' % (kidx * 65536))
    e('v_mov_b32 v1, 0')
    for i in range(n):
        e('v_mov_b32 v2, s%d' % (base + i))
        e('buffer_store_dword v2, v1, s[%d:%d], s98 offen offset:%d' % (s_ws_srd, s_ws_srd + 3, 4 * i))


def gen_k1():
    e = Stream()
    ALDS = 0
    BR = 65536
    XL = BR + 72 * 1024
    MISC = 162560
    CS, BB, WMX = MISC, MISC + 576, MISC + 1152
    assert XL + 8 * TB.XL_ROW <= MISC
    S_X, S_WR, S_WI, S_W1, S_B1, S_H, S_XF, S_WT, S_TAB = 16, 20, 24, 28, 32, 36, 40, 44, 48
    S_WM = 52
    s_wave, s_rb, s_cb, s_t0, s_t1, s_n0 = 56, 57, 58, 59, 60, 61
    s_par, s_hp, s_hs = 62, 63, 64
    s_n1 = 65
    s_r2 = 66
    s_k0, s_k1 = 68, 69
    s_m0b = 70
    s_m0a = 71
    s_ex = 72
    s_arow = 74
    s_tw = 76
    s_so = 92
    vA = lambda rt, k: 112 + (k * 2 + rt) * 4
    vC1 = lambda rt, t: 64 + ((t >> 1) * 2 + rt) * 8 + (t & 1) * 4
    vC2 = lambda rt, t: (40 + rt * 8 + t * 4) if t < 2 else (56 + rt * 4)
    vB = lambda f: 16 + 4 * f
    v_lane, v_be, v_bo = 0, 1, 2
    v_dma = [3, 4, 5]
    v_st = [6, 7, 8, 9]
    v_a0, v_a1 = 10, 11
    v_t0, v_t1, v_csa, v_tid = 12, 13, 14, 15
    vG = lambda rt: 40 + rt * 4
    vS = lambda rt: 48 + rt * 4
    vCSA, vCSF = 56, 60
    vONE = 6

    e.label('k1_kernel')
    e('s_cmp_ge_u32 s2, 256')
    e('s_cbranch_scc1 .Lk1_end')
    e('s_load_dwordx4 s[4:7], s[0:1], 0')
    e('s_load_dwordx2 s[8:9], s[0:1], 16')
    e('s_load_dwordx4 s[12:15], s[0:1], 32')
    e('s_load_dwordx2 s[10:11], s[0:1], 80')
    table_srd(e, S_TAB, 'k1')
    e('v_mov_b32 v%d, v0' % v_tid)
    e('v_lshrrev_b32 v1, 6, v0')
    e('v_and_b32 v0, 63, v0')
    e('v_readfirstlane_b32 s%d, v1' % s_wave)
    e('s_and_b32 s%d, s2, 7' % s_t0)
    e('s_lshr_b32 s%d, s2, 3' % s_t1)
    e('s_and_b32 s%d, s%d, 1' % (s_rb, s_t0))
    e('s_lshl_b32 s%d, s%d, 2' % (s_rb, s_rb))
    e('s_and_b32 s%d, s%d, 3' % (s_cb, s_t1))
    e('s_add_u32 s%d, s%d, s%d' % (s_rb, s_rb, s_cb))
    e('s_lshr_b32 s%d, s%d, 1' % (s_cb, s_t0))
    e('s_lshl_b32 s%d, s%d, 3' % (s_cb, s_cb))
    e('s_lshr_b32 s%d, s%d, 2' % (s_t1, s_t1))
    e('s_add_u32 s%d, s%d, s%d' % (s_cb, s_cb, s_t1))
    e('s_mul_i32 s%d, s%d, 288' % (s_n0, s_cb))
    e('s_and_b32 s%d, s%d, 1' % (s_par, s_cb))
    e('s_lshl_b32 s%d, s%d, 5' % (s_n1, s_par))
    e('s_add_u32 s%d, s%d, s%d' % (s_n1, s_n1, s_n0))
    e('s_mov_b32 s%d, %s' % (s_r2, fbits(0.5 ** 0.5)))
    e('s_mov_b32 s%d, %s' % (s_r2 + 1, fbits(0.5 ** 0.5)))
    k0 = -2.0 * (2.0 / np.pi) ** 0.5 * np.log2(np.e)
    e('s_mov_b32 s%d, %s' % (s_k0, fbits(k0)))
    e('s_mov_b32 s%d, %s' % (s_k1, fbits(k0 * 0.044715)))
    e('v_lshrrev_b32 v%d, 4, v0' % v_t0)
    e('v_and_b32 v%d, 15, v0' % v_t1)
    e('s_lshl_b32 s%d, s%d, 4' % (s_t0, s_par))
    e('v_add_u32 v1, s%d, v%d' % (s_t0, v_tid))
    e('v_subrev_u32 v2, 144, v1')
    e('v_cmp_gt_u32 vcc, 144, v1')
    e('v_cndmask_b32 v1, v2, v1, vcc')
    e('v_lshlrev_b32 v1, 1, v1')
    make_srd(e, S_X, 4, X_SZ)
    make_srd(e, S_B1, 14, 9216)
    e('buffer_load_ushort v%d, v1, s[%d:%d], s%d offen' % (v_st[0], S_B1, S_B1 + 3, s_n0))
    e('s_lshl_b32 s%d, s2, 6' % s_t0)
    e('s_add_u32 s%d, s%d, 0x%x' % (s_t0, s_t0, TW8_OFF))
    e('s_add_u32 s%d, s%d, s%d' % (s_ex, S_TAB, s_t0))
    e('s_addc_u32 s%d, s%d, 0' % (s_ex + 1, S_TAB + 1))
    e('s_load_dwordx16 s[%d:%d], s[%d:%d], 0' % (s_tw, s_tw + 15, s_ex, s_ex + 1))
    e('s_lshl_b32 s%d, s%d, 8' % (s_t0, s_wave))
    e('s_add_u32 s%d, s%d, s2' % (s_t0, s_t0))
    e('s_mul_i32 s%d, s%d, 1152' % (s_t0, s_t0))
    e('v_lshlrev_b32 v1, 8, v%d' % v_t0)
    e('v_lshl_add_u32 v1, v%d, 1, v1' % v_t1)
    e('v_lshlrev_b32 v2, 5, v%d' % v_t0)
    e('v_lshl_add_u32 v2, v%d, 1, v2' % v_t1)
    for j in range(8):
        e('buffer_load_ushort v%d, v1, s[%d:%d], s%d offen offset:%d' % (16 + j, S_X, S_X + 3, s_t0, j * 32))
    e('buffer_load_ushort v24, v2, s[%d:%d], s%d offen offset:1024' % (S_X, S_X + 3, s_t0))
    e('v_lshlrev_b32 v3, 4, v0')
    TBASE = 56
    for q in range(14):
        off = T1_OFF + q * 1024
        if off < 4096:
            e('buffer_load_dwordx4 %s, v3, s[%d:%d], 0 offen offset:%d' % (vr(TBASE + 4 * q, 4), S_TAB, S_TAB + 3, off))
        else:
            if off % 4096 == 0:
                e('s_movk_i32 s%d, 0x%x' % (s_t1, off & ~0xfff))
            e('buffer_load_dwordx4 %s, v3, s[%d:%d], s%d offen offset:%d' % (vr(TBASE + 4 * q, 4), S_TAB, S_TAB + 3, s_t1, off & 0xfff))
    make_srd(e, S_W1, 12, W1_SZ)
    e('s_lshl_b32 s%d, s%d, 8' % (s_t0, s_rb))
    e('s_lshl_b32 s%d, s%d, 5' % (s_t1, s_wave))
    e('s_add_u32 s%d, s%d, s%d' % (s_t0, s_t0, s_t1))
    e('s_mul_i32 s%d, s%d, 1152' % (s_arow, s_t0))
    e('v_lshrrev_b32 v1, 3, v0')
    e('v_lshrrev_b32 v2, 4, v0')
    e('v_xor_b32 v2, v2, v0')
    e('v_and_b32 v2, 7, v2')
    e('v_mul_u32_u24 v1, 1152, v1')
    e('v_lshl_add_u32 v%d, v2, 4, v1' % v_a0)
    e('v_xor_b32 v2, 4, v2')
    e('v_lshl_add_u32 v%d, v2, 4, v1' % v_a1)
    e('v_add_u32 v%d, %d, v%d' % (v_a1, 8 * 1152, v_a1))
    e('s_lshl_b32 s%d, s%d, 13' % (s_m0a, s_wave))
    e('s_lshl_b32 s%d, s%d, 10' % (s_m0b, s_wave))
    e('s_add_u32 s%d, s%d, 0x%x' % (s_m0b, s_m0b, BR))

    def adma(c):
        st = Stream()
        for j in range(4):
            so = s_so + 2 + (j >> 1)
            if j % 2 == 0:
                st('s_add_u32 s%d, s%d, 0x%x' % (so, s_arow, (j >> 1) * 16 * 1152 + c * 128))
            st('s_add_u32 m0, s%d, 0x%x' % (s_m0a, ALDS + (c & 1) * 4096 + j * 1024))
            st('buffer_load_dwordx4 v%d, s[%d:%d], s%d offen lds' % ((v_a0, v_a1)[j & 1], S_X, S_X + 3, so), tok=('a', c))
        return st

    e.extend(adma(0))
    e('s_lshl_b32 s%d, s%d, 6' % (s_t0, s_wave))
    e('s_mov_b32 s%d, 0x15556' % s_t1)
    for q in range(3):
        d = v_dma[q]
        e('v_add_u32 v%d, s%d, v0' % (d, s_t0))
        if q:
            e('v_add_u32 v%d, %d, v%d' % (d, q * 512, d))
        e('v_mul_u32_u24 v1, s%d, v%d' % (s_t1, d))
        e('v_lshrrev_b32 v1, 20, v1')
        e('v_mul_u32_u24 v2, 12, v1')
        e('v_sub_u32 v2, v%d, v2' % d)
        e('v_bfe_u32 v%d, v1, 3, 1' % d)
        e('v_lshlrev_b32 v%d, 1, v%d' % (d, d))
        e('v_xor_b32 v2, v2, v%d' % d)
        e('v_mul_u32_u24 v1, 9216, v1')
        e('v_lshl_add_u32 v%d, v2, 4, v1' % d)

    def dma1(q):
        st = Stream()
        cond = (q == 13)
        if cond:
            st('s_cmp_ge_u32 s%d, 4' % s_wave)
            st('s_cbranch_scc1 .Lk1_dma13')
            st.cond_begin()
        so = s_so + (q % 2)
        st('s_add_u32 s%d, s%d, 0x%x' % (so, s_n1, (q // 3) * 128 * 9216))
        st('s_add_u32 m0, s%d, 0x%x' % (s_m0b, (q % 9) * 8192))
        st('buffer_load_dwordx4 v%d, s[%d:%d], s%d offen lds' % (v_dma[q % 3], S_W1, S_W1 + 3, so), tok=('d1', q))
        if cond:
            st.cond_end()
            st.label('.Lk1_dma13')
        return st

    def dma2(q):
        st = Stream()
        cond = (q == 6)
        if cond:
            st('s_cmp_ge_u32 s%d, 6' % s_wave)
            st('s_cbranch_scc1 .Lk1_dma26')
            st.cond_begin()
        so = s_so + (q % 2)
        st('s_add_u32 s%d, s%d, 0x%x' % (so, s_n0, (q // 3) * 256 * 9216))
        st('s_add_u32 m0, s%d, 0x%x' % (s_m0b, ((6 + q) % 9) * 8192))
        st('buffer_load_dwordx4 v%d, s[%d:%d], s%d offen lds' % (v_dma[q % 3], S_W1, S_W1 + 3, so), tok=('d2', q))
        if cond:
            st.cond_end()
            st.label('.Lk1_dma26')
        return st

    e.extend(dma1(0))
    e.extend(dma1(1))
    e.extend(adma(1))
    for q in range(2, 9):
        e.extend(dma1(q))
    make_srd(e, S_WR, 6, W_SZ)
    make_srd(e, S_WI, 8, W_SZ)
    WREG = 224
    e('v_cmp_gt_u32 vcc, 289, v%d' % v_tid)
    e('v_lshlrev_b32 v1, 1, v%d' % v_tid)
    e('v_mov_b32 v2, 0x7ffffff0')
    e('v_cndmask_b32 v1, v2, v1, vcc')
    e('v_lshlrev_b32 v%d, 5, v%d' % (v_st[1], v_tid))
    e('v_cndmask_b32 v%d, v2, v%d, vcc' % (v_st[1], v_st[1]))
    e('s_and_b32 s%d, s2, 127' % s_t0)
    e('s_lshr_b32 s%d, s2, 7' % s_t1)
    e('s_lshl_b32 s%d, s%d, 10' % (s_t1, s_t1))
    e('s_add_u32 s%d, s%d, s%d' % (s_t0, s_t0, s_t1))
    e('s_mul_i32 s%d, s%d, 578' % (s_t0, s_t0))
    for i in range(8):
        if i:
            e('s_add_u32 s%d, s%d, %d' % (s_t0, s_t0, 128 * 578))
        e('buffer_load_ushort v%d, v1, s[%d:%d], s%d offen' % (WREG + i, S_WR, S_WR + 3, s_t0))
        e('buffer_load_ushort v%d, v1, s[%d:%d], s%d offen' % (WREG + 8 + i, S_WI, S_WI + 3, s_t0))
    make_srd(e, S_H, 10, H_SZ, H_OFF)
    make_srd(e, S_XF, 10, XF_SZ, XF_OFF)
    make_srd(e, S_WT, 10, XF_SZ, WT_OFF)
    make_srd(e, S_WM, 10, 1024, WM_OFF)
    if STAMP:
        make_srd(e, S_B1, 10, 1 << 20, ST_OFF)
    stamp(e, 0)

    e('s_cmp_ge_u32 s%d, 3' % s_wave)
    e('s_cbranch_scc1 .Lk1_noinit')
    e.cond_begin()
    e('v_lshlrev_b32 v1, 2, v%d' % v_tid)
    e('v_add_u32 v1, 0x%x, v1' % BB)
    e('v_mov_b32 v25, 0')
    e('v_mov_b32 v26, 0x%x' % WMX)
    e('ds_write_b32 v26, v25')
    e('v_cmp_gt_u32 vcc, 144, v%d' % v_tid)
    e('s_and_saveexec_b64 s[%d:%d], vcc' % (s_ex, s_ex + 1))
    e('v_lshlrev_b32 v2, 16, v%d' % v_st[0])
    e('ds_write_b32 v1, v2')
    e('s_mov_b64 exec, s[%d:%d]' % (s_ex, s_ex + 1))
    e.cond_end()
    e.label('.Lk1_noinit')

    for j in range(9):
        e('v_lshlrev_b32 v%d, 16, v%d' % (16 + j, 16 + j))
    e('v_add_f32 v25, v16, v17')
    e('v_add_f32 v26, v18, v19')
    e('v_add_f32 v27, v20, v21')
    e('v_add_f32 v28, v22, v23')
    e('v_add_f32 v25, v25, v26')
    e('v_add_f32 v27, v27, v28')
    e('v_add_f32 v25, v25, v24')
    e('v_add_f32 v25, v25, v27')
    allreduce_wave(e, 25, 26)
    e('v_mul_f32 v25, %s, v25' % fbits(1.0 / 576))
    for j in range(9):
        e('v_sub_f32 v%d, v%d, v25' % (28 + j, 16 + j))
    e('v_mul_f32 v26, v28, v28')
    e('v_mul_f32 v27, v29, v29')
    for j in range(2, 9):
        e('v_fmac_f32 v%d, v%d, v%d' % (26 + (j & 1), 28 + j, 28 + j))
    e('v_add_f32 v26, v26, v27')
    allreduce_wave(e, 26, 27)
    e('v_mul_f32 v26, %s, v26' % fbits(1.0 / 576))
    e('v_cvt_pk_bf16_f32 v25, v25, v26')
    e('v_and_b32 v26, 0xffff0000, v25')
    e('v_lshlrev_b32 v25, 16, v25')
    e('v_add_f32 v26, %s, v26' % fbits(1e-5))
    bf16_round1(e, 26)
    e('v_sqrt_f32 v26, v26')
    bf16_round1(e, 26)
    e('v_rcp_f32 v26, v26')
    for j in range(9):
        e('v_sub_f32 v%d, v%d, v25' % (16 + j, 16 + j))
    for rnd in range(2):
        for p in range(5):
            a, b = 16 + 2 * p, (16 + 2 * p + 1 if p < 4 else 16 + 2 * p)
            e('v_cvt_pk_bf16_f32 v%d, v%d, v%d' % (28 + p, a, b))
        for p in range(5):
            e('v_lshlrev_b32 v%d, 16, v%d' % (16 + 2 * p, 28 + p))
            if p < 4:
                e('v_and_b32 v%d, 0xffff0000, v%d' % (17 + 2 * p, 28 + p))
        if rnd == 0:
            for j in range(9):
                e('v_mul_f32 v%d, v%d, v26' % (16 + j, 16 + j))
    e('v_mov_b32 v25, 0')
    for p in range(5):
        e('v_cvt_pk_f16_f32 v%d, v%d, v%d' % (28 + p, 16 + 2 * p, 17 + 2 * p))
    e('v_mov_b32 v33, 0')
    for ct in range(2):
        for ri in range(2):
            d = 36 + (ct * 2 + ri) * 4
            c = TBASE + (ct * 2 + ri) * 6
            e('v_mfma_f32_16x16x32_f16 %s, v[28:31], %s, 0' % (vr(d, 4), vr(c, 4)))
    for ct in range(2):
        for ri in range(2):
            d = 36 + (ct * 2 + ri) * 4
            c = TBASE + (ct * 2 + ri) * 6
            e('v_mfma_f32_16x16x16_f16 %s, v[32:33], %s, %s' % (vr(d, 4), vr(c + 4, 2), vr(d, 4)))
    e('s_mul_i32 s%d, s%d, %d' % (s_t0, s_wave, TB.XL_ROW))
    e('s_add_u32 s%d, s%d, 0x%x' % (s_t0, s_t0, XL))
    for i in range(8):
        e('v_add_u32 v%d, s%d, v%d' % (TBASE + 48 + i, s_t0, TBASE + 48 + i))
    for ct in range(2):
        dre, dim = 36 + ct * 8, 36 + ct * 8 + 4
        twr, twi = TBASE + 24 + ct * 8, TBASE + 24 + ct * 8 + 4
        for r in range(4):
            e('v_mul_f32 v%d, v%d, v%d' % (24 + r, dre + r, twr + r))
            e('v_mul_f32 v%d, v%d, v%d' % (52 + r, dre + r, twi + r))
        for r in range(4):
            e('v_fma_f32 v%d, -v%d, v%d, v%d' % (24 + r, dim + r, twi + r, 24 + r))
            e('v_fmac_f32 v%d, v%d, v%d' % (52 + r, dim + r, twr + r))
        for r in range(4):
            e('v_cvt_pk_f16_f32 v%d, v%d, v%d' % (16 + 4 * ct + r, 24 + r, 52 + r))
    for ct in range(2):
        for ri in range(2):
            d = 36 + (ct * 2 + ri) * 4
            e('v_mfma_f32_16x16x32_f16 %s, %s, %s, 0' % (vr(d, 4), vr(TBASE + 40 + ri * 4, 4), vr(16 + 4 * ct, 4)))
    for ct in range(2):
        for r in range(4):
            e('ds_write2_b32 v%d, v%d, v%d offset0:0 offset1:1' % (TBASE + 48 + ct * 4 + r, 36 + ct * 8 + r, 36 + ct * 8 + 4 + r))
    stamp(e, 1)

    e('v_lshrrev_b32 v%d, 4, v0' % v_t0)
    e('v_bfe_u32 v%d, v0, 1, 3' % v_t1)
    e('v_xor_b32 v%d, v%d, v%d' % (v_t1, v_t1, v_t0))
    e('v_and_b32 v%d, 15, v0' % v_csa)
    e('v_lshlrev_b32 v%d, 7, v%d' % (v_csa, v_csa))
    e('v_add_u32 v%d, s%d, v%d' % (v_csa, s_m0a, v_csa))
    v_ar0, v_ar1 = v_be, v_bo

    def aread(c, r0, r1):
        st = Stream()
        for kk in range(2):
            for rt in range(2):
                st('ds_read_b128 %s, v%d offset:%d' % (vr(vA(rt, 2 * c + kk), 4), (r0, r1)[kk], (c & 1) * 4096 + rt * 2048), needs=[('a', c)], tok=('ar', c))
        return st

    e('v_lshl_add_u32 v%d, v%d, 4, v%d' % (v_be, v_t1, v_csa))
    e('v_xor_b32 v%d, 4, v%d' % (v_t1, v_t1))
    e('v_lshl_add_u32 v%d, v%d, 4, v%d' % (v_bo, v_t1, v_csa))
    e.extend(aread(0, v_be, v_bo))
    e('s_waitcnt lgkmcnt(0)')
    e.extend(adma(2))
    e('s_barrier')
    e('s_mul_i32 s%d, s2, %d' % (s_t1, XF_ROW))
    for i in range(8):
        e('v_lshl_or_b32 v%d, v%d, 16, v%d' % (60 + i, WREG + 8 + i, WREG + i))
    e('s_cmp_ge_u32 s%d, 5' % s_wave)
    e('s_cbranch_scc1 .Lk1_nor8')
    e.cond_begin()
    e('v_lshlrev_b32 v57, 3, v%d' % v_tid)
    e('v_add_u32 v57, 0x%x, v57' % XL)
    for n in range(8):
        e('ds_read_b64 %s, v57 offset:%d' % (vr(16 + 2 * n, 2), n * TB.XL_ROW))
    e('v_mov_b32 v56, v%d' % v_st[1])
    e('buffer_store_dwordx4 v[60:63], v56, s[%d:%d], s%d offen' % (S_WT, S_WT + 3, s_t1))
    e('buffer_store_dwordx4 v[64:67], v56, s[%d:%d], s%d offen offset:16' % (S_WT, S_WT + 3, s_t1))
    X = radix8(e, 16, 32, s_r2)
    for k1 in range(8):
        x = X[k1]
        c, s = s_tw + 2 * k1, s_tw + 2 * k1 + 1
        e('v_mul_f32 v16, s%d, v%d' % (c, x))
        e('v_mul_f32 v17, s%d, v%d' % (s, x))
        e('v_fma_f32 v16, -v%d, s%d, v16' % (x + 1, s))
        e('v_fma_f32 v17, v%d, s%d, v17' % (x + 1, c))
        e('v_cvt_pk_f16_f32 v%d, v16, v17' % (48 + k1))
    e('buffer_store_dwordx4 v[48:51], v56, s[%d:%d], s%d offen' % (S_XF, S_XF + 3, s_t1))
    e('buffer_store_dwordx4 v[52:55], v56, s[%d:%d], s%d offen offset:16' % (S_XF, S_XF + 3, s_t1))
    for i in range(8):
        e('v_and_b32 v%d, 0x7fff7fff, v%d' % (68 + i, 60 + i))
    for st in (4, 2, 1):
        for i in range(st):
            e('v_pk_max_u16 v%d, v%d, v%d' % (68 + i, 68 + i, 68 + i + st))
    e('v_lshrrev_b32 v69, 16, v68')
    e('v_and_b32 v68, 0xffff, v68')
    e('v_max_u32 v68, v68, v69')
    allreduce_wave(e, 68, 69, 'v_max_u32')
    e('v_mov_b32 v69, 0x%x' % WMX)
    e('s_mov_b64 s[%d:%d], exec' % (s_ex, s_ex + 1))
    e('s_mov_b64 exec, 1')
    e('ds_max_u32 v69, v68')
    e('s_mov_b64 exec, s[%d:%d]' % (s_ex, s_ex + 1))
    e.cond_end()
    e.label('.Lk1_nor8')

    v_ar0, v_ar1 = v_csa, v_tid
    e('v_mov_b32 v%d, v%d' % (v_ar0, v_be))
    e('v_mov_b32 v%d, v%d' % (v_ar1, v_bo))
    e('v_lshrrev_b32 v%d, 4, v0' % v_t0)
    e('v_bfe_u32 v%d, v0, 2, 2' % v_t1)
    e('v_lshl_add_u32 v%d, v%d, 3, v%d' % (v_be, v_t0, v_t1))
    e('v_mul_u32_u24 v%d, 192, v%d' % (v_be, v_be))
    e('v_and_b32 v%d, 3, v0' % v_t1)
    e('v_lshl_add_u32 v%d, v%d, 3, v%d' % (v_be, v_t1, v_be))
    e('v_add_u32 v%d, 0x%x, v%d' % (v_be, BR, v_be))
    e('v_and_b32 v%d, 1, v%d' % (v_t1, v_t0))
    e('v_lshlrev_b32 v%d, 5, v%d' % (v_t1, v_t1))
    e('v_sub_u32 v%d, v%d, v%d' % (v_bo, v_be, v_t1))
    e('v_add_u32 v%d, 32, v%d' % (v_bo, v_bo))
    e('v_add_u32 v%d, v%d, v%d' % (v_be, v_be, v_t1))
    e('s_min_u32 s%d, s%d, 5' % (s_t0, s_wave))
    e('s_and_b32 s%d, s%d, 1' % (s_t1, s_t0))
    e('s_cmp_eq_u32 s%d, 1' % s_t1)
    e('s_cselect_b64 vcc, -1, 0')
    e('s_lshr_b32 s%d, s%d, 1' % (s_t0, s_t0))
    e('s_lshl_b32 s%d, s%d, 6' % (s_t0, s_t0))
    e('v_cndmask_b32 v%d, v%d, v%d, vcc' % (v_t0, v_be, v_bo))
    e('v_add_u32 v%d, s%d, v%d' % (v_t0, s_t0, v_t0))
    v_csr = v_t0
    for i in range(4):
        e('v_mov_b32 v%d, 0x3f803f80' % (vONE + i))
    e('s_mul_i32 s%d, s%d, 9' % (s_t1, s_cb))
    e('s_add_u32 s%d, s%d, s%d' % (s_hp, s_t1, s_par))
    e('s_lshl_b32 s%d, s%d, 9' % (s_hp, s_hp))
    e('s_add_u32 s%d, s%d, 4096' % (s_hs, s_hp))
    e('s_sub_u32 s%d, s%d, 1016' % (s_t0, s_hp))
    e('s_cmp_eq_u32 s%d, 1' % s_par)
    e('s_cselect_b32 s%d, s%d, s%d' % (s_hs, s_t0, s_hs))

    def ring1(k):
        return (k % 12) * 6144

    def ring2(k):
        return ((48 + 3 * k) % 72) * 1024

    state = {'hi': False}

    def sethi(st, hi, regs):
        if state['hi'] != hi:
            for r_ in regs:
                st('v_add_u32 v%d, 0x%x, v%d' % (r_, 36864 if hi else (1 << 32) - 36864, r_))
            state['hi'] = hi

    def bread1(k, t):
        st = Stream()
        base = v_be if t % 2 == 0 else v_bo
        koff = ring1(k) - (36864 if state['hi'] else 0)
        assert 0 <= koff < 60000
        for al in range(2):
            st('ds_read_b64_tr_b16 %s, v%d offset:%d' % (vr(vB(t) + 2 * al, 2), base, koff + al * 768 + (t >> 1) * 64))
        return st

    def csread1(k):
        st = Stream()
        koff = ring1(k) - (36864 if state['hi'] else 0)
        for al in range(2):
            st('ds_read_b64_tr_b16 %s, v%d offset:%d' % (vr(vCSF + 2 * al, 2), v_csr, koff + al * 768))
        return st

    def bread2(k, t):
        st = Stream()
        f = (k & 1) * 3 + t
        ro = ring2(k)
        base, koff = (v_be, ro) if ro < 36864 else (v_bo, ro - 36864)
        for al in range(2):
            st('ds_read_b64_tr_b16 %s, v%d offset:%d' % (vr(vB(f) + 2 * al, 2), base, koff + al * 768 + t * 32))
        return st

    def sync(toks):
        st = Stream()
        st('s_barrier', needs=toks)
        return st

    def d1toks(nstage):
        nq_ = min(-(-nstage * 6 // 8), 14)
        return [('d1', q) for q in range(nq_)]

    def d2toks(nstage):
        nq_ = min(-(-nstage * 3 // 8), 7)
        return [('d2', q) for q in range(nq_)]

    def dma2_setup(st):
        T0, T1 = vCSF, vCSF + 1
        st('s_lshl_b32 s%d, s%d, 6' % (s_t0, s_wave))
        st('s_mov_b32 s%d, 0x2aaab' % s_t1)
        st('s_lshl_b32 s%d, s%d, 5' % (s_so + 2, s_par))
        st('s_add_u32 s%d, s%d, 192' % (s_so + 2, s_so + 2))
        st('s_mul_i32 s%d, s%d, 288' % (s_so + 3, s_par))
        for q in range(3):
            d = v_dma[q]
            st('v_add_u32 v%d, s%d, v0' % (d, s_t0))
            if q:
                st('v_add_u32 v%d, %d, v%d' % (d, q * 512, d))
            st('v_mul_u32_u24 v%d, s%d, v%d' % (T0, s_t1, d))
            st('v_lshrrev_b32 v%d, 20, v%d' % (T0, T0))
            st('v_mul_u32_u24 v%d, 6, v%d' % (T1, T0))
            st('v_sub_u32 v%d, v%d, v%d' % (d, d, T1))
            st('v_lshrrev_b32 v%d, 2, v%d' % (T1, d))
            st('v_mul_u32_u24 v%d, s%d, v%d' % (T1, s_so + 3, T1))
            st('v_lshlrev_b32 v%d, 4, v%d' % (d, d))
            st('v_add_u32 v%d, s%d, v%d' % (d, s_so + 2, d))
            st('v_sub_u32 v%d, v%d, v%d' % (d, d, T1))
            st('v_lshrrev_b32 v%d, 1, v%d' % (T1, T0))
            st('v_xor_b32 v%d, v%d, v%d' % (T1, T1, T0))
            st('v_and_b32 v%d, 4, v%d' % (T1, T1))
            st('v_mul_u32_u24 v%d, 3, v%d' % (T1, T1))
            st('v_xor_b32 v%d, v%d, v%d' % (T0, T0, T1))
            st('v_mul_u32_u24 v%d, 9216, v%d' % (T0, T0))
            st('v_add_u32 v%d, v%d, v%d' % (d, d, T0))

    def last_stage_in_slot1(q):
        return (8 * q + 7) // 6
    pend = []
    for q in range(9, 14):
        pend.append((last_stage_in_slot1(q - 9) + 1, dma1(q)))
    setup_after = None
    for q in range(7):
        rs = (6 + q) % 9
        prev = rs + 9 if rs + 9 <= 13 else rs
        pend.append((min(last_stage_in_slot1(prev), 17) + 1, ('d2', q)))
    stamp(e, 2)
    e.extend(sync(d1toks(2)))
    stamp(e, 3)
    for t in range(6):
        e.extend(bread1(0, t))
    e.extend(csread1(0))
    did_setup = False
    for k in range(18):
        main = Stream()
        fill = Stream()
        if k % 2 == 0 and k // 2 + 1 < 9:
            e.extend(aread(k // 2 + 1, v_ar0, v_ar1))
        if k % 2 == 1:
            if k == 17:
                e.extend(sync(d2toks(4)))
            else:
                e.extend(sync(d1toks(k + 3)))
            while pend and pend[0][0] <= k:
                it = pend.pop(0)[1]
                if isinstance(it, tuple):
                    if not did_setup:
                        su = Stream()
                        did_setup = 'pending'
                    fill.items.append(it)
                else:
                    fill.extend(it)
            c = (k + 1) // 2 + 2
            if c < 9:
                a_ = adma(c)
                a_.items[2].needs = [('ar', c - 2)]
                fill.extend(a_)
        if k + 1 < 18:
            sethi(e, ring1(k + 1) >= 36864, [v_be, v_bo, v_csr])
        main('v_mfma_f32_16x16x32_bf16 %s, %s, %s, %s' % (vr(vCSA, 4), vr(vCSF, 4), vr(vONE, 4), vr(vCSA, 4) if k else '0'))
        if did_setup == 'pending':
            dma2_setup(main)
            did_setup = True
        if k + 1 < 18:
            main.extend(csread1(k + 1))
        if k == 17:
            T0, T1 = vCSF, vCSF + 1
            main('v_lshrrev_b32 v%d, 5, v0' % T0)
            main('v_bfe_u32 v%d, v0, 4, 1' % T1)
            main('v_lshlrev_b32 v%d, 2, v%d' % (T1, T1))
            main('v_lshl_add_u32 v%d, v%d, 4, v%d' % (T0, T0, T1))
            main('v_bfe_u32 v%d, v0, 2, 2' % T1)
            main('v_add_u32 v%d, v%d, v%d' % (T0, T0, T1))
            main('v_mul_u32_u24 v%d, 96, v%d' % (T0, T0))
            main('v_and_b32 v%d, 3, v0' % T1)
            main('v_lshl_add_u32 v%d, v%d, 3, v%d' % (v_be, T1, T0))
            main('v_add_u32 v%d, 0x%x, v%d' % (v_be, BR, v_be))
            main('v_add_u32 v%d, 36864, v%d' % (v_bo, v_be))
        nhead = len(main.items)
        for t in range(6):
            for rt in range(2):
                c = vC1(rt, t)
                main('v_mfma_f32_16x16x32_bf16 %s, %s, %s, %s' % (vr(c, 4), vr(vB(t), 4), vr(vA(rt, k), 4), vr(c, 4) if k else '0'))
            if k + 1 < 18:
                main.extend(bread1(k + 1, t))
            else:
                main.extend(bread2(t // 3, t % 3))
            if t in (1, 3):
                rt = t >> 1
                main('v_mfma_f32_16x16x32_bf16 %s, %s, %s, %s' % (vr(vG(rt), 4), vr(vA(rt, k), 4), vr(vA(rt, k), 4), vr(vG(rt), 4) if k else '0'))
                main('v_mfma_f32_16x16x32_bf16 %s, %s, %s, %s' % (vr(vS(rt), 4), vr(vONE, 4), vr(vA(rt, k), 4), vr(vS(rt), 4) if k else '0'))
        f2 = Stream()
        for it in fill.items:
            if isinstance(it, tuple):
                f2.extend(dma2(it[1]))
            else:
                f2.items.append(it)
        head = Stream(); head.items = main.items[:nhead]
        tail = Stream(); tail.items = main.items[nhead:]
        e.extend(head)
        e.extend(merge_keep(tail, f2))
    stamp(e, 4)

    e('v_lshrrev_b32 v%d, 4, v0' % v_t1)
    e('v_lshlrev_b32 v%d, 4, v%d' % (v_ar0, v_t1))
    e('v_add_u32 v%d, 0x%x, v%d' % (v_ar0, CS, v_ar0))
    v_epa = v_ar0
    e('s_min_u32 s%d, s%d, 5' % (s_t0, s_wave))
    e('s_lshl_b32 s%d, s%d, 6' % (s_t0, s_t0))
    e('v_add_u32 v%d, s%d, v%d' % (v_t0, s_t0, v_epa))
    e('ds_write_b128 v%d, %s' % (v_t0, vr(vCSA, 4)))
    e('v_and_b32 v%d, 3, v0' % v_t0)
    e('v_bfe_u32 v%d, v0, 2, 2' % v_ar1)
    for rt in range(2):
        g_ = vG(rt)
        e('v_cmp_eq_u32 vcc, 1, v%d' % v_t0)
        e('v_cndmask_b32 v%d, v%d, v%d, vcc' % (g_, g_, g_ + 1))
        e('v_cmp_eq_u32 vcc, 2, v%d' % v_t0)
        e('v_cndmask_b32 v%d, v%d, v%d, vcc' % (g_, g_, g_ + 2))
        e('v_cmp_eq_u32 vcc, 3, v%d' % v_t0)
        e('v_cndmask_b32 v%d, v%d, v%d, vcc' % (g_, g_, g_ + 3))
        e('v_cmp_eq_u32 vcc, v%d, v%d' % (v_ar1, v_t1))
        e('v_cndmask_b32 v%d, 0, v%d, vcc' % (v_st[2 * rt + 1], g_))
        e('v_mov_b32 v%d, v%d' % (v_st[2 * rt], vS(rt)))
    e('s_lshl_b32 s%d, s%d, 4' % (s_t0, s_rb))
    e('s_lshl_b32 s%d, s%d, 1' % (s_t1, s_wave))
    e('s_add_u32 s%d, s%d, s%d' % (s_t0, s_t0, s_t1))
    e('s_mul_i32 s%d, s%d, %d' % (s_t0, s_t0, 144 * 1024))
    e('v_lshlrev_b32 v%d, 4, v0' % v_a0)
    e('v_add_u32 v%d, s%d, v%d' % (v_a0, s_t0, v_a0))
    e('v_add_u32 v%d, 0x%x, v%d' % (v_a1, 144 * 1024, v_a0))
    v_k0 = v_ar1
    e('v_mov_b32 v%d, s%d' % (v_k0, s_k0))

    def stats():
        st = Stream()
        for rt in range(2):
            allreduce_rows(st, v_st[2 * rt + 1], v_t0)
        T = vA(0, 0)
        for rt in range(2):
            sm, sq = v_st[2 * rt], v_st[2 * rt + 1]
            t0, t1, t2, t3 = T + 4 * rt, T + 4 * rt + 1, T + 4 * rt + 2, T + 4 * rt + 3
            st('v_mul_f32 v%d, %s, v%d' % (sm, fbits(1.0 / 576), sm))
            st('v_mul_f32 v%d, %s, v%d' % (sq, fbits(1.0 / 576), sq))
            st('v_fma_f32 v%d, -v%d, v%d, v%d' % (sq, sm, sm, sq))
            st('v_max_f32 v%d, 0, v%d' % (sq, sq))
            st('v_cvt_pk_bf16_f32 v%d, v%d, v%d' % (t0, sm, sq))
            st('v_and_b32 v%d, 0xffff0000, v%d' % (t1, t0))
            st('v_lshlrev_b32 v%d, 16, v%d' % (t0, t0))
            st('v_add_f32 v%d, %s, v%d' % (t1, fbits(1e-5), t1))
            bf16_round1(st, t1)
            st('v_sqrt_f32 v%d, v%d' % (t1, t1))
            bf16_round1(st, t1)
            st('v_rcp_f32 v%d, v%d' % (t1, t1))
            st('v_sub_f32 v%d, v%d, v%d' % (sm, sm, t0))
            st('v_mul_f32 v%d, v%d, v%d' % (sm, sm, t1))
            st('v_mul_f32 v%d, v%d, v%d' % (sq, sq, t1))
            st('v_mul_f32 v%d, v%d, v%d' % (sq, sq, t1))
            st('v_cvt_pk_bf16_f32 v%d, v%d, v%d' % (t2, sm, sq))
            st('v_and_b32 v%d, 0xffff0000, v%d' % (t3, t2))
            st('v_lshlrev_b32 v%d, 16, v%d' % (t2, t2))
            st('v_add_f32 v%d, %s, v%d' % (t3, fbits(1e-5), t3))
            bf16_round1(st, t3)
            st('v_sqrt_f32 v%d, v%d' % (t3, t3))
            bf16_round1(st, t3)
            st('v_rcp_f32 v%d, v%d' % (t3, t3))
            st('v_fma_f32 v%d, v%d, v%d, v%d' % (t2, t0, t1, t2))
            st('v_mul_f32 v%d, v%d, v%d' % (sm, t1, t3))
            st('v_mul_f32 v%d, v%d, v%d' % (sq, t2, t3))
        return st

    def epi(accf, tiles, T):
        st = Stream()
        n = len(tiles)
        for i, t in enumerate(tiles):
            st('ds_read_b128 %s, v%d offset:%d' % (vr(T + 8 * i, 4), v_epa, t * 64))
            st('ds_read_b128 %s, v%d offset:%d' % (vr(T + 8 * i + 4, 4), v_epa, 576 + t * 64))
        for rt in range(2):
            a_, c_ = v_st[2 * rt], v_st[2 * rt + 1]
            w_ = T + 8 * n
            A = accf(rt, tiles[0])
            E = range(4 * n)
            cs = lambda r: T + 8 * (r >> 2) + (r & 3)
            bb = lambda r: T + 8 * (r >> 2) + 4 + (r & 3)
            for r in E:
                st('v_fma_f32 v%d, -v%d, v%d, v%d' % (w_ + r, c_, cs(r), bb(r)))
            for r in E:
                st('v_fma_f32 v%d, v%d, v%d, v%d' % (A + r, a_, A + r, w_ + r))
            for r in E:
                st('v_mul_f32 v%d, v%d, v%d' % (w_ + r, A + r, A + r))
            for r in E:
                st('v_fma_f32 v%d, v%d, s%d, v%d' % (w_ + r, w_ + r, s_k1, v_k0))
            for r in E:
                st('v_mul_f32 v%d, v%d, v%d' % (w_ + r, w_ + r, A + r))
            for r in E:
                st('v_exp_f32 v%d, v%d' % (w_ + r, w_ + r))
            for r in E:
                st('v_add_f32 v%d, 1.0, v%d' % (w_ + r, w_ + r))
            for r in E:
                st('v_rcp_f32 v%d, v%d' % (w_ + r, w_ + r))
            for r in E:
                st('v_mul_f32 v%d, v%d, v%d' % (w_ + r, A + r, w_ + r))
            for j in range(2 * n):
                st('v_cvt_pk_bf16_f32 v%d, v%d, v%d' % (A + j, w_ + 2 * j, w_ + 2 * j + 1))
            if n == 2:
                st('buffer_store_dwordx4 %s, v%d, s[%d:%d], s%d offen offset:%d' % (vr(A, 4), (v_a0, v_a1)[rt], S_H, S_H + 3, s_hp, (tiles[0] >> 1) * 1024))
            else:
                st('buffer_store_dwordx2 %s, v%d, s[%d:%d], s%d offen' % (vr(A, 2), (v_a0, v_a1)[rt], S_H, S_H + 3, s_hs))
        return st

    G2 = 4
    stats_items = stats().items
    epis = [epi(vC1, [2 * m, 2 * m + 1], vA(0, 1)).items for m in range(3)]
    c2ONE, c2ACC, c2F = vA(0, 4), vA(1, 4), [vA(0, 5), vA(1, 5)]
    cs2 = Stream()
    cs2('s_mul_i32 s%d, s%d, 0x5556' % (s_t0, s_wave))
    cs2('s_lshr_b32 s%d, s%d, 16' % (s_t0, s_t0))
    cs2('s_mul_i32 s%d, s%d, 3' % (s_t0, s_t0))
    cs2('s_sub_u32 s%d, s%d, s%d' % (s_t0, s_wave, s_t0))
    cs2('s_lshl_b32 s%d, s%d, 5' % (s_t1, s_t0))
    cs2('v_add_u32 v%d, s%d, v%d' % (v_t1, s_t1, v_be))
    cs2('v_add_u32 v%d, s%d, v%d' % (v_t0, s_t1, v_bo))
    for i in range(4):
        cs2('v_mov_b32 v%d, 0x3f803f80' % (c2ONE + i))
    cs2_head = list(cs2.items)

    def cs2read(k):
        st = Stream()
        ro = ring2(k)
        base, koff = (v_t1, ro) if ro < 36864 else (v_t0, ro - 36864)
        for al in range(2):
            st('ds_read_b64_tr_b16 %s, v%d offset:%d' % (vr(c2F[k & 1] + 2 * al, 2), base, koff + al * 768))
        return st

    mains = []
    for sg in range(9):
        pre = Stream()
        knext = 2 * sg + 2
        if sg == 0:
            pre('s_waitcnt lgkmcnt(0)')
            pre('s_barrier')
        if knext < 18 and knext % G2 == 0:
            pre.extend(sync(d2toks(knext + G2)))
        main = Stream()
        for f in range(6):
            k = 2 * sg + f // 3
            t = f % 3
            for rt in range(2):
                c = vC2(rt, t)
                main('v_mfma_f32_16x16x32_bf16 %s, %s, %s, %s' % (vr(c, 4), vr(vB(f), 4), vr(vA(rt, k), 4), vr(c, 4) if k else '0'))
            if k + 2 < 18:
                main.extend(bread2(k + 2, t))
            if sg >= 3 and f % 2 == 1:
                ck = (sg - 3) * 3 + f // 2
                if ck == 0:
                    main.items.extend(cs2_head)
                    main.extend(cs2read(0))
                    main.extend(cs2read(1))
                main('v_mfma_f32_16x16x32_bf16 %s, %s, %s, %s' % (vr(c2ACC, 4), vr(c2F[ck & 1], 4), vr(c2ONE, 4), vr(c2ACC, 4) if ck else '0'))
                if ck + 2 < 18:
                    assert ck + 2 <= 2 * sg + 3
                    main.extend(cs2read(ck + 2))
        mains.append((pre, main))
    epi_items = epis[0] + epis[1] + epis[2]
    sched = {1: stats_items}
    nper = -(-len(epi_items) // 7)
    for i, sg in enumerate(range(2, 9)):
        sched[sg] = epi_items[i * nper:(i + 1) * nper]
    for sg in range(9):
        pre, main = mains[sg]
        e.extend(pre)
        f = Stream()
        f.items = sched.get(sg, [])
        if sg == 0:
            for (_, it) in pend:
                f.extend(dma2(it[1]))
            pend = []
        e.extend(merge_keep(main, f))
    stamp(e, 5)
    e('s_lshl_b32 s%d, s%d, 6' % (s_t0, s_t0))
    e('v_add_u32 v%d, s%d, v%d' % (v_t0, s_t0, v_epa))
    e('ds_write_b128 v%d, %s offset:384' % (v_t0, vr(c2ACC, 4)))
    e('s_waitcnt lgkmcnt(0)')
    e('s_barrier')
    e('s_cmp_lg_u32 s%d, 0' % s_wave)
    e('s_cbranch_scc1 .Lk1_nowm')
    e.cond_begin()
    e('v_mov_b32 v%d, 0x%x' % (v_t0, WMX))
    e('ds_read_b32 v%d, v%d' % (v_t1, v_t0))
    e('s_lshl_b32 s%d, s2, 2' % s_t0)
    e('v_mov_b32 v%d, 0' % v_t0)
    e('buffer_store_dword v%d, v%d, s[%d:%d], s%d offen' % (v_t1, v_t0, S_WM, S_WM + 3, s_t0))
    e.cond_end()
    e.label('.Lk1_nowm')
    e.extend(epi(vC2, [6 - 6, 7 - 6], vA(0, 1)) if False else epi(lambda rt, t: vC2(rt, t - 6), [6, 7], vA(0, 1)))
    e.extend(epi(lambda rt, t: vC2(rt, t - 6), [8], vA(0, 6)))
    stamp(e, 6)
    if STAMP:
        e('s_waitcnt vmcnt(0)')
    stamp(e, 7)
    stamp_store(e, 8, S_B1, s_wave, 0)
    e.label('.Lk1_end')
    e('s_endpgm')
    return e


def merge_keep(main, fill):
    from asmgen import Raw, Label
    chunks = []
    i = 0
    f = fill.items
    while i < len(f):
        it = f[i]
        if (not isinstance(it, (Raw, Label))) and it.mn.startswith('s_cmp'):
            j = i
            while not isinstance(f[j], Label):
                j += 1
            chunks.append(f[i:j + 1])
            i = j + 1
        elif (not isinstance(it, (Raw, Label))) and it.kind == 'salu':
            j = i
            while j < len(f) - 1 and (not isinstance(f[j], (Raw, Label))) and f[j].kind == 'salu':
                j += 1
            chunks.append(f[i:j + 1])
            i = j + 1
        else:
            chunks.append([it])
            i += 1
    out = Stream()
    m = main.items
    n = len(m)
    ci = 0
    for idx, it in enumerate(m):
        out.items.append(it)
        want = (idx + 1) * len(chunks) // max(n, 1)
        while ci < want:
            out.items.extend(chunks[ci])
            ci += 1
    while ci < len(chunks):
        out.items.extend(chunks[ci])
        ci += 1
    return out


def kd(name, vgpr, sgpr, accum):
    return """.section .rodata,"a"
.p2align 6
.amdhsa_kernel %s
  .amdhsa_next_free_vgpr %d
  .amdhsa_next_free_sgpr %d
  .amdhsa_accum_offset %d
  .amdhsa_group_segment_fixed_size 0
  .amdhsa_kernarg_size 88
  .amdhsa_user_sgpr_count 2
  .amdhsa_user_sgpr_kernarg_segment_ptr 1
  .amdhsa_system_sgpr_workgroup_id_x 1
  .amdhsa_float_denorm_mode_32 3
  .amdhsa_float_denorm_mode_16_64 3
.end_amdhsa_kernel
""" % (name, vgpr, sgpr, accum)


HEADER = open('cdna_kernels/%s.s.ref' % NAME).read().split('; Override launch geometry')[0]


def build(kernels):
    out = [HEADER.rstrip('\n')]
    for (name, st, grid, block, lds, vg, sg, ac) in kernels:
        out.append('; @launch kernel=%s grid=(%d,1,1) block=(%d,1,1) lds=%d' % (name, grid, block, lds))
    out.append('.amdgcn_target "amdgcn-amd-amdhsa--gfx950"')
    out.append('.text')
    for (name, st, grid, block, lds, vg, sg, ac) in kernels:
        out.append('.globl %s' % name)
        out.append('.p2align 8')
        out.append('.type %s,@function' % name)
        drop = os.environ.get('DROP')
        if drop:
            import re as _re
            from asmgen import Ins as _Ins
            st.items = [it for it in st.items if not (isinstance(it, _Ins) and _re.search(drop, it.text))]
        out.extend(finalize(st))
    tab = np.concatenate([TB.image(TB.table_k1()), TB.image(TB.table_k2()), TB.image(TB.table_k3()), TB.table_tw8()])
    assert tab.size * 4 == TAB_SZ
    out.append('.p2align 8')
    out.append('.type const_tab,@object')
    out.append('const_tab:')
    for i in range(0, tab.size, 8):
        out.append('.long ' + ','.join('0x%x' % v for v in tab[i:i + 8]))
    out.append('.size const_tab, %d' % TAB_SZ)
    for (name, st, grid, block, lds, vg, sg, ac) in kernels:
        out.append(kd(name, vg, sg, ac))
    return '\n'.join(out) + '\n'


if __name__ == '__main__':
    ks = [('k1_kernel', gen_k1(), 256, 512, 163840, 256, 102, 256)]
    try:
        from gen23 import gen_k2, gen_k3
        ks.append(('k2_kernel', gen_k2(), 256, 256, 147456, 512, 102, 256))
        ks.append(('k3_kernel', gen_k3(), 256, 512, 34816, 168, 102, 168))
    except ImportError:
        pass
    dst = sys.argv[1] if len(sys.argv) > 1 else 'cdna_kernels/%s.s' % NAME
    open(dst, 'w').write(build(ks))
    print('wrote', dst)
```

```python
import sys
import struct
import numpy as np
from asmgen import Stream, merge, finalize
import tables as TB

NAME = 'recurrent_scan__spectral_gfnet__mixer_channel_mlp__prompt'

H_OFF, P_OFF, XF_OFF, WT_OFF, YF_OFF, WM_OFF = 0, 0x1200000, 0x2400000, 0x2700000, 0x2A00000, 0x2D00000
H_SZ = 2048 * 4608 * 2
P_SZ = 4 * 2048 * 576 * 4
XF_ROW = 9344
XF_SZ = 256 * XF_ROW
X_SZ = 2048 * 576 * 2
W_SZ = 2048 * 289 * 2
W1_SZ = 576 * 4608 * 2

T1_OFF = 0
T2_OFF = T1_OFF + 52 * 256
T3_OFF = T2_OFF + 16 * 256
TW8_OFF = T3_OFF + 56 * 256
TAB_SZ = TW8_OFF + 256 * 64


def fbits(x):
    return '0x%08x' % struct.unpack('<I', struct.pack('<f', x))[0]


def vr(base, n=1):
    return 'v%d' % base if n == 1 else 'v[%d:%d]' % (base, base + n - 1)


def ar(base, n=1):
    return 'a%d' % base if n == 1 else 'a[%d:%d]' % (base, base + n - 1)


def sr(base, n=1):
    return 's%d' % base if n == 1 else 's[%d:%d]' % (base, base + n - 1)


def make_srd(e, d, ptr, size, off=0):
    if off:
        e('s_add_u32 s%d, s%d, 0x%x' % (d, ptr, off))
        e('s_addc_u32 s%d, s%d, 0' % (d + 1, ptr + 1))
    else:
        e('s_mov_b32 s%d, s%d' % (d, ptr))
        e('s_mov_b32 s%d, s%d' % (d + 1, ptr + 1))
    e('s_mov_b32 s%d, 0x%x' % (d + 2, size))
    e('s_mov_b32 s%d, 0x20000' % (d + 3))


def table_srd(e, d, tag):
    e('s_getpc_b64 s[%d:%d]' % (d, d + 1))
    e.label('.Lpc_%s' % tag)
    e('s_add_u32 s%d, s%d, const_tab-.Lpc_%s' % (d, d, tag))
    e('s_addc_u32 s%d, s%d, 0' % (d + 1, d + 1))
    e('s_mov_b32 s%d, 0x%x' % (d + 2, TAB_SZ))
    e('s_mov_b32 s%d, 0x20000' % (d + 3))


def allreduce_rows(e, v, t, op='v_add_f32'):
    e('v_mov_b32 v%d, v%d' % (t, v))
    e('v_permlane16_swap_b32 v%d, v%d' % (v, t))
    e('%s v%d, v%d, v%d' % (op, v, v, t))
    e('v_mov_b32 v%d, v%d' % (t, v))
    e('v_permlane32_swap_b32 v%d, v%d' % (v, t))
    e('%s v%d, v%d, v%d' % (op, v, v, t))


def allreduce_wave(e, v, t, op='v_add_f32'):
    for rot in (8, 4, 2, 1):
        e('%s_dpp v%d, v%d, v%d row_ror:%d row_mask:0xf bank_mask:0xf' % (op, v, v, v, rot))
    allreduce_rows(e, v, t, op)


def cadd(e, d, a, b):
    e('v_add_f32 v%d, v%d, v%d' % (d, a, b))
    e('v_add_f32 v%d, v%d, v%d' % (d + 1, a + 1, b + 1))


def csub(e, d, a, b):
    e('v_sub_f32 v%d, v%d, v%d' % (d, a, b))
    e('v_sub_f32 v%d, v%d, v%d' % (d + 1, a + 1, b + 1))


def cadd_mi(e, d, a, b):
    e('v_add_f32 v%d, v%d, v%d' % (d, a, b + 1))
    e('v_sub_f32 v%d, v%d, v%d' % (d + 1, a + 1, b))


def cadd_pi(e, d, a, b):
    e('v_sub_f32 v%d, v%d, v%d' % (d, a, b + 1))
    e('v_add_f32 v%d, v%d, v%d' % (d + 1, a + 1, b))


def radix8(e, a, t, s_r2, inverse=False):
    mi, pi = (cadd_mi, cadd_pi) if not inverse else (cadd_pi, cadd_mi)
    r2 = fbits(0.5 ** 0.5)
    nr2 = fbits(-(0.5 ** 0.5))
    A = [a + 2 * n for n in range(8)]
    U = [t + 2 * n for n in range(4)]
    V = [t + 8 + 2 * n for n in range(4)]
    for n in range(4):
        cadd(e, U[n], A[n], A[n + 4])
        csub(e, V[n], A[n], A[n + 4])
    mi(e, A[4], V[1], V[1])
    pi(e, A[5], V[3], V[3])
    e('v_mul_f32 v%d, %s, v%d' % (V[1], r2, A[4]))
    e('v_mul_f32 v%d, %s, v%d' % (V[1] + 1, r2, A[4] + 1))
    e('v_mul_f32 v%d, %s, v%d' % (V[3], nr2, A[5]))
    e('v_mul_f32 v%d, %s, v%d' % (V[3] + 1, nr2, A[5] + 1))
    S = [A[0], A[1], A[2], A[3]]
    cadd(e, S[0], U[0], U[2])
    csub(e, S[1], U[0], U[2])
    cadd(e, S[2], U[1], U[3])
    csub(e, S[3], U[1], U[3])
    cadd(e, U[0], S[0], S[2])
    csub(e, U[2], S[0], S[2])
    mi(e, U[1], S[1], S[3])
    pi(e, U[3], S[1], S[3])
    S = [A[4], A[5], A[6], A[7]]
    mi(e, S[0], V[0], V[2])
    pi(e, S[1], V[0], V[2])
    cadd(e, S[2], V[1], V[3])
    csub(e, S[3], V[1], V[3])
    cadd(e, V[0], S[0], S[2])
    csub(e, V[2], S[0], S[2])
    mi(e, V[1], S[1], S[3])
    pi(e, V[3], S[1], S[3])
    return [U[0], V[0], U[1], V[1], U[2], V[2], U[3], V[3]]


def bf16_round1(e, v):
    e('v_cvt_pk_bf16_f32 v%d, v%d, v%d' % (v, v, v))
    e('v_lshlrev_b32 v%d, 16, v%d' % (v, v))


import os
STAMP = os.environ.get('STAMP')
PREF = int(os.environ.get('PREF', '0'))
PREF2 = int(os.environ.get('PREF2', '1'))
SC = os.environ.get('SC', ' sc1')
SCX = os.environ.get('SCX', '')
XT_SZ = 289 * 8192
ST_OFF = 0x2E00000


STG = [int(x) for x in os.environ.get('STG', '').split(',') if x]


def stamp(e, idx, base=4, grp=None):
    if not STAMP:
        return
    if STG:
        if grp is None or grp not in STG:
            return
        idx = STG.index(grp)
    elif grp is not None:
        return
    e('s_memtime s[100:101]')
    e('s_waitcnt lgkmcnt(0)')
    e('s_mov_b32 s%d, s100' % (base + idx))


def stamp_entry(e):
    if not STAMP:
        return
    e('s_memtime s[100:101]')
    e('s_waitcnt lgkmcnt(0)')
    e('s_mov_b32 s3, s100')


def stamp_store(e, n, s_ws_srd, s_wave, kidx, base=4, nw=8):
    if not STAMP:
        return
    if os.environ.get('XCC'):
        e('s_getreg_b32 s%d, hwreg(HW_REG_XCC_ID)' % (base + 7))
    e('s_mul_i32 s98, s2, %d' % nw)
    e('s_add_u32 s98, s98, s%d' % s_wave)
    e('s_lshl_b32 s98, s98, 5')
    e('s_add_u32 s98, s98, %d' % (kidx * 65536))
    e('v_mov_b32 v1, 0')
    for i in range(n):
        e('v_mov_b32 v2, s%d' % (base + i - 1))
        e('buffer_store_dword v2, v1, s[%d:%d], s98 offen offset:%d' % (s_ws_srd, s_ws_srd + 3, 4 * i))


def gen_k1():
    e = Stream()
    ALDS = 0
    BR = 65536
    TL = BR + 72 * 1024
    XL = TL + 13 * 1024
    MISC = 162560
    CS, BB, WMX = MISC, MISC + 576, MISC + 1152
    assert XL + 8 * TB.XL_ROW <= MISC
    S_X, S_WR, S_WI, S_W1, S_B1, S_H, S_XF, S_WT, S_TAB = 16, 20, 24, 28, 32, 36, 40, 44, 48
    S_WM = 52
    s_wave, s_rb, s_cb, s_t0, s_t1, s_n0 = 56, 57, 58, 59, 60, 61
    s_par, s_hp, s_hs = 62, 63, 64
    s_n1 = 65
    s_r2 = 66
    s_w3 = 68
    s_xo = 69
    s_m0b = 70
    s_m0a = 71
    s_ex = 72
    s_arow = 74
    s_n2 = 75
    s_tw = 76
    s_so = 92
    S_W2 = 96
    vA = lambda rt, k: 112 + (k * 2 + rt) * 4
    vC1 = lambda rt, t: 64 + ((t >> 1) * 2 + rt) * 8 + (t & 1) * 4
    vC2 = lambda rt, t: (40 + rt * 8 + t * 4) if t < 2 else (56 + rt * 4)
    vB = lambda f: 16 + 4 * f
    v_be, v_bo = 1, 2
    v_dma = [3, 4, 5]
    v_st = [6, 7, 8, 9]
    v_a0, v_a1 = 10, 11
    v_t0, v_t1, v_csa, v_tid = 12, 13, 14, 15
    vG = lambda rt: 40 + rt * 4
    vS = lambda rt: 48 + rt * 4
    vCSA, vCSF = 56, 60
    vONE = 6
    k0 = -2.0 * (2.0 / np.pi) ** 0.5 * np.log2(np.e)

    e.label('k1_kernel')
    e('s_cmp_ge_u32 s2, 256')
    e('s_cbranch_scc1 .Lk1_end')
    stamp_entry(e)
    e('s_load_dwordx4 s[4:7], s[0:1], 0')
    e('s_load_dwordx2 s[8:9], s[0:1], 16')
    e('s_load_dwordx4 s[12:15], s[0:1], 32')
    e('s_load_dwordx2 s[10:11], s[0:1], 80')
    e('s_load_dwordx2 s[%d:%d], s[0:1], 48' % (S_W2, S_W2 + 1))
    table_srd(e, S_TAB, 'k1')
    e('v_mov_b32 v%d, v0' % v_tid)
    e('v_lshrrev_b32 v1, 6, v0')
    e('v_and_b32 v0, 63, v0')
    e('v_readfirstlane_b32 s%d, v1' % s_wave)
    e('s_and_b32 s%d, s2, 7' % s_t0)
    e('s_lshr_b32 s%d, s2, 3' % s_t1)
    e('s_lshl_b32 s%d, s%d, 5' % (s_n2, s_t0))
    e('s_add_u32 s%d, s%d, s%d' % (s_n2, s_n2, s_t1))
    e('s_and_b32 s%d, s%d, 1' % (s_rb, s_t0))
    e('s_lshl_b32 s%d, s%d, 2' % (s_rb, s_rb))
    e('s_and_b32 s%d, s%d, 3' % (s_cb, s_t1))
    e('s_add_u32 s%d, s%d, s%d' % (s_rb, s_rb, s_cb))
    e('s_lshr_b32 s%d, s%d, 1' % (s_cb, s_t0))
    e('s_lshl_b32 s%d, s%d, 3' % (s_cb, s_cb))
    e('s_lshr_b32 s%d, s%d, 2' % (s_t1, s_t1))
    e('s_add_u32 s%d, s%d, s%d' % (s_cb, s_cb, s_t1))
    e('s_mul_i32 s%d, s%d, 288' % (s_n0, s_cb))
    e('s_and_b32 s%d, s%d, 1' % (s_par, s_cb))
    e('s_lshl_b32 s%d, s%d, 5' % (s_n1, s_par))
    e('s_add_u32 s%d, s%d, s%d' % (s_n1, s_n1, s_n0))
    e('s_lshl_b32 s%d, s%d, 13' % (s_m0a, s_wave))
    e('s_lshl_b32 s%d, s%d, 10' % (s_m0b, s_wave))
    e('v_lshlrev_b32 v3, 4, v0')
    e('s_add_u32 m0, s%d, 0x%x' % (s_m0b, TL))
    e('buffer_load_dwordx4 v3, s[%d:%d], s%d offen lds' % (S_TAB, S_TAB + 3, s_m0b), tok=('tl', 0))
    e('s_add_u32 s%d, s%d, 8192' % (s_t0, s_m0b))
    e('s_add_u32 m0, s%d, 0x%x' % (s_m0b, TL + 8192))
    e('buffer_load_dwordx4 v3, s[%d:%d], s%d offen lds' % (S_TAB, S_TAB + 3, s_t0), tok=('tl', 1))
    e('s_add_u32 s%d, s%d, 0x%x' % (s_m0b, s_m0b, BR))
    e('v_lshrrev_b32 v%d, 4, v0' % v_t0)
    e('v_and_b32 v%d, 15, v0' % v_t1)
    F = 192
    xl_items = []
    e('v_lshlrev_b32 v1, 8, v%d' % v_t0)
    e('v_lshl_add_u32 v%d, v%d, 1, v1' % (F + 20, v_t1))
    e('v_lshlrev_b32 v2, 5, v%d' % v_t0)
    e('v_lshl_add_u32 v%d, v%d, 1, v2' % (F + 21, v_t1))
    e('s_lshl_b32 s%d, s%d, 8' % (s_t0, s_wave))
    e('s_add_u32 s%d, s%d, s%d' % (s_t0, s_t0, s_n2))
    e('s_mul_i32 s%d, s%d, 1152' % (s_hp, s_t0))
    make_srd(e, S_X, 4, X_SZ)
    for j in range(8):
        xl_items.append('buffer_load_ushort v%d, v%d, s[%d:%d], s%d offen offset:%d' % (F + j, F + 20, S_X, S_X + 3, s_hp, j * 32))
    xl_items.append('buffer_load_ushort v%d, v%d, s[%d:%d], s%d offen offset:1024' % (F + 8, F + 21, S_X, S_X + 3, s_hp))
    make_srd(e, S_W1, 12, W1_SZ)
    e('s_lshl_b32 s%d, s%d, 5' % (s_t0, s_rb))
    e('s_lshl_b32 s%d, s%d, 2' % (s_t1, s_wave))
    e('s_add_u32 s%d, s%d, s%d' % (s_t0, s_t0, s_t1))
    e('s_mul_i32 s%d, s%d, 1152' % (s_arow, s_t0))
    e('v_lshrrev_b32 v1, 3, v0')
    e('v_lshrrev_b32 v2, 4, v0')
    e('v_xor_b32 v2, v2, v0')
    e('v_and_b32 v2, 7, v2')
    e('v_mul_u32_u24 v1, %d, v1' % (256 * 1152))
    e('v_lshl_add_u32 v%d, v2, 4, v1' % v_a0)
    e('v_xor_b32 v2, 4, v2')
    e('v_lshl_add_u32 v%d, v2, 4, v1' % v_a1)
    e('v_add_u32 v%d, %d, v%d' % (v_a1, 1152, v_a1))

    def adma(c):
        st = Stream()
        for j in range(4):
            so = s_so + 2 + (j >> 1)
            if j % 2 == 0:
                st('s_add_u32 s%d, s%d, 0x%x' % (so, s_arow, (j >> 1) * 2 * 1152 + c * 128))
            st('s_add_u32 m0, s%d, 0x%x' % (s_m0a, ALDS + (c & 1) * 4096 + j * 1024))
            st('buffer_load_dwordx4 v%d, s[%d:%d], s%d offen lds' % ((v_a0, v_a1)[j & 1], S_X, S_X + 3, so), tok=('a', c),
               needs=[('ar', c - 2)] if j == 0 else None)
        return st

    e.extend(adma(0))
    e('s_lshl_b32 s%d, s%d, 6' % (s_t0, s_wave))
    e('s_mov_b32 s%d, 0x15556' % s_t1)
    for q in range(3):
        d = v_dma[q]
        e('v_add_u32 v%d, s%d, v0' % (d, s_t0))
        if q:
            e('v_add_u32 v%d, %d, v%d' % (d, q * 512, d))
        e('v_mul_u32_u24 v1, s%d, v%d' % (s_t1, d))
        e('v_lshrrev_b32 v1, 20, v1')
        e('v_mul_u32_u24 v2, 12, v1')
        e('v_sub_u32 v2, v%d, v2' % d)
        e('v_bfe_u32 v%d, v1, 3, 1' % d)
        e('v_lshlrev_b32 v%d, 1, v%d' % (d, d))
        e('v_xor_b32 v2, v2, v%d' % d)
        e('v_mul_u32_u24 v1, 9216, v1')
        e('v_lshl_add_u32 v%d, v2, 4, v1' % d)

    def dma1(q):
        st = Stream()
        cond = (q == 13)
        if cond:
            st('s_cmp_ge_u32 s%d, 4' % s_wave)
            st('s_cbranch_scc1 .Lk1_dma13')
            st.cond_begin()
        so = s_so + (q % 2)
        st('s_add_u32 s%d, s%d, 0x%x' % (so, s_n1, (q // 3) * 128 * 9216))
        st('s_add_u32 m0, s%d, 0x%x' % (s_m0b, (q % 9) * 8192))
        st('buffer_load_dwordx4 v%d, s[%d:%d], s%d offen lds' % (v_dma[q % 3], S_W1, S_W1 + 3, so), tok=('d1', q))
        if cond:
            st.cond_end()
            st.label('.Lk1_dma13')
        return st

    def dma2(q):
        st = Stream()
        cond = (q == 6)
        if cond:
            st('s_cmp_ge_u32 s%d, 6' % s_wave)
            st('s_cbranch_scc1 .Lk1_dma26')
            st.cond_begin()
        so = s_so + (q % 2)
        st('s_add_u32 s%d, s%d, 0x%x' % (so, s_n0, (q // 3) * 256 * 9216))
        st('s_add_u32 m0, s%d, 0x%x' % (s_m0b, ((6 + q) % 9) * 8192))
        st('buffer_load_dwordx4 v%d, s[%d:%d], s%d offen lds' % (v_dma[q % 3], S_W1, S_W1 + 3, so), tok=('d2', q))
        if cond:
            st.cond_end()
            st.label('.Lk1_dma26')
        return st

    e.extend(dma1(0))
    e.extend(dma1(1))
    e.extend(dma1(2))
    for it in xl_items:
        e(it)
    e.extend(adma(1))
    if PREF:
        e('s_lshr_b32 s%d, s2, 3' % s_t1)
        e('s_and_b32 s%d, s2, 1' % s_t0)
        e('s_lshl_b32 s%d, s%d, 5' % (s_t0, s_t0))
        e('s_add_u32 s%d, s%d, s%d' % (s_t0, s_t0, s_t1))
        e('s_mul_i32 s%d, s%d, 4608' % (s_t0, s_t0))
        e('s_lshl_b32 s%d, s%d, 7' % (s_so, s_wave))
        e('s_add_u32 s%d, s%d, s%d' % (s_t0, s_t0, s_so))
        e('s_add_u32 s%d, s%d, 128' % (s_t0, s_t0))
        e('v_mov_b32 v25, 0x7ffffff0')
        e('v_lshrrev_b32 v1, 2, v0')
        e('v_mul_u32_u24 v1, %d, v1' % (256 * 1152))
        e('v_and_b32 v2, 3, v0')
        e('v_mul_u32_u24 v2, 1152, v2')
        e('v_add_u32 v1, v1, v2')
        e('v_cmp_gt_u32 vcc, 32, v0')
        e('v_cndmask_b32 v1, v25, v1, vcc')
        e('buffer_load_dword v240, v1, s[%d:%d], s%d offen' % (S_X, S_X + 3, s_t0))
        e('v_cmp_lt_u32 vcc, 17, v0')
        e('v_lshlrev_b32 v1, 7, v0')
        e('v_add_u32 v2, %d, v1' % (9216 - 18 * 128))
        e('v_cndmask_b32 v1, v1, v2, vcc')
        e('v_cmp_gt_u32 vcc, 36, v0')
        e('v_cndmask_b32 v1, v25, v1, vcc')
        e('s_add_u32 s%d, s%d, 1' % (s_so, s_wave))
        e('s_lshl_b32 s%d, s%d, 5' % (s_so, s_so))
        e('s_add_u32 s%d, s%d, s%d' % (s_so, s_so, s_t1))
        e('s_mul_i32 s%d, s%d, %d' % (s_so, s_so, 2 * 9216))
        e('s_bfe_u32 s%d, s2, 0x20001' % s_t0)
        e('s_mul_i32 s%d, s%d, 2304' % (s_t0, s_t0))
        e('s_add_u32 s%d, s%d, s%d' % (s_t0, s_t0, s_so))
        e('buffer_load_dword v241, v1, s[%d:%d], s%d offen' % (S_W1, S_W1 + 3, s_t0))
    e('s_lshl_b32 s%d, s%d, 6' % (s_t0, s_n2))
    e('s_add_u32 s%d, s%d, 0x%x' % (s_t0, s_t0, TW8_OFF))
    e('s_add_u32 s%d, s%d, s%d' % (s_ex, S_TAB, s_t0))
    e('s_addc_u32 s%d, s%d, 0' % (s_ex + 1, S_TAB + 1))
    e('s_load_dwordx16 s[%d:%d], s[%d:%d], 0' % (s_tw, s_tw + 15, s_ex, s_ex + 1))
    make_srd(e, S_B1, 14, 9216)
    e('s_lshl_b32 s%d, s%d, 4' % (s_t0, s_par))
    e('v_add_u32 v1, s%d, v%d' % (s_t0, v_tid))
    e('v_subrev_u32 v2, 144, v1')
    e('v_cmp_gt_u32 vcc, 144, v1')
    e('v_cndmask_b32 v1, v2, v1, vcc')
    e('v_lshlrev_b32 v1, 1, v1')
    e('buffer_load_ushort v%d, v1, s[%d:%d], s%d offen' % (F + 22, S_B1, S_B1 + 3, s_n0))
    for q in range(3, 9):
        e.extend(dma1(q))
    make_srd(e, S_WR, 6, W_SZ)
    make_srd(e, S_WI, 8, W_SZ)
    make_srd(e, S_H, 10, H_SZ, H_OFF)
    make_srd(e, S_XF, 10, XT_SZ, XF_OFF)
    make_srd(e, S_WT, 10, XT_SZ, WT_OFF)
    make_srd(e, S_WM, 10, 1024, WM_OFF)
    e('s_mov_b32 s%d, 0x%x' % (S_W2 + 2, 4608 * 1152))
    e('s_mov_b32 s%d, 0x20000' % (S_W2 + 3))
    e('s_mov_b32 s%d, %s' % (s_r2, fbits(0.5 ** 0.5)))
    e('s_mov_b32 s%d, %s' % (s_r2 + 1, fbits(0.5 ** 0.5)))
    e('s_lshl_b32 s%d, s%d, 5' % (s_xo, s_n2))
    if STAMP:
        make_srd(e, S_B1, 10, 1 << 20, ST_OFF)
    stamp(e, 0)

    f = Stream()
    X0, T0_, M_, V_, Q_ = F, F + 9, F + 18, F + 19, F + 20
    for j in range(9):
        f('v_lshlrev_b32 v%d, 16, v%d' % (X0 + j, X0 + j))
    f('v_add_f32 v%d, v%d, v%d' % (M_, X0, X0 + 1))
    f('v_add_f32 v%d, v%d, v%d' % (V_, X0 + 2, X0 + 3))
    f('v_add_f32 v%d, v%d, v%d' % (Q_, X0 + 4, X0 + 5))
    f('v_add_f32 v%d, v%d, v%d' % (Q_ + 1, X0 + 6, X0 + 7))
    f('v_add_f32 v%d, v%d, v%d' % (M_, M_, V_))
    f('v_add_f32 v%d, v%d, v%d' % (Q_, Q_, Q_ + 1))
    f('v_add_f32 v%d, v%d, v%d' % (M_, M_, X0 + 8))
    f('v_add_f32 v%d, v%d, v%d' % (M_, M_, Q_))
    allreduce_wave(f, M_, V_)
    f('v_mul_f32 v%d, %s, v%d' % (M_, fbits(1.0 / 576), M_))
    for j in range(9):
        f('v_sub_f32 v%d, v%d, v%d' % (T0_ + j, X0 + j, M_))
    f('v_mul_f32 v%d, v%d, v%d' % (V_, T0_, T0_))
    f('v_mul_f32 v%d, v%d, v%d' % (Q_, T0_ + 1, T0_ + 1))
    for j in range(2, 9):
        f('v_fmac_f32 v%d, v%d, v%d' % (V_ + (j & 1), T0_ + j, T0_ + j))
    f('v_add_f32 v%d, v%d, v%d' % (V_, V_, Q_))
    allreduce_wave(f, V_, Q_)
    f('v_mul_f32 v%d, %s, v%d' % (V_, fbits(1.0 / 576), V_))
    f('v_cvt_pk_bf16_f32 v%d, v%d, v%d' % (M_, M_, V_))
    f('v_and_b32 v%d, 0xffff0000, v%d' % (V_, M_))
    f('v_lshlrev_b32 v%d, 16, v%d' % (M_, M_))
    f('v_add_f32 v%d, %s, v%d' % (V_, fbits(1e-5), V_))
    bf16_round1(f, V_)
    f('v_sqrt_f32 v%d, v%d' % (V_, V_))
    bf16_round1(f, V_)
    f('v_rcp_f32 v%d, v%d' % (V_, V_))
    TA = F + 23
    f('v_lshlrev_b32 v%d, 4, v0' % TA)
    f('v_add_u32 v%d, 0x%x, v%d' % (TA, TL, TA))
    for q in range(5):
        f('ds_read_b128 %s, v%d offset:%d' % (vr(F + 32 + 4 * q, 4), TA, q * 1024))
    for q in range(2):
        f('ds_read_b128 %s, v%d offset:%d' % (vr(F + 56 + 4 * q, 4), TA, (11 + q) * 1024))
    for j in range(9):
        f('v_sub_f32 v%d, v%d, v%d' % (X0 + j, X0 + j, M_))
    for rnd in range(2):
        for p in range(5):
            a, b = X0 + 2 * p, (X0 + 2 * p + 1 if p < 4 else X0 + 2 * p)
            f('v_cvt_pk_bf16_f32 v%d, v%d, v%d' % (T0_ + p, a, b))
        for p in range(5):
            f('v_lshlrev_b32 v%d, 16, v%d' % (X0 + 2 * p, T0_ + p))
            if p < 4:
                f('v_and_b32 v%d, 0xffff0000, v%d' % (X0 + 1 + 2 * p, T0_ + p))
        if rnd == 0:
            for j in range(9):
                f('v_mul_f32 v%d, v%d, v%d' % (X0 + j, X0 + j, V_))
    A4, A2 = F + 24, F + 28
    f('v_mov_b32 v%d, 0' % (A2 + 1))
    f('v_mov_b32 v%d, 0' % (A2 + 2))
    for p in range(4):
        f('v_cvt_pk_f16_f32 v%d, v%d, v%d' % (A4 + p, X0 + 2 * p, X0 + 1 + 2 * p))
    f('v_cvt_pk_f16_f32 v%d, v%d, v%d' % (A2, X0 + 8, A2 + 1))
    f('v_cvt_pk_f16_f32 v%d, v%d, v%d' % (A2 + 3, X0 + 8, A2 + 1))
    for i in range(4):
        f('v_mfma_f32_16x16x32_f16 %s, %s, %s, 0' % (vr(F + 4 * i, 4), vr(A4, 4), vr(F + 32 + 4 * i, 4)))
    for i in range(4):
        f('v_mfma_f32_16x16x16_f16 %s, %s, %s, %s' % (vr(F + 4 * i, 4), vr(A2 + 2 * (i & 1), 2), vr(F + 48 + (i & 2), 2), vr(F + 4 * i, 4)))
    for q in range(6):
        f('ds_read_b128 %s, v%d offset:%d' % (vr(F + 32 + 4 * q, 4), TA, (5 + q) * 1024))
    f('s_mul_i32 s%d, s%d, %d' % (s_hs, s_wave, TB.XL_ROW))
    f('s_add_u32 s%d, s%d, 0x%x' % (s_hs, s_hs, XL))
    for i in range(8):
        f('v_add_u32 v%d, s%d, v%d' % (F + 56 + i, s_hs, F + 56 + i))
    for ct in range(2):
        dre, dim = F + ct * 8, F + ct * 8 + 4
        twr, twi = F + 32 + ct * 8, F + 32 + ct * 8 + 4
        t1_, t2_ = F + 16, F + 20 - 0
        for r in range(4):
            f('v_mul_f32 v%d, v%d, v%d' % (F + 16 + r, dre + r, twr + r))
            f('v_mul_f32 v%d, v%d, v%d' % (dre + r, dre + r, twi + r))
        for r in range(4):
            f('v_fma_f32 v%d, -v%d, v%d, v%d' % (F + 16 + r, dim + r, twi + r, F + 16 + r))
            f('v_fmac_f32 v%d, v%d, v%d' % (dre + r, dim + r, twr + r))
        for r in range(4):
            f('v_cvt_pk_f16_f32 v%d, v%d, v%d' % (F + 24 + 4 * ct + r, F + 16 + r, dre + r))
    for ct in range(2):
        for ri in range(2):
            f('v_mfma_f32_16x16x32_f16 %s, %s, %s, 0' % (vr(F + (ct * 2 + ri) * 4, 4), vr(F + 48 + ri * 4, 4), vr(F + 24 + 4 * ct, 4)))
    for ct in range(2):
        for r in range(4):
            f('v_cvt_pk_f16_f32 v%d, v%d, v%d' % (F + ct * 8 + r, F + ct * 8 + r, F + ct * 8 + 4 + r))
            f('ds_write_b32 v%d, v%d' % (F + 56 + ct * 4 + r, F + ct * 8 + r), tok=('xlw', 0))
    fftA = f

    bi = Stream()
    bi('s_cmp_ge_u32 s%d, 3' % s_wave)
    bi('s_cbranch_scc1 .Lk1_noinit')
    bi.cond_begin()
    B_ = 176
    bi('s_lshl_b32 s%d, s%d, 6' % (s_t0, s_wave))
    bi('v_add_u32 v%d, s%d, v0' % (B_, s_t0))
    bi('v_cmp_gt_u32 vcc, 144, v%d' % B_)
    bi('v_lshlrev_b32 v%d, 2, v%d' % (B_, B_))
    bi('v_add_u32 v%d, 0x%x, v%d' % (B_, BB, B_))
    bi('v_mov_b32 v%d, 0' % (B_ + 1))
    bi('v_mov_b32 v%d, 0x%x' % (B_ + 2, WMX))
    bi('ds_write_b32 v%d, v%d' % (B_ + 2, B_ + 1))
    bi('s_and_saveexec_b64 s[%d:%d], vcc' % (s_ex, s_ex + 1))
    bi('v_lshlrev_b32 v%d, 16, v%d' % (B_ + 1, F + 22))
    bi('ds_write_b32 v%d, v%d' % (B_, B_ + 1))
    bi('s_mov_b64 exec, s[%d:%d]' % (s_ex, s_ex + 1))
    bi.cond_end()
    bi.label('.Lk1_noinit')

    G_ = 224
    r8 = Stream()
    r8('s_lshl_b32 s%d, s%d, 8' % (s_t0, s_wave))
    r8('v_lshl_add_u32 v%d, v0, 2, s%d' % (G_ + 24, s_t0))
    r8('v_add_u32 v%d, 0x%x, v%d' % (G_ + 24, XL, G_ + 24))
    for n in range(8):
        r8('ds_read_b32 v%d, v%d offset:%d' % (G_ + 16 + n, G_ + 24, n * TB.XL_ROW))
    for n in range(8):
        r8('v_cvt_f32_f16 v%d, v%d' % (G_ + 2 * n, G_ + 16 + n))
        r8('v_cvt_f32_f16_sdwa v%d, v%d dst_sel:DWORD dst_unused:UNUSED_PAD src0_sel:WORD_1' % (G_ + 2 * n + 1, G_ + 16 + n))
    X = radix8(r8, G_, G_ + 16, s_r2)
    for k1 in range(8):
        x = X[k1]
        c, s = s_tw + 2 * k1, s_tw + 2 * k1 + 1
        t_ = G_ + 2 * k1
        r8('v_mul_f32 v%d, s%d, v%d' % (t_, c, x))
        r8('v_mul_f32 v%d, s%d, v%d' % (t_ + 1, s, x))
        r8('v_mul_f32 v%d, s%d, v%d' % (x, s, x + 1))
        r8('v_mul_f32 v%d, s%d, v%d' % (x + 1, c, x + 1))
        r8('v_sub_f32 v%d, v%d, v%d' % (t_, t_, x))
        r8('v_add_f32 v%d, v%d, v%d' % (t_ + 1, t_ + 1, x + 1))
        r8('v_cvt_pk_f16_f32 v%d, v%d, v%d' % (G_ + 16 + k1, t_, t_ + 1))
    r8('s_lshl_b32 s%d, s%d, 6' % (s_t0, s_wave))
    r8('v_add_u32 v%d, s%d, v0' % (G_ + 24, s_t0))
    r8('v_cmp_gt_u32 vcc, 289, v%d' % (G_ + 24))
    r8('v_mov_b32 v%d, 0x7ffffff0' % (G_ + 25))
    r8('v_lshlrev_b32 v%d, 13, v%d' % (G_ + 24, G_ + 24))
    r8('v_cndmask_b32 v%d, v%d, v%d, vcc' % (G_ + 24, G_ + 25, G_ + 24))
    r8('buffer_store_dwordx4 %s, v%d, s[%d:%d], s%d offen%s' % (vr(G_ + 16, 4), G_ + 24, S_XF, S_XF + 3, s_xo, SCX))
    r8('buffer_store_dwordx4 %s, v%d, s[%d:%d], s%d offen offset:16%s' % (vr(G_ + 20, 4), G_ + 24, S_XF, S_XF + 3, s_xo, SCX))

    def touches(which):
        st = Stream()
        T0 = 250
        if which == 0:
            st('s_mul_i32 s%d, s%d, 41' % (s_t0, s_wave))
            st('v_add_u32 v%d, s%d, v0' % (T0, s_t0))
            st('v_cmp_gt_u32 vcc, 41, v0')
            st('v_lshlrev_b32 v%d, 7, v%d' % (T0, T0))
            st('v_mov_b32 v%d, 0x7ffffff0' % (T0 + 1))
            st('v_cndmask_b32 v%d, v%d, v%d, vcc' % (T0 + 1, T0 + 1, T0))
            st('s_bfe_u32 s%d, s2, 0x20001' % s_t0)
            st('s_lshl_b32 s%d, s%d, 5' % (s_t0, s_t0))
            st('s_lshr_b32 s%d, s2, 3' % s_t1)
            st('s_add_u32 s%d, s%d, s%d' % (s_t0, s_t0, s_t1))
            st('s_mul_i32 s%d, s%d, 41472' % (s_t0, s_t0))
            st('buffer_load_dword v%d, v%d, s[%d:%d], s%d offen' % (T0 + 2, T0 + 1, S_W2, S_W2 + 3, s_t0))
            st('v_cmp_gt_u32 vcc, 6, v0')
            st('v_lshlrev_b32 v%d, 7, v0' % T0)
            st('v_mov_b32 v%d, 0x7ffffff0' % (T0 + 1))
            st('v_min_u32 v%d, 576, v%d' % (T0, T0))
            st('v_cndmask_b32 v%d, v%d, v%d, vcc' % (T0 + 1, T0 + 1, T0))
            st('s_and_b32 s%d, s%d, 127' % (s_t0, s_n2))
            st('s_lshr_b32 s%d, s%d, 7' % (s_t1, s_n2))
            st('s_lshl_b32 s%d, s%d, 3' % (s_t1, s_t1))
            st('s_add_u32 s%d, s%d, s%d' % (s_t1, s_t1, s_wave))
            st('s_lshl_b32 s%d, s%d, 7' % (s_t1, s_t1))
            st('s_add_u32 s%d, s%d, s%d' % (s_t0, s_t0, s_t1))
            st('s_mul_i32 s%d, s%d, 578' % (s_t0, s_t0))
            st('buffer_load_ushort v%d, v%d, s[%d:%d], s%d offen' % (T0 + 3, T0 + 1, S_WR, S_WR + 3, s_t0))
            st('buffer_load_ushort v%d, v%d, s[%d:%d], s%d offen' % (T0 + 4, T0 + 1, S_WI, S_WI + 3, s_t0))
            st('s_cmp_ge_u32 s2, 8')
            st('s_cbranch_scc1 .Lk1_notab')
            st.cond_begin()
            st('s_lshl_b32 s%d, s%d, 13' % (s_t0, s_wave))
            st('s_add_u32 s%d, s%d, 0x%x' % (s_t0, s_t0, T2_OFF))
            st('v_lshlrev_b32 v%d, 7, v0' % T0)
            st('buffer_load_dword v%d, v%d, s[%d:%d], s%d offen' % (T0 + 5, T0, S_TAB, S_TAB + 3, s_t0))
            st.cond_end()
            st.label('.Lk1_notab')
        return st

    e('v_lshrrev_b32 v%d, 4, v0' % v_t0)
    e('v_bfe_u32 v%d, v0, 1, 3' % v_t1)
    e('v_xor_b32 v%d, v%d, v%d' % (v_t1, v_t1, v_t0))
    e('v_and_b32 v%d, 15, v0' % v_csa)
    e('v_lshlrev_b32 v%d, 7, v%d' % (v_csa, v_csa))
    e('v_add_u32 v%d, s%d, v%d' % (v_csa, s_m0a, v_csa))

    def aread(c, r0, r1):
        st = Stream()
        for kk in range(2):
            for rt in range(2):
                st('ds_read_b128 %s, v%d offset:%d' % (vr(vA(rt, 2 * c + kk), 4), (r0, r1)[kk], (c & 1) * 4096 + rt * 2048), needs=[('a', c)], tok=('ar', c))
        return st

    e('v_lshl_add_u32 v%d, v%d, 4, v%d' % (v_be, v_t1, v_csa))
    e('v_xor_b32 v%d, 4, v%d' % (v_t1, v_t1))
    e('v_lshl_add_u32 v%d, v%d, 4, v%d' % (v_bo, v_t1, v_csa))

    v_ar0, v_ar1 = v_csa, v_tid
    e('v_mov_b32 v%d, v%d' % (v_ar0, v_be))
    e('v_mov_b32 v%d, v%d' % (v_ar1, v_bo))
    e('v_lshrrev_b32 v%d, 4, v0' % v_t0)
    e('v_bfe_u32 v%d, v0, 2, 2' % v_t1)
    e('v_lshl_add_u32 v%d, v%d, 3, v%d' % (v_be, v_t0, v_t1))
    e('v_mul_u32_u24 v%d, 192, v%d' % (v_be, v_be))
    e('v_and_b32 v%d, 3, v0' % v_t1)
    e('v_lshl_add_u32 v%d, v%d, 3, v%d' % (v_be, v_t1, v_be))
    e('v_add_u32 v%d, 0x%x, v%d' % (v_be, BR + 8192, v_be))
    e('v_and_b32 v%d, 1, v%d' % (v_t1, v_t0))
    e('v_lshlrev_b32 v%d, 5, v%d' % (v_t1, v_t1))
    e('v_sub_u32 v%d, v%d, v%d' % (v_bo, v_be, v_t1))
    e('v_add_u32 v%d, 32, v%d' % (v_bo, v_bo))
    e('v_add_u32 v%d, v%d, v%d' % (v_be, v_be, v_t1))
    e('v_subrev_u32 v%d, 8192, v%d' % (v_be, v_be))
    e('v_subrev_u32 v%d, 8192, v%d' % (v_bo, v_bo))
    e('s_min_u32 s%d, s%d, 5' % (s_t0, s_wave))
    e('s_and_b32 s%d, s%d, 1' % (s_t1, s_t0))
    e('s_cmp_eq_u32 s%d, 1' % s_t1)
    e('s_cselect_b64 vcc, -1, 0')
    e('s_lshr_b32 s%d, s%d, 1' % (s_t0, s_t0))
    e('s_lshl_b32 s%d, s%d, 6' % (s_t0, s_t0))
    e('v_cndmask_b32 v%d, v%d, v%d, vcc' % (v_t0, v_be, v_bo))
    e('v_add_u32 v%d, s%d, v%d' % (v_t0, s_t0, v_t0))
    v_csr = v_t0
    e('v_lshrrev_b32 v6, 5, v0')
    e('v_bfe_u32 v7, v0, 4, 1')
    e('v_lshlrev_b32 v7, 2, v7')
    e('v_lshl_add_u32 v6, v6, 4, v7')
    e('v_bfe_u32 v7, v0, 2, 2')
    e('v_add_u32 v6, v6, v7')
    e('v_mul_u32_u24 v6, 96, v6')
    e('v_and_b32 v7, 3, v0')
    e('v_lshl_add_u32 v%d, v7, 3, v6' % v_t1)
    e('v_add_u32 v%d, 0x%x, v%d' % (v_t1, BR + 36864, v_t1))
    v_b2 = v_t1
    for i in range(4):
        e('v_mov_b32 v%d, 0x3f803f80' % (vONE + i))
    e('s_mul_i32 s%d, s%d, 0x5556' % (s_w3, s_wave))
    e('s_lshr_b32 s%d, s%d, 16' % (s_w3, s_w3))
    e('s_mul_i32 s%d, s%d, 3' % (s_w3, s_w3))
    e('s_sub_u32 s%d, s%d, s%d' % (s_w3, s_wave, s_w3))

    ring1 = lambda k: (k % 12) * 6144
    ring2 = lambda k: ((48 + 3 * k) % 72) * 1024
    HI = 36864
    wst = {v_be: 0, v_bo: 0, v_csr: 0, v_b2: 1}

    def based(st, reg, ro):
        w_ = 1 if ro >= HI else 0
        if wst[reg] != w_:
            st('v_add_u32 v%d, 0x%x, v%d' % (reg, (HI if w_ else (1 << 32) - HI), reg))
            wst[reg] = w_
        return ro - w_ * HI

    def fread(st, p, al):
        f_ = p % 6
        if p < 108:
            k, t = divmod(p, 6)
            reg = (v_be, v_bo)[t & 1]
            off = based(st, reg, ring1(k)) + al * 768 + (t >> 1) * 64
        else:
            k, t = divmod(p - 108, 3)
            reg = v_b2
            off = based(st, reg, ring2(k)) + al * 768 + t * 32
        st('ds_read_b64_tr_b16 %s, v%d offset:%d' % (vr(vB(f_) + 2 * al, 2), reg, off))

    def csread1(st, k):
        off = based(st, v_csr, ring1(k))
        for al in range(2):
            st('ds_read_b64_tr_b16 %s, v%d offset:%d' % (vr(vCSF + 2 * al, 2), v_csr, off + al * 768))

    def toks_for(p):
        if p < 108:
            nq_ = min(-(-(p // 6 + 1) * 6 // 8), 14)
            return [('d1', q) for q in range(nq_)]
        nq_ = min(-(-((p - 108) // 3 + 1) * 3 // 8), 7)
        return [('d1', q) for q in range(14)] + [('d2', q) for q in range(nq_)]

    def mf(p, rt):
        if p < 108:
            k, t = divmod(p, 6)
            c = vC1(rt, t)
        else:
            k, t = divmod(p - 108, 3)
            c = vC2(rt, t)
        return 'v_mfma_f32_16x16x32_bf16 %s, %s, %s, %s' % (vr(c, 4), vr(vB(p % 6), 4), vr(vA(rt, k), 4), vr(c, 4) if k else '0')

    def dma2_setup(st):
        T0, T1 = vCSF, vCSF + 1
        st('s_lshl_b32 s%d, s%d, 6' % (s_t0, s_wave))
        st('s_mov_b32 s%d, 0x2aaab' % s_t1)
        st('s_lshl_b32 s%d, s%d, 5' % (s_so + 2, s_par))
        st('s_add_u32 s%d, s%d, 192' % (s_so + 2, s_so + 2))
        st('s_mul_i32 s%d, s%d, 288' % (s_so + 3, s_par))
        for q in range(3):
            d = v_dma[q]
            st('v_add_u32 v%d, s%d, v0' % (d, s_t0))
            if q:
                st('v_add_u32 v%d, %d, v%d' % (d, q * 512, d))
            st('v_mul_u32_u24 v%d, s%d, v%d' % (T0, s_t1, d))
            st('v_lshrrev_b32 v%d, 20, v%d' % (T0, T0))
            st('v_mul_u32_u24 v%d, 6, v%d' % (T1, T0))
            st('v_sub_u32 v%d, v%d, v%d' % (d, d, T1))
            st('v_lshrrev_b32 v%d, 2, v%d' % (T1, d))
            st('v_mul_u32_u24 v%d, s%d, v%d' % (T1, s_so + 3, T1))
            st('v_lshlrev_b32 v%d, 4, v%d' % (d, d))
            st('v_add_u32 v%d, s%d, v%d' % (d, s_so + 2, d))
            st('v_sub_u32 v%d, v%d, v%d' % (d, d, T1))
            st('v_lshrrev_b32 v%d, 1, v%d' % (T1, T0))
            st('v_xor_b32 v%d, v%d, v%d' % (T1, T1, T0))
            st('v_and_b32 v%d, 4, v%d' % (T1, T1))
            st('v_mul_u32_u24 v%d, 3, v%d' % (T1, T1))
            st('v_xor_b32 v%d, v%d, v%d' % (T0, T0, T1))
            st('v_mul_u32_u24 v%d, 9216, v%d' % (T0, T0))
            st('v_add_u32 v%d, v%d, v%d' % (d, d, T0))

    last1 = lambda q: (8 * q + 7) // 6
    pend = [(last1(q - 9) + 1, 'd1', q) for q in range(9, 14)]
    for q in range(7):
        rs = (6 + q) % 9
        prev = rs + 9 if rs + 9 <= 13 else rs
        pend.append((min(last1(prev), 17) + 1, 'd2', q))

    v_epa, v_k1 = v_ar0, v_ar1

    def endpass1(st):
        st('v_lshrrev_b32 v%d, 4, v0' % v_be)
        st('v_lshlrev_b32 v%d, 4, v%d' % (v_epa, v_be))
        st('v_add_u32 v%d, 0x%x, v%d' % (v_epa, CS, v_epa))
        st('s_min_u32 s%d, s%d, 5' % (s_t0, s_wave))
        st('s_lshl_b32 s%d, s%d, 6' % (s_t0, s_t0))
        st('v_add_u32 v%d, s%d, v%d' % (v_t0, s_t0, v_epa))
        st('ds_write_b128 v%d, %s' % (v_t0, vr(vCSA, 4)), tok=('csw', 0))
        st('v_and_b32 v%d, 3, v0' % v_t0)
        st('v_bfe_u32 v%d, v0, 2, 2' % v_bo)
        for rt in range(2):
            g_ = vG(rt)
            st('v_cmp_eq_u32 vcc, 1, v%d' % v_t0)
            st('v_cndmask_b32 v%d, v%d, v%d, vcc' % (g_, g_, g_ + 1))
            st('v_cmp_eq_u32 vcc, 2, v%d' % v_t0)
            st('v_cndmask_b32 v%d, v%d, v%d, vcc' % (g_, g_, g_ + 2))
            st('v_cmp_eq_u32 vcc, 3, v%d' % v_t0)
            st('v_cndmask_b32 v%d, v%d, v%d, vcc' % (g_, g_, g_ + 3))
            st('v_cmp_eq_u32 vcc, v%d, v%d' % (v_bo, v_be))
            st('v_cndmask_b32 v%d, 0, v%d, vcc' % (v_st[2 * rt + 1], g_))
            st('v_mov_b32 v%d, v%d' % (v_st[2 * rt], vS(rt)))

    def stats():
        st = Stream()
        st('s_lshl_b32 s%d, s%d, 4' % (s_t0, s_rb))
        st('s_lshl_b32 s%d, s%d, 1' % (s_t1, s_wave))
        st('s_add_u32 s%d, s%d, s%d' % (s_t0, s_t0, s_t1))
        st('s_mul_i32 s%d, s%d, %d' % (s_t0, s_t0, 144 * 1024))
        st('v_lshlrev_b32 v%d, 4, v0' % v_a0)
        st('v_add_u32 v%d, s%d, v%d' % (v_a0, s_t0, v_a0))
        st('v_add_u32 v%d, 0x%x, v%d' % (v_a1, 144 * 1024, v_a0))
        st('s_mul_i32 s%d, s%d, 9' % (s_t1, s_cb))
        st('s_add_u32 s%d, s%d, s%d' % (s_hp, s_t1, s_par))
        st('s_lshl_b32 s%d, s%d, 9' % (s_hp, s_hp))
        st('s_add_u32 s%d, s%d, 4096' % (s_hs, s_hp))
        st('s_sub_u32 s%d, s%d, 1016' % (s_t0, s_hp))
        st('s_cmp_eq_u32 s%d, 1' % s_par)
        st('s_cselect_b32 s%d, s%d, s%d' % (s_hs, s_t0, s_hs))
        st('v_mov_b32 v%d, %s' % (v_k1, fbits(k0 * 0.044715)))
        for rt in range(2):
            allreduce_rows(st, v_st[2 * rt + 1], v_t0)
        for rt in range(2):
            sm, sq = v_st[2 * rt], v_st[2 * rt + 1]
            t0, t1, t2, t3 = v_t0, v_be, v_bo, v_dma[0]
            st('v_mul_f32 v%d, %s, v%d' % (sm, fbits(1.0 / 576), sm))
            st('v_mul_f32 v%d, %s, v%d' % (sq, fbits(1.0 / 576), sq))
            st('v_fma_f32 v%d, -v%d, v%d, v%d' % (sq, sm, sm, sq))
            st('v_max_f32 v%d, 0, v%d' % (sq, sq))
            st('v_cvt_pk_bf16_f32 v%d, v%d, v%d' % (t0, sm, sq))
            st('v_and_b32 v%d, 0xffff0000, v%d' % (t1, t0))
            st('v_lshlrev_b32 v%d, 16, v%d' % (t0, t0))
            st('v_add_f32 v%d, %s, v%d' % (t1, fbits(1e-5), t1))
            bf16_round1(st, t1)
            st('v_sqrt_f32 v%d, v%d' % (t1, t1))
            bf16_round1(st, t1)
            st('v_rcp_f32 v%d, v%d' % (t1, t1))
            st('v_sub_f32 v%d, v%d, v%d' % (sm, sm, t0))
            st('v_mul_f32 v%d, v%d, v%d' % (sm, sm, t1))
            st('v_mul_f32 v%d, v%d, v%d' % (sq, sq, t1))
            st('v_mul_f32 v%d, v%d, v%d' % (sq, sq, t1))
            st('v_cvt_pk_bf16_f32 v%d, v%d, v%d' % (t2, sm, sq))
            st('v_and_b32 v%d, 0xffff0000, v%d' % (t3, t2))
            st('v_lshlrev_b32 v%d, 16, v%d' % (t2, t2))
            st('v_add_f32 v%d, %s, v%d' % (t3, fbits(1e-5), t3))
            bf16_round1(st, t3)
            st('v_sqrt_f32 v%d, v%d' % (t3, t3))
            bf16_round1(st, t3)
            st('v_rcp_f32 v%d, v%d' % (t3, t3))
            st('v_fma_f32 v%d, v%d, v%d, v%d' % (t2, t0, t1, t2))
            st('v_mul_f32 v%d, v%d, v%d' % (sm, t1, t3))
            st('v_mul_f32 v%d, v%d, v%d' % (sq, t2, t3))
        return st

    def epi(accf, tiles, T):
        st = Stream()
        n = len(tiles)
        for i, t in enumerate(tiles):
            st('ds_read_b128 %s, v%d offset:%d' % (vr(T + 8 * i, 4), v_epa, t * 64))
            st('ds_read_b128 %s, v%d offset:%d' % (vr(T + 8 * i + 4, 4), v_epa, 576 + t * 64))
        for rt in range(2):
            a_, c_ = v_st[2 * rt], v_st[2 * rt + 1]
            w_ = T + 8 * n
            A = accf(rt, tiles[0])
            E = range(4 * n)
            cs = lambda r: T + 8 * (r >> 2) + (r & 3)
            bb = lambda r: T + 8 * (r >> 2) + 4 + (r & 3)
            for r in E:
                st('v_fma_f32 v%d, -v%d, v%d, v%d' % (w_ + r, c_, cs(r), bb(r)))
            for r in E:
                st('v_fmac_f32 v%d, v%d, v%d' % (w_ + r, a_, A + r))
            for r in E:
                st('v_mul_f32 v%d, v%d, v%d' % (A + r, w_ + r, w_ + r))
            for r in E:
                st('v_fmaak_f32 v%d, v%d, v%d, %s' % (A + r, v_k1, A + r, fbits(k0)))
            for r in E:
                st('v_mul_f32 v%d, v%d, v%d' % (A + r, A + r, w_ + r))
            for r in E:
                st('v_exp_f32 v%d, v%d' % (A + r, A + r))
            for r in E:
                st('v_add_f32 v%d, 1.0, v%d' % (A + r, A + r))
            for r in E:
                st('v_rcp_f32 v%d, v%d' % (A + r, A + r))
            for r in E:
                st('v_mul_f32 v%d, v%d, v%d' % (w_ + r, A + r, w_ + r))
            for j in range(2 * n):
                st('v_cvt_pk_bf16_f32 v%d, v%d, v%d' % (A + j, w_ + 2 * j, w_ + 2 * j + 1))
            if n == 2:
                st('buffer_store_dwordx4 %s, v%d, s[%d:%d], s%d offen offset:%d%s' % (vr(A, 4), (v_a0, v_a1)[rt], S_H, S_H + 3, s_hp, (tiles[0] >> 1) * 1024, SC))
            else:
                st('buffer_store_dwordx2 %s, v%d, s[%d:%d], s%d offen%s' % (vr(A, 2), (v_a0, v_a1)[rt], S_H, S_H + 3, s_hs, SC))
        return st

    WREG = vA(0, 6)

    def wloads():
        st = Stream()
        T0 = vA(0, 3)
        st('s_lshl_b32 s%d, s%d, 6' % (s_t0, s_wave))
        st('v_add_u32 v%d, s%d, v0' % (T0, s_t0))
        st('v_cmp_gt_u32 vcc, 289, v%d' % T0)
        st('v_mov_b32 v%d, 0x7ffffff0' % (T0 + 1))
        st('v_lshlrev_b32 v%d, 1, v%d' % (T0 + 2, T0))
        st('v_cndmask_b32 v%d, v%d, v%d, vcc' % (T0 + 2, T0 + 1, T0 + 2))
        st('v_lshlrev_b32 v%d, 13, v%d' % (T0 + 3, T0))
        st('v_cndmask_b32 v%d, v%d, v%d, vcc' % (T0 + 3, T0 + 1, T0 + 3))
        st('s_and_b32 s%d, s%d, 127' % (s_t0, s_n2))
        st('s_lshr_b32 s%d, s%d, 7' % (s_t1, s_n2))
        st('s_lshl_b32 s%d, s%d, 10' % (s_t1, s_t1))
        st('s_add_u32 s%d, s%d, s%d' % (s_t0, s_t0, s_t1))
        st('s_mul_i32 s%d, s%d, 578' % (s_tw, s_t0))
        for i in range(8):
            if i:
                st('s_add_u32 s%d, s%d, %d' % (s_tw, s_tw, 128 * 578))
            st('buffer_load_ushort v%d, v%d, s[%d:%d], s%d offen' % (WREG + i, T0 + 2, S_WR, S_WR + 3, s_tw))
            st('buffer_load_ushort v%d, v%d, s[%d:%d], s%d offen' % (WREG + 8 + i, T0 + 2, S_WI, S_WI + 3, s_tw))
        return st

    def wstore(st):
        vo = vA(0, 3) + 3
        for i in range(8):
            st('v_lshl_or_b32 v%d, v%d, 16, v%d' % (WREG + i, WREG + 8 + i, WREG + i))
        st('buffer_store_dwordx4 %s, v%d, s[%d:%d], s%d offen%s' % (vr(WREG, 4), vo, S_WT, S_WT + 3, s_xo, SCX))
        st('buffer_store_dwordx4 %s, v%d, s[%d:%d], s%d offen offset:16%s' % (vr(WREG + 4, 4), vo, S_WT, S_WT + 3, s_xo, SCX))
        M = WREG + 8
        for i in range(8):
            st('v_and_b32 v%d, 0x7fff7fff, v%d' % (M + i, WREG + i))
        for s_ in (4, 2, 1):
            for i in range(s_):
                st('v_pk_max_u16 v%d, v%d, v%d' % (M + i, M + i, M + i + s_))
        st('v_lshrrev_b32 v%d, 16, v%d' % (M + 1, M))
        st('v_and_b32 v%d, 0xffff, v%d' % (M, M))
        st('v_max_u32 v%d, v%d, v%d' % (M, M, M + 1))
        allreduce_wave(st, M, M + 1, 'v_max_u32')
        st('v_mov_b32 v%d, 0x%x' % (M + 1, WMX))
        st('s_mov_b64 exec, 1')
        st('ds_max_u32 v%d, v%d' % (M + 1, M))
        st('s_mov_b64 exec, -1')

    c2ONE, c2ACC, c2F = vA(0, 4), vA(1, 4), [vA(0, 5), vA(1, 5)]
    v_c2 = v_t0

    def cs2read(st, k):
        off = based(st, v_c2, ring2(k))
        for al in range(2):
            st('ds_read_b64_tr_b16 %s, v%d offset:%d' % (vr(c2F[k & 1] + 2 * al, 2), v_c2, off + al * 768))

    GRP, D = 12, 5
    stamp(e, 2)
    e.extend(aread(0, v_ar0, v_ar1))
    e.extend(adma(2))
    e('s_barrier', needs=toks_for(GRP + D) + [('tl', 0), ('tl', 1)])
    stamp(e, 3)
    for p in range(D):
        fread(e, p, 0)
        fread(e, p, 1)
    csread1(e, 0)
    epi_items = epi(vC1, [0, 1], vA(0, 0)).items + epi(vC1, [2, 3], vA(0, 0)).items + epi(vC1, [4, 5], vA(0, 0)).items
    ne = len(epi_items)
    did_setup = False
    for g in range(14):
        p0, p1 = g * GRP, min((g + 1) * GRP, 162)
        fill = Stream()
        stamp(e, 0, grp=g)
        if g < 8:
            e.extend(aread(g + 1, v_ar0, v_ar1))
        if g == 9:
            stamp(e, 4)
            endpass1(e)
        if g > 0:
            extra = [('csw', 0)] if g == 10 else ([('xlw', 0)] if g == 4 else [])
            e('s_barrier', needs=toks_for(min(p1 + D, 161)) + extra)
        setup_now = False
        while pend and pend[0][0] <= 2 * g and g > 0:
            _, kind, q = pend.pop(0)
            if kind == 'd2' and not did_setup:
                setup_now = True
                did_setup = True
            fill.extend(dma1(q) if kind == 'd1' else dma2(q))
        if g + 3 < 9:
            fill.extend(adma(g + 3))
        if g < 4:
            nA = len(fftA.items)
            fill.items.extend(fftA.items[g * nA // 4:(g + 1) * nA // 4])
        if g == 1:
            fill.extend(bi)
        if g in (4, 5):
            nR = len(r8.items)
            fill.items.extend(r8.items[(g - 4) * nR // 2:(g - 3) * nR // 2])
        if g == 6 and PREF2:
            fill.extend(touches(0))
        if g == 9:
            fill.extend(stats())
        if g == 11:
            fill.extend(wloads())
        if g >= 10:
            lo, hi = {10: (0, 28), 11: (28, 52), 12: (52, 84), 13: (84, 100)}[g]
            fill.items.extend(epi_items[ne * lo // 100: ne * hi // 100])
        main = Stream()
        head = Stream()
        for p in range(p0, p1):
            if p < 108 and p % 6 == 0:
                k = p // 6
                tgt = head if (setup_now and p == p0) else main
                tgt('v_mfma_f32_16x16x32_bf16 %s, %s, %s, %s' % (vr(vCSA, 4), vr(vCSF, 4), vr(vONE, 4), vr(vCSA, 4) if k else '0'))
                if setup_now and p == p0:
                    dma2_setup(head)
                if k + 1 < 18:
                    csread1(main, k + 1)
            main(mf(p, 0))
            if p + D < 162:
                fread(main, p + D, 0)
            main(mf(p, 1))
            if p + D < 162:
                fread(main, p + D, 1)
            if p < 108 and p % 6 in (1, 3):
                k, rt = p // 6, (p % 6) >> 1
                main('v_mfma_f32_16x16x32_bf16 %s, %s, %s, %s' % (vr(vG(rt), 4), vr(vA(rt, k), 4), vr(vA(rt, k), 4), vr(vG(rt), 4) if k else '0'))
                main('v_mfma_f32_16x16x32_bf16 %s, %s, %s, %s' % (vr(vS(rt), 4), vr(vONE, 4), vr(vA(rt, k), 4), vr(vS(rt), 4) if k else '0'))
            if p >= 132:
                i0, i1 = (p - 132) * 18 // 30, (p - 131) * 18 // 30
                for ck in range(i0, i1):
                    if ck == 0:
                        main('s_lshl_b32 s%d, s%d, 5' % (s_so + 2, s_w3))
                        main('v_add_u32 v%d, s%d, v%d' % (v_c2, s_so + 2, v_b2))
                        wst[v_c2] = wst[v_b2]
                        for i in range(4):
                            main('v_mov_b32 v%d, 0x3f803f80' % (c2ONE + i))
                        cs2read(main, 0)
                        cs2read(main, 1)
                    main('v_mfma_f32_16x16x32_bf16 %s, %s, %s, %s' % (vr(c2ACC, 4), vr(c2F[ck & 1], 4), vr(c2ONE, 4), vr(c2ACC, 4) if ck else '0'))
                    if ck + 2 < 18:
                        assert ck + 2 <= (min(p1 + D, 161) - 108) // 3
                        cs2read(main, ck + 2)
        e.extend(head)
        e.extend(merge_keep(main, fill))
    stamp(e, 5)
    e('s_lshl_b32 s%d, s%d, 6' % (s_t0, s_w3))
    e('v_add_u32 v%d, s%d, v%d' % (v_t0, s_t0, v_epa))
    e('ds_write_b128 v%d, %s offset:384' % (v_t0, vr(c2ACC, 4)))
    wstore(e)
    e('s_waitcnt lgkmcnt(0)')
    e('s_barrier')
    e('s_cmp_lg_u32 s%d, 0' % s_wave)
    e('s_cbranch_scc1 .Lk1_nowm')
    e.cond_begin()
    e('v_mov_b32 v%d, 0x%x' % (v_t0, WMX))
    e('ds_read_b32 v%d, v%d' % (v_t1, v_t0))
    e('s_lshl_b32 s%d, s2, 2' % s_t0)
    e('v_mov_b32 v%d, 0' % v_t0)
    e('buffer_store_dword v%d, v%d, s[%d:%d], s%d offen' % (v_t1, v_t0, S_WM, S_WM + 3, s_t0))
    e.cond_end()
    e.label('.Lk1_nowm')
    e.extend(epi(lambda rt, t: vC2(rt, t - 6), [6, 7], vA(0, 0)))
    e.extend(epi(lambda rt, t: vC2(rt, t - 6), [8], vA(0, 8)))
    stamp(e, 6)
    stamp_store(e, 8, S_B1, s_wave, 0)
    e.label('.Lk1_end')
    e('s_endpgm')
    return e


def merge_keep(main, fill):
    from asmgen import Raw, Label
    chunks = []
    i = 0
    f = fill.items
    while i < len(f):
        it = f[i]
        if (not isinstance(it, (Raw, Label))) and it.mn.startswith('s_cmp'):
            j = i
            while not isinstance(f[j], Label):
                j += 1
            chunks.append(f[i:j + 1])
            i = j + 1
        elif (not isinstance(it, (Raw, Label))) and it.kind == 'salu':
            j = i
            while j < len(f) - 1 and (not isinstance(f[j], (Raw, Label))) and f[j].kind == 'salu':
                j += 1
            chunks.append(f[i:j + 1])
            i = j + 1
        else:
            chunks.append([it])
            i += 1
    out = Stream()
    m = main.items
    n = len(m)
    ci = 0
    for idx, it in enumerate(m):
        out.items.append(it)
        want = (idx + 1) * len(chunks) // max(n, 1)
        while ci < want:
            out.items.extend(chunks[ci])
            ci += 1
    while ci < len(chunks):
        out.items.extend(chunks[ci])
        ci += 1
    return out


def kd(name, vgpr, sgpr, accum):
    return """.section .rodata,"a"
.p2align 6
.amdhsa_kernel %s
  .amdhsa_next_free_vgpr %d
  .amdhsa_next_free_sgpr %d
  .amdhsa_accum_offset %d
  .amdhsa_group_segment_fixed_size 0
  .amdhsa_kernarg_size 88
  .amdhsa_user_sgpr_count 2
  .amdhsa_user_sgpr_kernarg_segment_ptr 1
  .amdhsa_system_sgpr_workgroup_id_x 1
  .amdhsa_float_denorm_mode_32 3
  .amdhsa_float_denorm_mode_16_64 3
.end_amdhsa_kernel
""" % (name, vgpr, sgpr, accum)


HEADER = open('cdna_kernels/%s.s.ref' % NAME).read().split('; Override launch geometry')[0]


def build(kernels):
    out = [HEADER.rstrip('\n')]
    for (name, st, grid, block, lds, vg, sg, ac) in kernels:
        out.append('; @launch kernel=%s grid=(%d,1,1) block=(%d,1,1) lds=%d' % (name, grid, block, lds))
    out.append('.amdgcn_target "amdgcn-amd-amdhsa--gfx950"')
    out.append('.text')
    for (name, st, grid, block, lds, vg, sg, ac) in kernels:
        out.append('.globl %s' % name)
        out.append('.p2align 8')
        out.append('.type %s,@function' % name)
        drop = os.environ.get('DROP')
        if drop:
            import re as _re
            from asmgen import Ins as _Ins
            st.items = [it for it in st.items if not (isinstance(it, _Ins) and _re.search(drop, it.text))]
        out.extend(finalize(st))
    tab = np.concatenate([TB.image(TB.table_k1()), TB.image(TB.table_k2()), TB.image(TB.table_k3()), TB.table_tw8()])
    assert tab.size * 4 == TAB_SZ
    out.append('.p2align 8')
    out.append('.type const_tab,@object')
    out.append('const_tab:')
    for i in range(0, tab.size, 8):
        out.append('.long ' + ','.join('0x%x' % v for v in tab[i:i + 8]))
    out.append('.size const_tab, %d' % TAB_SZ)
    for (name, st, grid, block, lds, vg, sg, ac) in kernels:
        out.append(kd(name, vg, sg, ac))
    return '\n'.join(out) + '\n'


if __name__ == '__main__':
    ks = [('k1_kernel', gen_k1(), 256, 512, 163840, 256, 102, 256)]
    try:
        from gen23 import gen_k2, gen_k3
        ks.append(('k2_kernel', gen_k2(), 256, 512, 163840, 256, 102, 256))
        ks.append(('k3_kernel', gen_k3(), 256, 512, 53760, 168, 102, 168))
    except ImportError:
        pass
    dst = sys.argv[1] if len(sys.argv) > 1 else 'cdna_kernels/%s.s' % NAME
    open(dst, 'w').write(build(ks))
    print('wrote', dst)
```

```python
import numpy as np
from asmgen import Stream
import tables as TB
from gen import *

W2_SZ = 4608 * 576 * 2
SCP = os.environ.get('SCP', ' sc1')
SCY = os.environ.get('SCY', '')
PROW = 2304


def wscale(e, S_WM, v, t, neg):
    e('v_max_u32 v%d, v%d, v%d' % (v, v, v + 1))
    e('v_max_u32 v%d, v%d, v%d' % (v + 2, v + 2, v + 3))
    e('v_max_u32 v%d, v%d, v%d' % (v, v, v + 2))
    allreduce_wave(e, v, t, 'v_max_u32')
    e('v_lshlrev_b32 v%d, 16, v%d' % (v, v))
    e('v_frexp_exp_i32_f32 v%d, v%d' % (v, v))
    if neg:
        e('v_sub_u32 v%d, 0, v%d' % (v, v))
    e('v_ldexp_f32 v%d, 1.0, v%d' % (v, v))


def cmul_regs(e, ore, oim, dre, dim, twr, twi):
    for r in range(4):
        e('v_mul_f32 v%d, v%d, v%d' % (ore + r, dre + r, twr + r))
        e('v_mul_f32 v%d, v%d, v%d' % (oim + r, dre + r, twi + r))
    for r in range(4):
        e('v_fma_f32 v%d, -v%d, v%d, v%d' % (ore + r, dim + r, twi + r, ore + r))
        e('v_fmac_f32 v%d, v%d, v%d' % (oim + r, dim + r, twr + r))


def gen_k2():
    e = Stream()
    EX = 122880
    FX, FW = 147456, 147456 + 8192
    S_H, S_W2, S_P, S_XF, S_YF, S_WT, S_WM, S_TAB, S_ST = 16, 20, 24, 28, 32, 36, 40, 44, 48
    s_wave, s_ks, s_rb, s_cb, s_t0, s_t1 = 56, 57, 58, 59, 60, 61
    s_b0 = 62
    s_m0b = 63
    s_a0 = 64
    s_a1 = 65
    s_p0 = 66
    s_kh = 67
    s_col = 68
    s_so = 70
    s_rg = 74
    v_be, v_bo = 1, 2
    v_dma = [3, 4, 5]
    v_exw, v_exr = 6, 7
    v_l16 = 8
    v_t0, v_t1 = 9, 10
    v_ya, v_wa, v_sc, v_xl, v_yl = 11, 12, 13, 14, 15
    vB = lambda f: 16 + 4 * f
    vC1 = lambda rt, t: 64 + (t * 2 + rt) * 4
    vC2 = lambda rt, t: 40 + (t * 2 + rt) * 4
    vA = lambda rt, k: 112 + (k * 2 + rt) * 4

    e.label('k2_kernel')
    e('s_cmp_ge_u32 s2, 256')
    e('s_cbranch_scc1 .Lk2_end')
    stamp_entry(e)
    e('s_load_dwordx2 s[4:5], s[0:1], 48')
    e('s_load_dwordx2 s[10:11], s[0:1], 80')
    table_srd(e, S_TAB, 'k2')
    e('v_lshrrev_b32 v1, 6, v0')
    e('v_and_b32 v0, 63, v0')
    e('v_readfirstlane_b32 s%d, v1' % s_wave)
    e('s_and_b32 s%d, s2, 7' % s_t0)
    e('s_lshr_b32 s%d, s2, 3' % s_t1)
    e('s_lshl_b32 s%d, s%d, 5' % (s_col, s_t0))
    e('s_add_u32 s%d, s%d, s%d' % (s_col, s_col, s_t1))
    e('s_lshl_b32 s%d, s%d, 5' % (s_col, s_col))
    e('s_lshl_b32 s%d, s%d, 2' % (s_col + 1, s_t0))
    e('s_add_u32 s%d, s%d, s%d' % (s_col + 1, s_col + 1, s_t1))
    e('s_cmp_eq_u32 s2, 32')
    e('s_cselect_b32 s%d, 32, s%d' % (s_col + 1, s_col + 1))
    e('s_add_u32 s%d, s%d, 256' % (s_col + 1, s_col + 1))
    e('s_lshl_b32 s%d, s%d, 5' % (s_col + 1, s_col + 1))
    e('s_lshr_b32 s%d, s%d, 1' % (s_ks, s_t0))
    e('s_and_b32 s%d, s%d, 1' % (s_rb, s_t0))
    e('s_lshl_b32 s%d, s%d, 3' % (s_rb, s_rb))
    e('s_and_b32 s%d, s%d, 7' % (s_cb, s_t1))
    e('s_add_u32 s%d, s%d, s%d' % (s_rb, s_rb, s_cb))
    e('s_lshr_b32 s%d, s%d, 3' % (s_cb, s_t1))
    e('s_mul_i32 s%d, s%d, %d' % (s_b0, s_ks, 1152 * 1152))
    e('s_mul_i32 s%d, s%d, 288' % (s_t0, s_cb))
    e('s_add_u32 s%d, s%d, s%d' % (s_b0, s_b0, s_t0))
    e('s_and_b32 s%d, s%d, 3' % (s_rg, s_wave))
    e('s_lshr_b32 s%d, s%d, 2' % (s_kh, s_wave))
    e('s_lshl_b32 s%d, s%d, 3' % (s_t0, s_rb))
    e('s_lshl_b32 s%d, s%d, 1' % (s_t1, s_rg))
    e('s_add_u32 s%d, s%d, s%d' % (s_t0, s_t0, s_t1))
    e('s_mul_i32 s%d, s%d, 144' % (s_a0, s_t0))
    e('s_mul_i32 s%d, s%d, 36' % (s_t1, s_ks))
    e('s_add_u32 s%d, s%d, s%d' % (s_a0, s_a0, s_t1))
    e('s_mul_i32 s%d, s%d, 18' % (s_t1, s_kh))
    e('s_add_u32 s%d, s%d, s%d' % (s_a0, s_a0, s_t1))
    e('s_lshl_b32 s%d, s%d, 10' % (s_a0, s_a0))
    e('s_add_u32 s%d, s%d, %d' % (s_a1, s_a0, 144 * 1024))
    e('s_add_u32 s%d, s%d, s%d' % (s_t0, s_t0, s_kh))
    e('s_lshl_b32 s%d, s%d, 7' % (s_t1, s_ks))
    e('s_add_u32 s%d, s%d, s%d' % (s_t0, s_t0, s_t1))
    e('s_mul_i32 s%d, s%d, 36' % (s_p0, s_t0))
    e('s_mul_i32 s%d, s%d, 9' % (s_t1, s_cb))
    e('s_add_u32 s%d, s%d, s%d' % (s_p0, s_p0, s_t1))
    e('s_lshl_b32 s%d, s%d, 10' % (s_p0, s_p0))
    e('s_lshl_b32 s%d, s%d, 10' % (s_m0b, s_wave))
    e('v_lshlrev_b32 v%d, 4, v0' % v_l16)
    make_srd(e, S_H, 10, H_SZ, H_OFF)
    make_srd(e, S_XF, 10, XT_SZ, XF_OFF)
    make_srd(e, S_WT, 10, XT_SZ, WT_OFF)

    def fft_dma(st, scol, tag, FX=FX, FW=FW):
        st('s_lshl_b32 s%d, s%d, 8' % (s_so + 2, scol))
        st('s_add_u32 s%d, s%d, s%d' % (s_so + 2, s_so + 2, s_m0b))
        st('s_add_u32 m0, s%d, 0x%x' % (s_m0b, FX))
        st('buffer_load_dwordx4 v%d, s[%d:%d], s%d offen lds' % (v_l16, S_XF, S_XF + 3, s_so + 2), tok=(tag, 0))
        st('s_add_u32 m0, s%d, 0x%x' % (s_m0b, FW))
        st('buffer_load_dwordx4 v%d, s[%d:%d], s%d offen lds' % (v_l16, S_WT, S_WT + 3, s_so + 2), tok=(tag, 1))

    def aload(k):
        st = Stream()
        for rt in range(2):
            so = (s_a0, s_a1)[rt]
            if k >= 4 and k % 4 == 0:
                st('s_add_u32 s%d, s%d, 4096' % (so, so))
            st('buffer_load_dwordx4 %s, v%d, s[%d:%d], s%d offen offset:%d' % (vr(vA(rt, k), 4), v_l16, S_H, S_H + 3, so, (k % 4) * 1024))
        return st

    fft_dma(e, s_col, 'f1')
    e('s_cmp_gt_u32 s2, 32')
    e('s_cbranch_scc1 .Lk2_nod2')
    e.cond_begin()
    fft_dma(e, s_col + 1, 'f2', EX, EX + 8192)
    e.cond_end()
    e.label('.Lk2_nod2')
    TB2 = 96
    for q in range(4):
        e('s_movk_i32 s%d, 0x%x' % (s_t1, T2_OFF + q * 1024))
        e('buffer_load_dwordx4 %s, v%d, s[%d:%d], s%d offen' % (vr(TB2 + 4 * q, 4), v_l16, S_TAB, S_TAB + 3, s_t1))
    make_srd(e, S_WM, 10, 1024, WM_OFF)
    e('buffer_load_dwordx4 v[92:95], v%d, s[%d:%d], 0 offen' % (v_l16, S_WM, S_WM + 3))
    e.extend(aload(0))
    make_srd(e, S_W2, 4, W2_SZ)

    def dma_setup(st, upr, swz):
        st('s_lshl_b32 s%d, s%d, 6' % (s_t0, s_wave))
        st('s_mov_b32 s%d, 0x%x' % (s_t1, 0x15556 if upr == 12 else 0x2aaab))
        for q in range(3):
            d = v_dma[q]
            st('v_add_u32 v%d, s%d, v0' % (d, s_t0))
            if q:
                st('v_add_u32 v%d, %d, v%d' % (d, q * 512, d))
            st('v_mul_u32_u24 v%d, s%d, v%d' % (v_t0, s_t1, d))
            st('v_lshrrev_b32 v%d, 20, v%d' % (v_t0, v_t0))
            st('v_mul_u32_u24 v%d, %d, v%d' % (v_t1, upr, v_t0))
            st('v_sub_u32 v%d, v%d, v%d' % (d, d, v_t1))
            if swz:
                st('v_bfe_u32 v%d, v%d, 2, 1' % (v_t1, v_t0))
                st('v_lshlrev_b32 v%d, 1, v%d' % (v_t1, v_t1))
                st('v_xor_b32 v%d, v%d, v%d' % (d, d, v_t1))
            st('v_lshlrev_b32 v%d, 4, v%d' % (d, d))
            st('v_bfe_u32 v%d, v%d, 5, 1' % (v_t1, v_t0))
            st('v_mul_u32_u24 v%d, %d, v%d' % (v_t1, 576 * 1152, v_t1))
            st('v_add_u32 v%d, v%d, v%d' % (d, d, v_t1))
            st('v_lshrrev_b32 v%d, 6, v%d' % (v_t1, v_t0))
            st('v_and_b32 v%d, 31, v%d' % (v_t0, v_t0))
            st('v_lshl_add_u32 v%d, v%d, 5, v%d' % (v_t0, v_t1, v_t0))
            st('v_mul_u32_u24 v%d, 1152, v%d' % (v_t0, v_t0))
            st('v_add_u32 v%d, v%d, v%d' % (d, d, v_t0))

    dma_setup(e, 12, True)

    def bdma(q):
        st = Stream()
        if q == 27:
            dma_setup(st, 6, False)
        cond = (q == 40)
        if cond:
            st('s_cmp_ge_u32 s%d, 4' % s_wave)
            st('s_cbranch_scc1 .Lk2_dma40')
            st.cond_begin()
        so = s_so + (q % 2)
        if q < 27:
            st('s_add_u32 s%d, s%d, 0x%x' % (so, s_b0, (q // 3) * 64 * 1152))
        else:
            st('s_add_u32 s%d, s%d, 0x%x' % (so, s_b0, ((q - 27) // 3) * 128 * 1152 + 192))
        st('s_add_u32 m0, s%d, 0x%x' % (s_m0b, (q % 15) * 8192))
        st('buffer_load_dwordx4 v%d, s[%d:%d], s%d offen lds' % (v_dma[q % 3], S_W2, S_W2 + 3, so), tok=('d', q))
        if cond:
            st.cond_end()
            st.label('.Lk2_dma40')
        return st

    nq = [0]
    na = [1]

    def issue_upto(st, ka, unit_lim):
        while True:
            did = False
            for _ in range(2 if nq[0] % 3 == 0 else 1):
                if nq[0] < 41 and (nq[0] + 1) * 8 <= unit_lim:
                    st.extend(bdma(nq[0]))
                    nq[0] += 1
                    did = True
            if na[0] < min(ka, 18):
                st.extend(aload(na[0]))
                na[0] += 1
                did = True
            if not did:
                break

    issue_upto(e, 3, 32)
    make_srd(e, S_YF, 10, XF_SZ, YF_OFF)
    make_srd(e, S_P, 10, P_SZ, P_OFF)
    if STAMP:
        make_srd(e, S_ST, 10, 1 << 20, ST_OFF)
    stamp(e, 0)
    e('v_lshrrev_b32 v%d, 4, v0' % v_t0)
    e('v_and_b32 v%d, 15, v0' % v_t1)
    e('v_lshl_add_u32 v%d, v%d, 6, v%d' % (v_xl, v_t0, v_t1))
    e('s_lshl_b32 s%d, s%d, 2' % (s_t0, s_wave))
    e('v_lshlrev_b32 v%d, 5, v%d' % (v_xl, v_xl))
    e('v_add_u32 v%d, s%d, v%d' % (v_xl, s_t0, v_xl))
    e('v_add_u32 v%d, 0x%x, v%d' % (v_xl, FX, v_xl))
    e('v_lshrrev_b32 v%d, 5, v0' % v_wa)
    e('v_lshlrev_b32 v%d, 4, v%d' % (v_wa, v_wa))
    e('v_add_u32 v%d, v%d, v%d' % (v_wa, v_wa, v_t1))
    e('v_lshlrev_b32 v%d, 3, v%d' % (v_wa, v_wa))
    e('v_add_u32 v%d, s%d, v%d' % (v_wa, s_wave, v_wa))
    e('v_lshlrev_b32 v%d, 5, v%d' % (v_wa, v_wa))
    e('v_and_b32 v%d, 1, v%d' % (v_t0, v_t0))
    e('v_lshl_add_u32 v%d, v%d, 4, v%d' % (v_wa, v_t0, v_wa))
    e('v_add_u32 v%d, 0x%x, v%d' % (v_wa, FW, v_wa))
    e('v_add_u32 v%d, s%d, v%d' % (v_yl, s_m0b, v_l16))
    e('v_lshrrev_b32 v%d, 5, v%d' % (v_ya, v_yl))
    e('v_mul_u32_u24 v%d, %d, v%d' % (v_ya, XF_ROW, v_ya))
    e('v_and_b32 v%d, 16, v%d' % (v_t0, v_l16))
    e('v_add_u32 v%d, v%d, v%d' % (v_ya, v_ya, v_t0))
    e('v_add_u32 v%d, 0x%x, v%d' % (v_yl, FX, v_yl))

    def fft_col(st):
        F_re, F_im, twr, twi = TB2, TB2 + 4, TB2 + 8, TB2 + 12
        A, Dre, Dim, Tre, Tim, Wp, Wr, Wi = 40, 44, 48, 52, 56, 60, 64, 68
        for r in range(4):
            st('ds_read_b32 v%d, v%d offset:%d' % (A + r, v_xl, r * 512))
        st('ds_read_b128 %s, v%d' % (vr(Wp, 4), v_wa))
        for half in range(2):
            st('v_mfma_f32_16x16x32_f16 %s, %s, %s, 0' % (vr(Dre, 4), vr(A, 4), vr(F_re, 4)))
            st('v_mfma_f32_16x16x32_f16 %s, %s, %s, 0' % (vr(Dim, 4), vr(A, 4), vr(F_im, 4)))
            if half == 0:
                for r in range(4):
                    st('v_lshlrev_b32 v%d, 16, v%d' % (Wr + r, Wp + r))
                    st('v_and_b32 v%d, 0xffff0000, v%d' % (Wi + r, Wp + r))
            cmul_regs(st, Tre, Tim, Dre, Dim, twr, twi)
            for r in range(4):
                st('v_cvt_pk_f16_f32 v%d, v%d, v%d' % (A + r, Tre + r, Tim + r))
            st('v_mfma_f32_16x16x32_f16 %s, %s, %s, 0' % (vr(Dre, 4), vr(F_re, 4), vr(A, 4)))
            st('v_mfma_f32_16x16x32_f16 %s, %s, %s, 0' % (vr(Dim, 4), vr(F_im, 4), vr(A, 4)))
            if half == 0:
                for r in range(4):
                    st('v_mul_f32 v%d, v%d, v%d' % (Wr + r, v_sc, Wr + r))
                    st('v_mul_f32 v%d, v%d, v%d' % (Wi + r, v_sc, Wi + r))
                cmul_regs(st, Tre, Tim, Dre, Dim, Wr, Wi)
                for r in range(4):
                    st('v_cvt_pk_f16_f32 v%d, v%d, v%d' % (A + r, Tim + r, Tre + r))
            else:
                for r in range(4):
                    st('v_cvt_pk_f16_f32 v%d, v%d, v%d' % (A + r, Dim + r, Dre + r))
        for r in range(4):
            st('ds_write_b32 v%d, v%d offset:%d' % (v_xl, A + r, r * 512))

    def fft_out(st, scol):
        st('ds_read_b128 v[40:43], v%d' % v_yl)
        st('buffer_store_dwordx4 v[40:43], v%d, s[%d:%d], s%d offen%s' % (v_ya, S_YF, S_YF + 3, scol, SCY))

    f1 = Stream()
    wscale(f1, S_WM, 92, v_sc, True)
    f1('v_mov_b32 v%d, v92' % v_sc)
    f1('s_barrier', needs=[('f1', 0), ('f1', 1), ('f2', 0), ('f2', 1)])
    fft_col(f1)
    ld = Stream()
    LA, LB = int(os.environ.get('K2LA', '6')), int(os.environ.get('K2LB', '6'))
    issue_upto(ld, LA, LB * 12)
    e.extend(merge_keep(f1, ld))
    e('s_waitcnt lgkmcnt(0)')
    e('s_barrier')
    fft_out(e, s_col)
    e('s_cmp_gt_u32 s2, 32')
    e('s_cbranch_scc1 .Lk2_noc2')
    e.cond_begin()
    for r_ in (v_xl, v_wa, v_yl):
        e('v_subrev_u32 v%d, %d, v%d' % (r_, FX - EX, r_))
    fft_col(e)
    e('s_waitcnt lgkmcnt(0)')
    e('s_barrier')
    fft_out(e, s_col + 1)
    e.cond_end()
    e.label('.Lk2_noc2')
    stamp(e, 1)

    e('v_lshrrev_b32 v%d, 2, v0' % v_t0)
    e('v_mul_u32_u24 v%d, 192, v%d' % (v_be, v_t0))
    e('v_and_b32 v%d, 3, v0' % v_t1)
    e('v_lshl_add_u32 v%d, v%d, 3, v%d' % (v_be, v_t1, v_be))
    e('s_mul_i32 s%d, s%d, 6144' % (s_t0, s_kh))
    e('v_add_u32 v%d, s%d, v%d' % (v_be, s_t0, v_be))
    e('v_bfe_u32 v%d, v0, 4, 1' % v_t1)
    e('v_lshlrev_b32 v%d, 5, v%d' % (v_t1, v_t1))
    e('v_sub_u32 v%d, v%d, v%d' % (v_bo, v_be, v_t1))
    e('v_add_u32 v%d, 32, v%d' % (v_bo, v_bo))
    e('v_add_u32 v%d, v%d, v%d' % (v_be, v_be, v_t1))
    e('v_mul_u32_u24 v%d, 96, v%d' % (v_wa, v_t0))
    e('v_and_b32 v%d, 3, v0' % v_t1)
    e('v_lshl_add_u32 v%d, v%d, 3, v%d' % (v_wa, v_t1, v_wa))
    e('s_mul_i32 s%d, s%d, 3072' % (s_t0, s_kh))
    e('v_add_u32 v%d, s%d, v%d' % (v_wa, s_t0, v_wa))
    e('v_add_u32 v%d, 61440, v%d' % (v_xl, v_wa))
    e('v_add_u32 v%d, 61440, v%d' % (v_ya, v_be))
    e('v_add_u32 v%d, 61440, v%d' % (v_yl, v_bo))
    e('s_mul_i32 s%d, s%d, 3072' % (s_t0, s_wave))
    e('s_add_u32 s%d, s%d, 0x%x' % (s_t0, s_t0, EX))
    e('v_add_u32 v%d, s%d, v%d' % (v_exw, s_t0, v_l16))
    e('s_xor_b32 s%d, s%d, 4' % (s_t1, s_wave))
    e('s_mul_i32 s%d, s%d, 3072' % (s_t0, s_t1))
    e('s_add_u32 s%d, s%d, 0x%x' % (s_t0, s_t0, EX))
    e('v_add_u32 v%d, s%d, v%d' % (v_exr, s_t0, v_l16))
    e('s_cmp_eq_u32 s%d, 1' % s_kh)
    e('s_cselect_b64 s[76:77], -1, 0')

    WIN = 61440
    ring1 = lambda k: (k % 10) * 12288
    ring2 = lambda k: ((96 + 6 * k) % 120) * 1024

    def fread(p, al):
        f = p % 6
        if p < 108:
            k, t = divmod(p, 6)
            ro = ring1(k)
            base = ((v_be, v_bo), (v_ya, v_yl))[ro >= WIN][t & 1]
            off = ro % WIN + al * 3072 + (t >> 1) * 64
        else:
            k, t = divmod(p - 108, 3)
            ro = ring2(k)
            base = (v_wa, v_xl)[ro >= WIN]
            off = ro % WIN + al * 1536 + t * 32
        return 'ds_read_b64_tr_b16 %s, v%d offset:%d' % (vr(vB(f) + 2 * al, 2), base, off)

    def units_needed(p):
        if p < 108:
            return (p // 6 + 1) * 12
        return 216 + ((p - 108) // 3 + 1) * 6

    def sync(units, extra=()):
        st = Stream()
        st('s_barrier', needs=[('d', q) for q in range(min(-(-units // 8), 41))] + list(extra))
        return st

    def mf(p, rt):
        if p < 108:
            k, t = divmod(p, 6)
            c = vC1(rt, t)
        else:
            k, t = divmod(p - 108, 3)
            c = vC2(rt, t)
        return 'v_mfma_f32_16x16x32_bf16 %s, %s, %s, %s' % (vr(c, 4), vr(vB(p % 6), 4), vr(vA(rt, k), 4), vr(c, 4) if k else '0')

    def ex_send(accf, tiles, T):
        st = Stream()
        for i, t in enumerate(tiles):
            for r in range(4):
                st('v_cndmask_b32 v%d, v%d, v%d, s[76:77]' % (T + 4 * i + r, accf(1, t) + r, accf(0, t) + r))
            for r in range(4):
                st('v_cndmask_b32 v%d, v%d, v%d, s[76:77]' % (accf(0, t) + r, accf(0, t) + r, accf(1, t) + r))
            st('ds_write_b128 v%d, %s offset:%d' % (v_exw, vr(T + 4 * i, 4), i * 1024), tok=('exw', t))
        return st

    def ex_recv(accf, tiles, T, tbase):
        st = Stream()
        for i, t in enumerate(tiles):
            st('ds_read_b128 %s, v%d offset:%d' % (vr(T + 4 * i, 4), v_exr, i * 1024), tok=('exr', t + tbase))
        for i, t in enumerate(tiles):
            for r in range(4):
                st('v_add_f32 v%d, v%d, v%d' % (accf(0, t) + r, accf(0, t) + r, T + 4 * i + r))
            gt = tbase + t
            st('s_add_u32 s%d, s%d, %d' % (s_so + 3, s_p0, (gt // 4) * 4096))
            st('buffer_store_dwordx4 %s, v%d, s[%d:%d], s%d offen offset:%d%s' % (vr(accf(0, t), 4), v_l16, S_P, S_P + 3, s_so + 3, (gt % 4) * 1024, SCP))
        return st

    stamp(e, 2)
    GRP = 12
    D = 5
    e.extend(sync(units_needed(GRP + D - 1)))
    stamp(e, 3)
    for p in range(D):
        e(fread(p, 0))
        e(fread(p, 1))
    T1, T2 = vA(0, 0), vA(0, 2)
    fills = {}
    fills[10] = ex_send(vC1, [0, 1, 2], T1)
    fills[11] = ex_recv(vC1, [0, 1, 2], T2, 0)
    fills[12] = ex_send(vC1, [3, 4, 5], T1)
    fills[13] = ex_recv(vC1, [3, 4, 5], T2, 0)
    for g in range(14):
        p0, p1 = g * GRP, min((g + 1) * GRP, 162)
        fill = Stream()
        stamp(e, 0, grp=g)
        if g > 0:
            extra = []
            if g in (11, 13):
                extra = [('exw', t) for t in range(6)]
            if g == 12:
                extra = [('exr', t) for t in range(6)]
            e.extend(sync(units_needed(min(p1 + D - 1, 161)), extra))
            if g == 9:
                stamp(e, 4)
            free = (p0 // 6) * 12 if p0 <= 108 else 216 + ((p0 - 108) // 3) * 6
            issue_upto(fill, 2 * g + 2 + LA, min(free + 120, (2 * g + 2 + LB) * 12 if g < 9 else 10000))
        else:
            issue_upto(fill, 2 + LA, min(120, (2 + LB) * 12))
        if g in fills:
            fill.extend(fills[g])
        main = Stream()
        for p in range(p0, p1):
            main(mf(p, 0))
            if p + D < 162:
                main(fread(p + D, 0))
            main(mf(p, 1))
            if p + D < 162:
                main(fread(p + D, 1))
        e.extend(merge_keep(main, fill))
    stamp(e, 5)
    e('s_barrier', needs=[('exr', t) for t in range(6)])
    e.extend(ex_send(vC2, [0, 1, 2], T1))
    e('s_waitcnt lgkmcnt(0)')
    e('s_barrier')
    e.extend(ex_recv(vC2, [0, 1, 2], T2, 6))
    stamp(e, 6)
    stamp_store(e, 8, S_ST, s_wave, 1, nw=8)
    e.label('.Lk2_end')
    e('s_endpgm')
    return e


def gen_k3():
    e = Stream()
    YL = 0
    OL = 9600
    S_X, S_B2, S_O, S_P, S_YF, S_WM, S_TAB, S_ST = 16, 20, 24, 28, 32, 36, 40, 44
    s_wave, s_t0, s_t1, s_row = 56, 57, 58, 59
    s_r2 = 60
    s_ex = 62
    s_tw = 64
    s_l2e = 80
    v_tid, v_l16, v_t0, v_t1, v_l8 = 1, 2, 3, 4, 5
    v_tl = 168
    TB3 = 8
    e.label('k3_kernel')
    e('s_cmp_ge_u32 s2, 256')
    e('s_cbranch_scc1 .Lk3_end')
    stamp_entry(e)
    e('s_load_dwordx2 s[4:5], s[0:1], 0')
    e('s_load_dwordx4 s[8:11], s[0:1], 56')
    e('s_load_dwordx2 s[12:13], s[0:1], 80')
    table_srd(e, S_TAB, 'k3')
    e('v_mov_b32 v%d, v0' % v_tid)
    e('v_lshrrev_b32 v2, 6, v0')
    e('v_and_b32 v0, 63, v0')
    e('v_readfirstlane_b32 s%d, v2' % s_wave)
    e('v_lshlrev_b32 v%d, 4, v0' % v_l16)
    e('v_lshlrev_b32 v%d, 3, v0' % v_l8)
    e('v_add_u32 v%d, 53760, v%d' % (v_tl, v_l16))
    e('s_mov_b32 s%d, %s' % (s_r2, fbits(0.5 ** 0.5)))
    e('s_mov_b32 s%d, %s' % (s_r2 + 1, fbits(0.5 ** 0.5)))
    e('s_mov_b32 s%d, %s' % (s_l2e, fbits(-np.log2(np.e))))
    make_srd(e, S_YF, 12, XF_SZ, YF_OFF)
    e('s_lshl_b32 s%d, s2, 6' % s_t0)
    e('s_add_u32 s%d, s%d, 0x%x' % (s_t0, s_t0, TW8_OFF))
    e('s_add_u32 s%d, s%d, s%d' % (s_ex, S_TAB, s_t0))
    e('s_addc_u32 s%d, s%d, 0' % (s_ex + 1, S_TAB + 1))
    e('s_load_dwordx16 s[%d:%d], s[%d:%d], 0' % (s_tw, s_tw + 15, s_ex, s_ex + 1))
    e('s_mul_i32 s%d, s2, %d' % (s_t1, XF_ROW))
    e('v_lshlrev_b32 v%d, 5, v%d' % (v_t0, v_tid))
    e('buffer_load_dwordx4 v[64:67], v%d, s[%d:%d], s%d offen' % (v_t0, S_YF, S_YF + 3, s_t1))
    e('buffer_load_dwordx4 v[68:71], v%d, s[%d:%d], s%d offen offset:16' % (v_t0, S_YF, S_YF + 3, s_t1))
    make_srd(e, S_P, 12, P_SZ, P_OFF)
    make_srd(e, S_WM, 12, 1024, WM_OFF)
    make_srd(e, S_X, 4, X_SZ)
    make_srd(e, S_B2, 8, 1152)
    make_srd(e, S_O, 10, X_SZ)
    if STAMP:
        make_srd(e, S_ST, 12, 1 << 20, ST_OFF)
    stamp(e, 0)
    TL3 = 53760
    e('s_lshl_b32 s%d, s%d, 10' % (s_t0, s_wave))
    e('s_add_u32 m0, s%d, 0x%x' % (s_t0, TL3))
    e('s_add_u32 s%d, s%d, 0x%x' % (s_t1, s_t0, T3_OFF))
    e('buffer_load_dwordx4 v%d, s[%d:%d], s%d offen lds' % (v_l16, S_TAB, S_TAB + 3, s_t1), tok=('tl', 0))
    e('s_add_u32 m0, s%d, 0x%x' % (s_t0, TL3 + 8192))
    e('s_add_u32 s%d, s%d, 0x%x' % (s_t1, s_t0, T3_OFF + 8192))
    e('buffer_load_dwordx4 v%d, s[%d:%d], s%d offen lds' % (v_l16, S_TAB, S_TAB + 3, s_t1), tok=('tl', 1))
    e('buffer_load_dwordx4 v[104:107], v%d, s[%d:%d], 0 offen' % (v_l16, S_WM, S_WM + 3))
    e('s_lshl_b32 s%d, s%d, 8' % (s_row, s_wave))
    e('s_add_u32 s%d, s%d, s2' % (s_row, s_row))
    e('v_cmp_gt_u32 vcc, 16, v0')
    e('v_mov_b32 v%d, 0x7ffffff0' % v_t1)
    e('v_cndmask_b32 v7, v%d, v%d, vcc' % (v_t1, v_l8))
    PR = 108
    e('v_lshrrev_b32 v%d, 3, v%d' % (v_t0, v_tid))
    e('v_lshlrev_b32 v%d, 8, v%d' % (v_t0, v_t0))
    e('v_and_b32 v6, 7, v%d' % v_tid)
    e('v_lshl_add_u32 v%d, v6, 4, v%d' % (v_t0, v_t0))
    e('v_cmp_gt_u32 vcc, 128, v%d' % v_tid)
    e('v_cndmask_b32 v6, v%d, v%d, vcc' % (v_t1, v_t0))
    e('s_lshr_b32 s%d, s2, 1' % s_t0)
    e('s_mul_i32 s%d, s%d, 36864' % (s_t0, s_t0))
    e('s_and_b32 s%d, s2, 1' % s_t1)
    e('s_lshl_b32 s%d, s%d, 7' % (s_t1, s_t1))
    e('s_add_u32 s%d, s%d, s%d' % (s_t0, s_t0, s_t1))
    s_pb, s_po = 82, 83
    v_pa = 169
    e('s_mov_b32 s%d, s%d' % (s_pb, s_t0))
    e('v_mov_b32 v%d, v%d' % (v_pa, v_t0))
    XR, BR2 = 156, 162
    e('s_mul_i32 s%d, s%d, 1152' % (s_row, s_row))
    ld = Stream()
    for ks in range(4):
        for j in range(3):
            ld('s_add_u32 s%d, s%d, 0x%x' % (s_po, s_pb, ks * 128 * 36864 + j * 16384))
            ld('buffer_load_dwordx4 %s, v%d, s[%d:%d], s%d offen' % (vr(PR + (ks * 3 + j) * 4, 4), v_pa if j < 2 else 6, S_P, S_P + 3, s_po))
    for j in range(3):
        ld('buffer_load_dwordx2 %s, v%d, s[%d:%d], s%d offen offset:%d' % (vr(XR + 2 * j, 2), v_l8 if j < 2 else 7, S_X, S_X + 3, s_row, j * 512))
        ld('buffer_load_dwordx2 %s, v%d, s[%d:%d], 0 offen offset:%d' % (vr(BR2 + 2 * j, 2), v_l8 if j < 2 else 7, S_B2, S_B2 + 3, j * 512))
    K3A, K3B = int(os.environ.get('K3A', '4')), int(os.environ.get('K3B', '8'))
    l0 = Stream(); l0.items = ld.items[:2 * K3A]
    l1 = Stream(); l1.items = ld.items[2 * K3A:2 * K3B]
    l2 = Stream(); l2.items = ld.items[2 * K3B:]
    e.extend(l0)
    stamp(e, 4)
    f = Stream()
    for k1 in range(8):
        c, s = s_tw + 2 * k1, s_tw + 2 * k1 + 1
        f('v_cvt_f32_f16 v%d, v%d' % (v_t0, 64 + k1))
        f('v_cvt_f32_f16_sdwa v%d, v%d dst_sel:DWORD dst_unused:UNUSED_PAD src0_sel:WORD_1' % (v_t1, 64 + k1))
        d = 72 + 2 * k1
        f('v_mul_f32 v%d, s%d, v%d' % (d, c, v_t0))
        f('v_mul_f32 v%d, s%d, v%d' % (d + 1, c, v_t1))
        f('v_mul_f32 v%d, s%d, v%d' % (v_t1, s, v_t1))
        f('v_mul_f32 v%d, s%d, v%d' % (v_t0, s, v_t0))
        f('v_add_f32 v%d, v%d, v%d' % (d, d, v_t1))
        f('v_sub_f32 v%d, v%d, v%d' % (d + 1, d + 1, v_t0))
    X = radix8(f, 72, 88, s_r2, inverse=True)
    f('v_cmp_ne_u32 vcc, 0, v%d' % v_tid)
    f('v_mov_b32 v%d, 0x120' % v_t0)
    f('v_cmp_ne_u32 s[%d:%d], v%d, v%d' % (s_ex, s_ex + 1, v_t0, v_tid))
    f('s_and_b64 vcc, vcc, s[%d:%d]' % (s_ex, s_ex + 1))
    f('v_lshlrev_b32 v%d, 2, v%d' % (v_t0, v_tid))
    f('v_min_u32 v%d, %d, v%d' % (v_t0, 295 * 4, v_t0))
    for n in range(8):
        f('v_cndmask_b32 v%d, 0, v%d, vcc' % (X[n] + 1, X[n] + 1))
        f('v_cvt_pk_f16_f32 v%d, v%d, v%d' % (64 + n, X[n], X[n] + 1))
        f('ds_write_b32 v%d, v%d offset:%d' % (v_t0, 64 + n, YL + n * TB.YL_ROW))
    e('s_cmp_ge_u32 s%d, 5' % s_wave)
    e('s_cbranch_scc1 .Lk3_nor8')
    e.cond_begin()
    e.extend(f)
    e.cond_end()
    e.label('.Lk3_nor8')
    stamp(e, 6)
    e.extend(l1)
    e('s_waitcnt lgkmcnt(0)')
    e('s_barrier', needs=[('tl', 0), ('tl', 1)])
    stamp(e, 1)
    f = Stream()
    for q in (12, 13, 0, 1, 2, 3, 4, 5, 6, 7, 8, 9, 10, 11):
        f('ds_read_b128 %s, v%d offset:%d' % (vr(TB3 + 4 * q, 4), v_tl, q * 1024))
    f('s_mul_i32 s%d, s%d, %d' % (s_t0, s_wave, TB.YL_ROW))
    for i in range(8):
        f('v_add_u32 v%d, s%d, v%d' % (TB3 + 48 + i, s_t0, TB3 + 48 + i))
    for i in range(8):
        f('ds_read_b32 v%d, v%d offset:%d' % (64 + i, TB3 + 48 + i, YL))
    wscale(f, S_WM, 104, v_t0, False)
    for ct in range(2):
        f('v_mfma_f32_16x16x32_f16 %s, %s, %s, 0' % (vr(72 + ct * 8, 4), vr(64 + 4 * ct, 4), vr(TB3, 4)))
        f('v_mfma_f32_16x16x32_f16 %s, %s, %s, 0' % (vr(76 + ct * 8, 4), vr(64 + 4 * ct, 4), vr(TB3 + 4, 4)))
    for ct in range(2):
        cmul_regs(f, 88, 92, 72 + ct * 8, 76 + ct * 8, TB3 + 8 + ct * 8, TB3 + 12 + ct * 8)
        for r in range(4):
            f('v_cvt_pk_f16_f32 v%d, v%d, v%d' % (64 + 4 * ct + r, 88 + r, 92 + r))
    for ta in range(3):
        f('v_mfma_f32_16x16x32_f16 %s, v[64:67], %s, 0' % (vr(72 + 4 * ta, 4), vr(TB3 + 24 + ta * 8, 4)))
    for ta in range(3):
        f('v_mfma_f32_16x16x32_f16 %s, v[68:71], %s, %s' % (vr(72 + 4 * ta, 4), vr(TB3 + 28 + ta * 8, 4), vr(72 + 4 * ta, 4)))
    e.extend(merge_keep(f, l2))
    stamp(e, 5)
    for j in range(3):
        for r in range(4):
            i0 = PR + j * 4 + r
            e('v_add_f32 v%d, v%d, v%d' % (i0, i0, i0 + 12))
            e('v_add_f32 v%d, v%d, v%d' % (i0 + 24, i0 + 24, i0 + 36))
    for j in range(3):
        for r in range(4):
            i0 = PR + j * 4 + r
            e('v_add_f32 v%d, v%d, v%d' % (i0, i0, i0 + 24))
    OS = OL + 8 * 3072
    e('v_and_b32 v%d, 7, v%d' % (v_t0, v_tid))
    e('v_mul_u32_u24 v%d, 2320, v%d' % (v_t0, v_t0))
    e('v_lshrrev_b32 v%d, 3, v%d' % (v_t1, v_tid))
    e('v_lshl_add_u32 v%d, v%d, 4, v%d' % (v_t0, v_t1, v_t0))
    e('ds_write_b128 v%d, %s offset:%d' % (v_t0, vr(PR, 4), OS))
    e('ds_write_b128 v%d, %s offset:%d' % (v_t0, vr(PR + 4, 4), OS + 1024))
    e('s_cmp_ge_u32 s%d, 2' % s_wave)
    e('s_cbranch_scc1 .Lk3_now2')
    e.cond_begin()
    e('ds_write_b128 v%d, %s offset:%d' % (v_t0, vr(PR + 8, 4), OS + 2048))
    e.cond_end()
    e.label('.Lk3_now2')
    e('v_and_b32 v%d, 15, v0' % v_t0)
    e('v_lshrrev_b32 v%d, 4, v0' % v_t1)
    e('v_lshl_add_u32 v%d, v%d, 2, v%d' % (v_t0, v_t0, v_t1))
    e('v_lshlrev_b32 v%d, 4, v%d' % (v_t0, v_t0))
    e('s_mul_i32 s%d, s%d, 3072' % (s_t0, s_wave))
    e('s_add_u32 s%d, s%d, %d' % (s_t0, s_t0, OL))
    e('v_add_u32 v%d, s%d, v%d' % (v_t0, s_t0, v_t0))
    e('v_add_u32 v%d, s%d, v%d' % (v_t1, s_t0, v_l16))
    for ta in range(3):
        e('ds_write_b128 v%d, %s offset:%d' % (v_t0, vr(72 + 4 * ta, 4), ta * 1024))
    e('s_waitcnt lgkmcnt(0)')
    e('s_barrier')
    for ta in range(3):
        e('ds_read_b128 %s, v%d offset:%d' % (vr(84 + 4 * ta, 4), v_t1, ta * 1024))
    e('s_mul_i32 s%d, s%d, 2320' % (s_t0, s_wave))
    e('v_add_u32 v%d, s%d, v%d' % (v_t1, s_t0, v_l16))
    for j in range(3):
        e('ds_read_b128 %s, v%d offset:%d' % (vr(PR + 4 * j, 4), v_t1, OS + j * 1024))
    U = 120

    def round_pairs(regs):
        for i in range(0, len(regs), 2):
            e('v_cvt_pk_bf16_f32 v%d, v%d, v%d' % (regs[i + 1], regs[i], regs[i + 1]))
        for i in range(0, len(regs), 2):
            e('v_lshlrev_b32 v%d, 16, v%d' % (regs[i], regs[i + 1]))
            e('v_and_b32 v%d, 0xffff0000, v%d' % (regs[i + 1], regs[i + 1]))
    O = [PR + i for i in range(12)]
    Bv = [U + i for i in range(12)]
    Xv = [U + 12 + i for i in range(12)]
    Tv = [U + 24 + i for i in range(12)]
    Sv = [84 + i for i in range(12)]
    round_pairs(O)
    for i in range(6):
        e('v_lshlrev_b32 v%d, 16, v%d' % (Bv[2 * i], BR2 + i))
        e('v_and_b32 v%d, 0xffff0000, v%d' % (Bv[2 * i + 1], BR2 + i))
        e('v_lshlrev_b32 v%d, 16, v%d' % (Xv[2 * i], XR + i))
        e('v_and_b32 v%d, 0xffff0000, v%d' % (Xv[2 * i + 1], XR + i))
    for i in range(12):
        e('v_add_f32 v%d, v%d, v%d' % (O[i], O[i], Bv[i]))
    round_pairs(O)
    for i in range(12):
        e('v_mul_f32 v%d, s%d, v%d' % (Tv[i], s_l2e, O[i]))
    for i in range(12):
        e('v_exp_f32 v%d, v%d' % (Tv[i], Tv[i]))
    for i in range(12):
        e('v_add_f32 v%d, 1.0, v%d' % (Tv[i], Tv[i]))
    for i in range(12):
        e('v_rcp_f32 v%d, v%d' % (Tv[i], Tv[i]))
    for i in range(12):
        e('v_mul_f32 v%d, v%d, v%d' % (O[i], O[i], Tv[i]))
    round_pairs(O)
    for i in range(12):
        e('v_mul_f32 v%d, v104, v%d' % (Sv[i], Sv[i]))
    round_pairs(Sv)
    for i in range(12):
        e('v_mul_f32 v%d, v%d, v%d' % (O[i], O[i], Sv[i]))
    round_pairs(O)
    for i in range(12):
        e('v_add_f32 v%d, v%d, v%d' % (O[i], O[i], Xv[i]))
    for i in range(6):
        e('v_cvt_pk_bf16_f32 v%d, v%d, v%d' % (Tv[i], O[2 * i], O[2 * i + 1]))
    for j in range(3):
        e('buffer_store_dwordx2 %s, v%d, s[%d:%d], s%d offen offset:%d' % (vr(Tv[2 * j], 2), v_l8 if j < 2 else 7, S_O, S_O + 3, s_row, j * 512))
    stamp(e, 2)
    if STAMP:
        e('s_waitcnt vmcnt(0)')
    stamp(e, 3)
    stamp_store(e, 8, S_ST, s_wave, 2)
    e.label('.Lk3_end')
    e('s_endpgm')
    return e
```

```python
import numpy as np

L = np.arange(64)
G = L >> 4
I16 = L & 15

def h16(x):
    return np.asarray(x, dtype=np.float64).astype(np.float16).view(np.uint16).astype(np.uint32)

def pk(lo, hi):
    return h16(lo) | (h16(hi) << 16)

def f32(x):
    return np.asarray(x, dtype=np.float64).astype(np.float32).view(np.uint32)

def kidx(c, e):
    k = c + 36 * e
    return np.where(k <= 288, k, 576 - k)

XL_ROW = 1160
YL_ROW = 1184

def table_k1():
    regs = []
    for ct in range(2):
        c = 16 * ct + I16
        valid = (c <= 18)
        for ri in range(2):
            def val(a):
                th = 2 * np.pi * ((a * c) % 36) / 36
                v = np.cos(th) if ri == 0 else -np.sin(th)
                return np.where(valid, v, 0.0)
            for jj in range(4):
                regs.append(pk(val(8 * G + 2 * jj), val(8 * G + 2 * jj + 1)))
            regs.append(pk(val(32 + G), 0 * L))
    for ct in range(2):
        c = 16 * ct + I16
        for ri in range(2):
            for r in range(4):
                b = 4 * G + r
                th = 2 * np.pi * ((b * c) % 576) / 576
                v = (np.cos(th) if ri == 0 else -np.sin(th)) / 6.0
                regs.append(f32(v))
    e = I16
    sg = np.where(e >= 8, -1.0, 1.0)
    for ri in range(2):
        for r in range(4):
            b = 4 * G + r
            th = 2 * np.pi * ((b * e) % 16) / 16
            if ri == 0:
                regs.append(pk(np.cos(th) / 4, np.sin(th) / 4))
            else:
                regs.append(pk(-np.sin(th) / 4 * sg, np.cos(th) / 4 * sg))
    for ct in range(2):
        c = 16 * ct + I16
        for r in range(4):
            e = 4 * G + r
            k = np.where(c <= 18, kidx(c, e), 289)
            regs.append((k * 4).astype(np.uint32))
    regs = np.array(regs, dtype=np.uint32)
    order = [5 * i + j for i in range(4) for j in range(4)] + [5 * i + 4 for i in range(4)] + list(range(20, 52))
    return regs[order]

def table_k2():
    regs = []
    e = I16
    for ri in range(2):
        for r in range(4):
            b = 4 * G + r
            th = 2 * np.pi * ((b * e) % 16) / 16
            if ri == 0:
                regs.append(pk(np.cos(th) / 4, np.sin(th) / 4))
            else:
                regs.append(pk(-np.sin(th) / 4, np.cos(th) / 4))
    for ri in range(2):
        for r in range(4):
            b = 4 * G + r
            th = 2 * np.pi * ((b * I16) % 256) / 256
            regs.append(f32(np.cos(th) if ri == 0 else -np.sin(th)))
    return np.array(regs, dtype=np.uint32)

def table_k3():
    regs = []
    b = I16
    for ri in range(2):
        for r in range(4):
            e = 4 * G + r
            sg = np.where(e >= 8, -1.0, 1.0)
            th = 2 * np.pi * ((b * e) % 16) / 16
            if ri == 0:
                regs.append(pk(np.cos(th) / 4, -sg * np.sin(th) / 4))
            else:
                regs.append(pk(np.sin(th) / 4, sg * np.cos(th) / 4))
    for ct in range(2):
        for ri in range(2):
            for r in range(4):
                c = 16 * ct + 4 * G + r
                th = 2 * np.pi * ((b * c) % 576) / 576
                v = (np.cos(th) if ri == 0 else np.sin(th)) / 6.0
                regs.append(f32(np.where(c <= 18, v, 0.0)))
    for ta in range(3):
        a = 16 * ta + I16
        for ct in range(2):
            for r in range(4):
                c = 16 * ct + 4 * G + r
                mu = np.where((c == 0) | (c == 18), 1.0, 2.0)
                mu = np.where((c <= 18) & (a <= 35), mu, 0.0)
                ph = 2 * np.pi * ((a * c) % 36) / 36
                regs.append(pk(mu * np.cos(ph), -mu * np.sin(ph)))
    for ct in range(2):
        c = 16 * ct + I16
        for r in range(4):
            e = 4 * G + r
            k = np.where(c <= 18, kidx(c, e), 0)
            regs.append((k * 4).astype(np.uint32))
    return np.array(regs, dtype=np.uint32)

def table_tw8():
    n2 = np.arange(256)[:, None]; k1 = np.arange(8)[None, :]
    th = 2 * np.pi * ((n2 * k1) % 2048) / 2048
    t = np.stack([np.cos(th), -np.sin(th)], -1) / np.sqrt(8)
    return f32(t).reshape(-1)

def image(regs):
    n = regs.shape[0]
    assert n % 4 == 0
    return regs.reshape(n // 4, 4, 64).transpose(0, 2, 1).reshape(-1)

def unpk(d):
    d = np.asarray(d, dtype=np.uint32)
    lo = (d & 0xffff).astype(np.uint16).view(np.float16).astype(np.float64)
    hi = (d >> 16).astype(np.uint16).view(np.float16).astype(np.float64)
    return lo, hi

def mfma(Aregs, Bregs, C=None):
    n = len(Aregs)
    A = np.zeros((16, 8 * n)); B = np.zeros((8 * n, 16))
    for j in range(n):
        alo, ahi = unpk(Aregs[j]); blo, bhi = unpk(Bregs[j])
        A[I16, 2 * n * G + 2 * j] = alo; A[I16, 2 * n * G + 2 * j + 1] = ahi
        B[2 * n * G + 2 * j, I16] = blo; B[2 * n * G + 2 * j + 1, I16] = bhi
    Dm = A @ B
    D = np.array([Dm[4 * G + r, I16] for r in range(4)])
    return D if C is None else D + C

def asf32(u):
    return np.asarray(u, dtype=np.uint32).view(np.float32).astype(np.float64)

def emu_rowfft(xn_row, T):
    b = I16
    xs = [xn_row[16 * (8 * G + j) + b] for j in range(8)]
    x9 = xn_row[16 * (32 + G) + b]
    A4 = [pk(xs[2 * j], xs[2 * j + 1]) for j in range(4)]
    Z = pk(0 * L, 0 * L)
    A2 = [pk(x9, 0 * L), Z]
    XL = np.zeros(292, np.complex128)
    for ct in range(2):
        D = []
        for ri in range(2):
            i = ct * 2 + ri
            d = mfma(A4, T[4 * i:4 * i + 4])
            d = mfma(A2, [T[16 + i], Z], d)
            D.append(d)
        twr = asf32(T[20 + ct * 8: 20 + ct * 8 + 4]); twi = asf32(T[20 + ct * 8 + 4: 20 + ct * 8 + 8])
        re = D[0] * twr - D[1] * twi; im = D[0] * twi + D[1] * twr
        P = [pk(re[r], im[r]) for r in range(4)]
        o_re = mfma(T[36:40], P); o_im = mfma(T[40:44], P)
        for r in range(4):
            XL[T[44 + ct * 4 + r] // 4] = o_re[r] + 1j * o_im[r]
    return XL[:289]

def emu_col(u, Wcol, T):
    b = I16
    A = [pk(u[16 * (4 * G + r) + b].real, u[16 * (4 * G + r) + b].imag) for r in range(4)]
    twr = asf32(T[8:12]); twi = asf32(T[12:16])
    d_re = mfma(A, T[0:4]); d_im = mfma(A, T[4:8])
    re = d_re * twr - d_im * twi; im = d_re * twi + d_im * twr
    P = [pk(re[r], im[r]) for r in range(4)]
    o_re = mfma(T[0:4], P); o_im = mfma(T[4:8], P)
    Wl = np.array([Wcol[I16 + 16 * (4 * G + r)] for r in range(4)])
    yr = o_re * Wl.real - o_im * Wl.imag; yi = o_re * Wl.imag + o_im * Wl.real
    A = [pk(yi[r], yr[r]) for r in range(4)]
    d_re = mfma(A, T[0:4]); d_im = mfma(A, T[4:8])
    re = d_re * twr - d_im * twi; im = d_re * twi + d_im * twr
    P = [pk(re[r], im[r]) for r in range(4)]
    o_re = mfma(T[0:4], P); o_im = mfma(T[4:8], P)
    out = np.zeros(256, np.complex128)
    for r in range(4):
        out[16 * (4 * G + r) + b] = o_im[r] + 1j * o_re[r]
    return out

def emu_rowinv(Y1row, T):
    Ps = []
    for ct in range(2):
        idx = [T[48 + ct * 4 + r] // 4 for r in range(4)]
        A = [pk(Y1row[idx[r]].real, Y1row[idx[r]].imag) for r in range(4)]
        d_re = mfma(A, T[0:4]); d_im = mfma(A, T[4:8])
        twr = asf32(T[8 + ct * 8: 8 + ct * 8 + 4]); twi = asf32(T[8 + ct * 8 + 4: 8 + ct * 8 + 8])
        re = d_re * twr - d_im * twi; im = d_re * twi + d_im * twr
        Ps.append([pk(re[r], im[r]) for r in range(4)])
    y = np.zeros(48 * 16)
    for ta in range(3):
        d = mfma(Ps[0], T[24 + ta * 8: 24 + ta * 8 + 4])
        d = mfma(Ps[1], T[24 + ta * 8 + 4: 24 + ta * 8 + 8], d)
        for r in range(4):
            y[16 * (16 * ta + I16) + 4 * G + r] = d[r]
    return y[:576]

if __name__ == '__main__':
    rng = np.random.default_rng(1)
    x = rng.standard_normal(576)
    X = emu_rowfft(x, table_k1())
    ref = np.fft.rfft(x) / 24
    print('rowfft err', np.abs(X - ref).max(), np.abs(ref).max())
    u = rng.standard_normal(256) + 1j * rng.standard_normal(256)
    Wc = rng.standard_normal(256) + 1j * rng.standard_normal(256)
    o = emu_col(u, Wc, table_k2())
    ref = np.fft.ifft(np.fft.fft(u) * Wc)
    print('col err', np.abs(o - ref).max(), np.abs(ref).max())
    Y = rng.standard_normal(289) + 1j * rng.standard_normal(289); Y[0] = Y[0].real; Y[288] = Y[288].real
    y = emu_rowinv(Y, table_k3())
    ref = np.fft.irfft(Y, 576) * 24
    print('rowinv err', np.abs(y - ref).max(), np.abs(ref).max())
```

```python
import sys
import numpy as np
from asmgen import Stream
import tables as TB
from gen import *
from gen23 import gen_k2, gen_k3

Y_OFF = 0x3000000
Y_SZ = 128 * 18 * 1024


def ln_rows(f, X0, T0_, M_, V_, Q_):
    f('v_add_f32 v%d, v%d, v%d' % (M_, X0, X0 + 1))
    f('v_add_f32 v%d, v%d, v%d' % (V_, X0 + 2, X0 + 3))
    f('v_add_f32 v%d, v%d, v%d' % (Q_, X0 + 4, X0 + 5))
    f('v_add_f32 v%d, v%d, v%d' % (Q_ + 1, X0 + 6, X0 + 7))
    f('v_add_f32 v%d, v%d, v%d' % (M_, M_, V_))
    f('v_add_f32 v%d, v%d, v%d' % (Q_, Q_, Q_ + 1))
    f('v_add_f32 v%d, v%d, v%d' % (M_, M_, X0 + 8))
    f('v_add_f32 v%d, v%d, v%d' % (M_, M_, Q_))
    allreduce_wave(f, M_, V_)
    f('v_mul_f32 v%d, %s, v%d' % (M_, fbits(1.0 / 576), M_))
    for j in range(9):
        f('v_sub_f32 v%d, v%d, v%d' % (T0_ + j, X0 + j, M_))
    f('v_mul_f32 v%d, v%d, v%d' % (V_, T0_, T0_))
    f('v_mul_f32 v%d, v%d, v%d' % (Q_, T0_ + 1, T0_ + 1))
    for j in range(2, 9):
        f('v_fmac_f32 v%d, v%d, v%d' % ((V_, Q_)[j & 1], T0_ + j, T0_ + j))
    f('v_add_f32 v%d, v%d, v%d' % (V_, V_, Q_))
    allreduce_wave(f, V_, Q_)
    f('v_mul_f32 v%d, %s, v%d' % (V_, fbits(1.0 / 576), V_))
    f('v_cvt_pk_bf16_f32 v%d, v%d, v%d' % (M_, M_, V_))
    f('v_and_b32 v%d, 0xffff0000, v%d' % (V_, M_))
    f('v_lshlrev_b32 v%d, 16, v%d' % (M_, M_))
    f('v_add_f32 v%d, %s, v%d' % (V_, fbits(1e-5), V_))
    bf16_round1(f, V_)
    f('v_sqrt_f32 v%d, v%d' % (V_, V_))
    bf16_round1(f, V_)
    f('v_rcp_f32 v%d, v%d' % (V_, V_))
    for j in range(9):
        f('v_sub_f32 v%d, v%d, v%d' % (X0 + j, X0 + j, M_))
    for rnd in range(2):
        for p in range(5):
            a, b = X0 + 2 * p, (X0 + 2 * p + 1 if p < 4 else X0 + 2 * p)
            f('v_cvt_pk_bf16_f32 v%d, v%d, v%d' % (T0_ + p, a, b))
        for p in range(5):
            f('v_lshlrev_b32 v%d, 16, v%d' % (X0 + 2 * p, T0_ + p))
            if p < 4:
                f('v_and_b32 v%d, 0xffff0000, v%d' % (X0 + 1 + 2 * p, T0_ + p))
        if rnd == 0:
            for j in range(9):
                f('v_mul_f32 v%d, v%d, v%d' % (X0 + j, X0 + j, V_))


def gen_k0():
    e = Stream()
    TL = 0
    XL = 16384
    YL = XL + 9344
    YROW = 1168
    WMX = YL + 8 * YROW
    S_X, S_WR, S_WI, S_W1, S_W2, S_Y, S_XF, S_WT, S_TAB, S_WM, S_ST = 16, 20, 24, 28, 32, 36, 40, 44, 48, 52, 80
    s_wave, s_t0, s_t1, s_n2, s_xo, s_m0 = 56, 57, 58, 59, 60, 61
    s_ex = 62
    s_tw = 64
    s_tt = 84
    v_tid, v_g, v_i, v_t0, v_t1, v_so = 1, 2, 3, 4, 5, 6
    F = 64
    WREG = 16
    e.label('k0_kernel')
    e('s_cmp_ge_u32 s2, 256')
    e('s_cbranch_scc1 .Lk0_end')
    stamp_entry(e)
    e('s_load_dwordx4 s[4:7], s[0:1], 0')
    e('s_load_dwordx2 s[8:9], s[0:1], 16')
    e('s_load_dwordx2 s[12:13], s[0:1], 32')
    e('s_load_dwordx2 s[14:15], s[0:1], 48')
    e('s_load_dwordx2 s[10:11], s[0:1], 80')
    table_srd(e, S_TAB, 'k0')
    e('v_mov_b32 v%d, v0' % v_tid)
    e('v_lshrrev_b32 v2, 6, v0')
    e('v_and_b32 v0, 63, v0')
    e('v_readfirstlane_b32 s%d, v2' % s_wave)
    e('s_and_b32 s%d, s2, 7' % s_t0)
    e('s_lshr_b32 s%d, s2, 3' % s_t1)
    e('s_lshl_b32 s%d, s%d, 5' % (s_n2, s_t0))
    e('s_add_u32 s%d, s%d, s%d' % (s_n2, s_n2, s_t1))
    e('s_lshl_b32 s%d, s%d, 5' % (s_xo, s_n2))
    e('s_lshl_b32 s%d, s%d, 10' % (s_m0, s_wave))
    e('v_lshrrev_b32 v%d, 4, v0' % v_g)
    e('v_and_b32 v%d, 15, v0' % v_i)
    e('v_lshlrev_b32 v%d, 8, v%d' % (v_t0, v_g))
    e('v_lshl_add_u32 v%d, v%d, 1, v%d' % (F + 20, v_i, v_t0))
    e('v_lshlrev_b32 v%d, 5, v%d' % (v_t0, v_g))
    e('v_lshl_add_u32 v%d, v%d, 1, v%d' % (F + 21, v_i, v_t0))
    e('s_lshl_b32 s%d, s%d, 8' % (s_t0, s_wave))
    e('s_add_u32 s%d, s%d, s%d' % (s_t0, s_t0, s_n2))
    e('s_mul_i32 s%d, s%d, 1152' % (s_t0, s_t0))
    make_srd(e, S_X, 4, X_SZ)
    for j in range(8):
        e('buffer_load_ushort v%d, v%d, s[%d:%d], s%d offen offset:%d' % (F + j, F + 20, S_X, S_X + 3, s_t0, j * 32))
    e('buffer_load_ushort v%d, v%d, s[%d:%d], s%d offen offset:1024' % (F + 8, F + 21, S_X, S_X + 3, s_t0))
    e('v_lshlrev_b32 v%d, 4, v0' % v_t0)
    e('s_add_u32 m0, s%d, 0x%x' % (s_m0, TL))
    e('buffer_load_dwordx4 v%d, s[%d:%d], s%d offen lds' % (v_t0, S_TAB, S_TAB + 3, s_m0), tok=('tl', 0))
    e('s_add_u32 s%d, s%d, 8192' % (s_t0, s_m0))
    e('s_add_u32 m0, s%d, 0x%x' % (s_m0, TL + 8192))
    e('buffer_load_dwordx4 v%d, s[%d:%d], s%d offen lds' % (v_t0, S_TAB, S_TAB + 3, s_t0), tok=('tl', 1))
    e('s_lshl_b32 s%d, s%d, 6' % (s_t0, s_n2))
    e('s_add_u32 s%d, s%d, 0x%x' % (s_t0, s_t0, TW8_OFF))
    e('s_add_u32 s%d, s%d, s%d' % (s_ex, S_TAB, s_t0))
    e('s_addc_u32 s%d, s%d, 0' % (s_ex + 1, S_TAB + 1))
    e('s_load_dwordx16 s[%d:%d], s[%d:%d], 0' % (s_tw, s_tw + 15, s_ex, s_ex + 1))
    make_srd(e, S_WR, 6, W_SZ)
    make_srd(e, S_WI, 8, W_SZ)
    e('v_cmp_gt_u32 vcc, 289, v%d' % v_tid)
    e('v_mov_b32 v%d, 0x7ffffff0' % v_t1)
    e('v_lshlrev_b32 v%d, 1, v%d' % (v_t0, v_tid))
    e('v_cndmask_b32 v%d, v%d, v%d, vcc' % (v_t0, v_t1, v_t0))
    e('v_lshlrev_b32 v%d, 13, v%d' % (v_so, v_tid))
    e('v_cndmask_b32 v%d, v%d, v%d, vcc' % (v_so, v_t1, v_so))
    e('s_and_b32 s%d, s%d, 127' % (s_t0, s_n2))
    e('s_lshr_b32 s%d, s%d, 7' % (s_t1, s_n2))
    e('s_lshl_b32 s%d, s%d, 10' % (s_t1, s_t1))
    e('s_add_u32 s%d, s%d, s%d' % (s_t0, s_t0, s_t1))
    e('s_mul_i32 s%d, s%d, 578' % (s_t0, s_t0))
    for i in range(8):
        if i:
            e('s_add_u32 s%d, s%d, %d' % (s_t0, s_t0, 128 * 578))
        e('buffer_load_ushort v%d, v%d, s[%d:%d], s%d offen' % (WREG + i, v_t0, S_WR, S_WR + 3, s_t0))
        e('buffer_load_ushort v%d, v%d, s[%d:%d], s%d offen' % (WREG + 8 + i, v_t0, S_WI, S_WI + 3, s_t0))
    make_srd(e, S_W1, 12, W1_SZ)
    make_srd(e, S_W2, 14, W1_SZ)
    make_srd(e, S_Y, 10, Y_SZ, Y_OFF)
    make_srd(e, S_XF, 10, XT_SZ, XF_OFF)
    make_srd(e, S_WT, 10, XT_SZ, WT_OFF)
    make_srd(e, S_WM, 10, 1024, WM_OFF)
    if STAMP:
        make_srd(e, S_ST, 10, 1 << 20, ST_OFF)
    e('v_mov_b32 v%d, 0' % v_t0)
    e('v_mov_b32 v%d, 0x%x' % (v_t1, WMX))
    e('ds_write_b32 v%d, v%d' % (v_t1, v_t0))
    stamp(e, 0)
    f = e
    X0, T0_, M_, V_, Q_ = F, F + 9, F + 18, F + 19, F + 22
    for j in range(9):
        f('v_lshlrev_b32 v%d, 16, v%d' % (X0 + j, X0 + j))
    ln_rows(f, X0, T0_, M_, V_, Q_)
    A4, A2 = F + 24, F + 28
    f('v_mov_b32 v%d, 0' % (A2 + 1))
    f('v_mov_b32 v%d, 0' % (A2 + 2))
    for p in range(4):
        f('v_cvt_pk_f16_f32 v%d, v%d, v%d' % (A4 + p, X0 + 2 * p, X0 + 1 + 2 * p))
    f('v_cvt_pk_f16_f32 v%d, v%d, v%d' % (A2, X0 + 8, A2 + 1))
    f('v_cvt_pk_f16_f32 v%d, v%d, v%d' % (A2 + 3, X0 + 8, A2 + 1))
    T = 128
    f('s_waitcnt lgkmcnt(0)')
    f('s_barrier', needs=[('tl', 0), ('tl', 1)])
    f('v_lshlrev_b32 v%d, 4, v0' % v_t0)
    for q in range(13):
        f('ds_read_b128 %s, v%d offset:%d' % (vr(T + 4 * q, 4), v_t0, TL + q * 1024))
    if PREF2:
        e('v_mul_u32_u24 v44, 0xe39, v%d' % v_tid)
        e('v_lshrrev_b32 v44, 16, v44')
        e('v_mul_u32_u24 v45, 18, v44')
        e('v_sub_u32 v45, v%d, v45' % v_tid)
        e('v_mul_u32_u24 v44, 9216, v44')
        e('v_lshl_add_u32 v44, v45, 7, v44')
        e('v_mov_b32 v46, 0x7ffffff0')
        e('v_cmp_gt_u32 vcc, 324, v%d' % v_tid)
        e('v_cndmask_b32 v44, v46, v44, vcc')
        e('v_lshlrev_b32 v45, 7, v%d' % v_tid)
        e('v_cndmask_b32 v46, v46, v45, vcc')
        e('s_lshr_b32 s%d, s2, 3' % s_t1)
        e('s_bfe_u32 s%d, s2, 0x20001' % s_t0)
        e('s_mul_i32 s%d, s%d, 2304' % (s_tt, s_t0))
        e('s_mul_i32 s%d, s%d, %d' % (s_tt + 1, s_t1, 18 * 9216))
        e('s_add_u32 s%d, s%d, s%d' % (s_tt, s_tt, s_tt + 1))
        e('buffer_load_dword v47, v44, s[%d:%d], s%d offen' % (S_W1, S_W1 + 3, s_tt))
        e('s_lshl_b32 s%d, s%d, 5' % (s_t0, s_t0))
        e('s_add_u32 s%d, s%d, s%d' % (s_t0, s_t0, s_t1))
        e('s_mul_i32 s%d, s%d, 41472' % (s_t0, s_t0))
        if PREF2 > 1:
            e('buffer_load_dword v48, v46, s[%d:%d], s%d offen' % (S_W2, S_W2 + 3, s_t0))
        e('s_cmp_ge_u32 s2, 8')
        e('s_cbranch_scc1 .Lk0_notab')
        e.cond_begin()
        e('s_movk_i32 s%d, 0x%x' % (s_t0, T2_OFF))
        e('buffer_load_dword v49, v45, s[%d:%d], s%d offen' % (S_TAB, S_TAB + 3, s_t0))
        e.cond_end()
        e.label('.Lk0_notab')
    ln_rows(f, X0, T0_, M_, V_, Q_)
    f('s_mul_i32 s%d, s%d, %d' % (s_t0, s_wave, YROW))
    f('s_add_u32 s%d, s%d, 0x%x' % (s_t0, s_t0, YL))
    f('v_add_u32 v%d, s%d, v%d' % (F + 20, s_t0, F + 20))
    f('v_add_u32 v%d, s%d, v%d' % (F + 21, s_t0, F + 21))
    for j in range(8):
        f('ds_write_b16_d16_hi v%d, v%d offset:%d' % (F + 20, X0 + j, j * 32))
    f('ds_write_b16_d16_hi v%d, v%d offset:1024' % (F + 21, X0 + 8))
    D1 = F + 32
    for i in range(4):
        f('v_mfma_f32_16x16x32_f16 %s, %s, %s, 0' % (vr(D1 + 4 * i, 4), vr(A4, 4), vr(T + 4 * i, 4)))
    for i in range(4):
        f('v_mfma_f32_16x16x16_f16 %s, %s, %s, %s' % (vr(D1 + 4 * i, 4), vr(A2 + 2 * (i & 1), 2), vr(T + 16 + (i & 2), 2), vr(D1 + 4 * i, 4)))
    f('s_mul_i32 s%d, s%d, %d' % (s_t0, s_wave, TB.XL_ROW))
    f('s_add_u32 s%d, s%d, 0x%x' % (s_t0, s_t0, XL))
    for i in range(8):
        f('v_add_u32 v%d, s%d, v%d' % (T + 44 + i, s_t0, T + 44 + i))
    for ct in range(2):
        dre, dim = D1 + ct * 8, D1 + ct * 8 + 4
        twr, twi = T + 20 + ct * 8, T + 20 + ct * 8 + 4
        for r in range(4):
            f('v_mul_f32 v%d, v%d, v%d' % (F + 48 + r, dre + r, twr + r))
            f('v_mul_f32 v%d, v%d, v%d' % (dre + r, dre + r, twi + r))
        for r in range(4):
            f('v_fma_f32 v%d, -v%d, v%d, v%d' % (F + 48 + r, dim + r, twi + r, F + 48 + r))
            f('v_fmac_f32 v%d, v%d, v%d' % (dre + r, dim + r, twr + r))
        for r in range(4):
            f('v_cvt_pk_f16_f32 v%d, v%d, v%d' % (F + 24 + 4 * ct + r, F + 48 + r, dre + r))
    for ct in range(2):
        for ri in range(2):
            f('v_mfma_f32_16x16x32_f16 %s, %s, %s, 0' % (vr(D1 + (ct * 2 + ri) * 4, 4), vr(T + 36 + ri * 4, 4), vr(F + 24 + 4 * ct, 4)))
    for ct in range(2):
        for r in range(4):
            f('v_cvt_pk_f16_f32 v%d, v%d, v%d' % (D1 + ct * 8 + r, D1 + ct * 8 + r, D1 + ct * 8 + 4 + r))
            f('ds_write_b32 v%d, v%d' % (T + 44 + ct * 4 + r, D1 + ct * 8 + r))
    for i in range(8):
        e('v_lshl_or_b32 v%d, v%d, 16, v%d' % (WREG + i, WREG + 8 + i, WREG + i))
    M = WREG + 8
    for i in range(8):
        e('v_and_b32 v%d, 0x7fff7fff, v%d' % (M + i, WREG + i))
    for s_ in (4, 2, 1):
        for i in range(s_):
            e('v_pk_max_u16 v%d, v%d, v%d' % (M + i, M + i, M + i + s_))
    e('v_lshrrev_b32 v%d, 16, v%d' % (M + 1, M))
    e('v_and_b32 v%d, 0xffff, v%d' % (M, M))
    e('v_max_u32 v%d, v%d, v%d' % (M, M, M + 1))
    allreduce_wave(e, M, M + 1, 'v_max_u32')
    e('v_mov_b32 v%d, 0x%x' % (M + 1, WMX))
    e('s_mov_b64 exec, 1')
    e('ds_max_u32 v%d, v%d' % (M + 1, M))
    e('s_mov_b64 exec, -1')
    stamp(e, 1)
    e('s_waitcnt lgkmcnt(0)')
    e('s_barrier')
    e('v_and_b32 v%d, 7, v%d' % (v_t0, v_tid))
    e('v_mul_u32_u24 v32, %d, v%d' % (YROW, v_t0))
    e('v_lshrrev_b32 v%d, 5, v%d' % (v_t1, v_tid))
    e('v_lshl_add_u32 v32, v%d, 6, v32' % v_t1)
    e('v_bfe_u32 v%d, v%d, 3, 2' % (v_t1, v_tid))
    e('v_lshl_add_u32 v32, v%d, 3, v32' % v_t1)
    e('ds_read_b64 v[36:37], v32 offset:%d' % YL)
    e('ds_read_b64 v[38:39], v32 offset:%d' % (YL + 32))
    e('ds_read_b64 v[40:41], v32 offset:%d' % (YL + 1024))
    e('ds_read_b64 v[42:43], v32 offset:%d' % (YL + 1024 + 32))
    e('v_lshrrev_b32 v33, 3, v%d' % v_tid)
    e('v_lshlrev_b32 v33, 8, v33')
    e('v_lshl_add_u32 v33, v%d, 4, v33' % v_t0)
    e('s_lshr_b32 s%d, s%d, 1' % (s_t0, s_n2))
    e('s_mul_i32 s%d, s%d, 18432' % (s_t0, s_t0))
    e('s_and_b32 s%d, s%d, 1' % (s_t1, s_n2))
    e('s_lshl_b32 s%d, s%d, 7' % (s_t1, s_t1))
    e('s_add_u32 s%d, s%d, s%d' % (s_t0, s_t0, s_t1))
    e('s_mov_b32 s%d, s%d' % (s_tt, s_t0))
    e('s_cmp_ge_u32 s%d, 5' % s_wave)
    e('s_cbranch_scc1 .Lk0_nor8')
    e.cond_begin()
    G_ = F
    e('v_lshlrev_b32 v%d, 2, v%d' % (v_t0, v_tid))
    for n in range(8):
        e('ds_read_b32 v%d, v%d offset:%d' % (G_ + 16 + n, v_t0, XL + n * TB.XL_ROW))
    for n in range(8):
        e('v_cvt_f32_f16 v%d, v%d' % (G_ + 2 * n, G_ + 16 + n))
        e('v_cvt_f32_f16_sdwa v%d, v%d dst_sel:DWORD dst_unused:UNUSED_PAD src0_sel:WORD_1' % (G_ + 2 * n + 1, G_ + 16 + n))
    X = radix8(e, G_, G_ + 16, None)
    for k1 in range(8):
        x = X[k1]
        c, s = s_tw + 2 * k1, s_tw + 2 * k1 + 1
        t_ = G_ + 2 * k1
        e('v_mul_f32 v%d, s%d, v%d' % (t_, c, x))
        e('v_mul_f32 v%d, s%d, v%d' % (t_ + 1, s, x))
        e('v_mul_f32 v%d, s%d, v%d' % (x, s, x + 1))
        e('v_mul_f32 v%d, s%d, v%d' % (x + 1, c, x + 1))
        e('v_sub_f32 v%d, v%d, v%d' % (t_, t_, x))
        e('v_add_f32 v%d, v%d, v%d' % (t_ + 1, t_ + 1, x + 1))
        e('v_cvt_pk_f16_f32 v%d, v%d, v%d' % (G_ + 32 + k1, t_, t_ + 1))
    e('buffer_store_dwordx4 %s, v%d, s[%d:%d], s%d offen%s' % (vr(G_ + 32, 4), v_so, S_XF, S_XF + 3, s_xo, SCX))
    e('buffer_store_dwordx4 %s, v%d, s[%d:%d], s%d offen offset:16%s' % (vr(G_ + 36, 4), v_so, S_XF, S_XF + 3, s_xo, SCX))
    e('buffer_store_dwordx4 %s, v%d, s[%d:%d], s%d offen%s' % (vr(WREG, 4), v_so, S_WT, S_WT + 3, s_xo, SCX))
    e('buffer_store_dwordx4 %s, v%d, s[%d:%d], s%d offen offset:16%s' % (vr(WREG + 4, 4), v_so, S_WT, S_WT + 3, s_xo, SCX))
    e.cond_end()
    e.label('.Lk0_nor8')
    e('s_mov_b32 s%d, s%d' % (s_t0, s_tt))
    e('buffer_store_dwordx4 v[36:39], v33, s[%d:%d], s%d offen%s' % (S_Y, S_Y + 3, s_t0, SC))
    e('s_cmp_lg_u32 s%d, 0' % s_wave)
    e('s_cbranch_scc1 .Lk0_now0')
    e.cond_begin()
    e('s_add_u32 s%d, s%d, 16384' % (s_t0, s_t0))
    e('buffer_store_dwordx4 v[40:43], v33, s[%d:%d], s%d offen%s' % (S_Y, S_Y + 3, s_t0, SC))
    e('v_mov_b32 v34, 0x%x' % WMX)
    e('ds_read_b32 v35, v34')
    e('s_lshl_b32 s%d, s2, 2' % s_t0)
    e('v_mov_b32 v34, 0')
    e('buffer_store_dword v35, v34, s[%d:%d], s%d offen' % (S_WM, S_WM + 3, s_t0))
    e.cond_end()
    e.label('.Lk0_now0')
    stamp(e, 2)
    stamp(e, 3)
    stamp_store(e, 8, S_ST, s_wave, 3)
    e.label('.Lk0_end')
    e('s_endpgm')
    return e


def gen_k1p():
    e = Stream()
    S_Y, S_W1, S_B1, S_H, S_W2, S_ST = 16, 20, 24, 28, 32, 36
    s_wave, s_rb, s_cb, s_t0, s_t1, s_n0 = 56, 57, 58, 59, 60, 61
    s_par, s_hp, s_hs, s_n1 = 62, 63, 64, 65
    s_m0b, s_a0, s_a1 = 66, 67, 68
    s_so = 70
    vA = lambda rt, k: 112 + (k * 2 + rt) * 4
    vC1 = lambda rt, t: 64 + ((t >> 1) * 2 + rt) * 8 + (t & 1) * 4
    vC2 = lambda rt, t: (40 + rt * 8 + t * 4) if t < 2 else (56 + rt * 4)
    vB = lambda f: 16 + 4 * f
    v_be, v_bo, v_b2 = 1, 2, 9
    v_dma = [3, 4, 5]
    v_l16, v_t0, v_t1 = 6, 7, 8
    v_a0, v_a1, v_k1 = 10, 11, 12
    v_bz = 13
    k0 = -2.0 * (2.0 / np.pi) ** 0.5 * np.log2(np.e)

    e.label('k1_kernel')
    e('s_cmp_ge_u32 s2, 256')
    e('s_cbranch_scc1 .Lk1_end')
    stamp_entry(e)
    e('s_load_dwordx4 s[12:15], s[0:1], 32')
    e('s_load_dwordx2 s[10:11], s[0:1], 80')
    e('s_load_dwordx2 s[4:5], s[0:1], 48')
    e('v_lshrrev_b32 v1, 6, v0')
    e('v_and_b32 v0, 63, v0')
    e('v_readfirstlane_b32 s%d, v1' % s_wave)
    e('s_and_b32 s%d, s2, 7' % s_t0)
    e('s_lshr_b32 s%d, s2, 3' % s_t1)
    e('s_and_b32 s%d, s%d, 1' % (s_rb, s_t0))
    e('s_lshl_b32 s%d, s%d, 2' % (s_rb, s_rb))
    e('s_and_b32 s%d, s%d, 3' % (s_cb, s_t1))
    e('s_add_u32 s%d, s%d, s%d' % (s_rb, s_rb, s_cb))
    e('s_lshr_b32 s%d, s%d, 1' % (s_cb, s_t0))
    e('s_lshl_b32 s%d, s%d, 3' % (s_cb, s_cb))
    e('s_lshr_b32 s%d, s%d, 2' % (s_t1, s_t1))
    e('s_add_u32 s%d, s%d, s%d' % (s_cb, s_cb, s_t1))
    e('s_mul_i32 s%d, s%d, 288' % (s_n0, s_cb))
    e('s_and_b32 s%d, s%d, 1' % (s_par, s_cb))
    e('s_lshl_b32 s%d, s%d, 5' % (s_n1, s_par))
    e('s_add_u32 s%d, s%d, s%d' % (s_n1, s_n1, s_n0))
    e('s_lshl_b32 s%d, s%d, 10' % (s_m0b, s_wave))
    e('s_lshl_b32 s%d, s%d, 4' % (s_t0, s_rb))
    e('s_lshl_b32 s%d, s%d, 1' % (s_t1, s_wave))
    e('s_add_u32 s%d, s%d, s%d' % (s_t0, s_t0, s_t1))
    e('s_mul_i32 s%d, s%d, 18432' % (s_a0, s_t0))
    e('s_add_u32 s%d, s%d, 18432' % (s_a1, s_a0))
    e('v_lshlrev_b32 v%d, 4, v0' % v_l16)
    e('s_mul_i32 s%d, s%d, %d' % (s_t0, s_t0, 144 * 1024))
    e('v_add_u32 v%d, s%d, v%d' % (v_a0, s_t0, v_l16))
    e('v_add_u32 v%d, 0x%x, v%d' % (v_a1, 144 * 1024, v_a0))
    make_srd(e, S_Y, 10, Y_SZ, Y_OFF)

    def aload(k):
        st = Stream()
        for rt in range(2):
            so = (s_a0, s_a1)[rt]
            if k >= 4 and k % 4 == 0:
                st('s_add_u32 s%d, s%d, 4096' % (so, so))
            st('buffer_load_dwordx4 %s, v%d, s[%d:%d], s%d offen offset:%d' % (vr(vA(rt, k), 4), v_l16, S_Y, S_Y + 3, so, (k % 4) * 1024))
        return st

    e.extend(aload(0))
    make_srd(e, S_W1, 12, W1_SZ)

    def dma_setup(st, p2):
        st('s_lshl_b32 s%d, s%d, 6' % (s_t0, s_wave))
        st('s_mov_b32 s%d, 0x%x' % (s_t1, 0x2aaab if p2 else 0x15556))
        if p2:
            st('s_lshl_b32 s%d, s%d, 5' % (s_so + 2, s_par))
            st('s_add_u32 s%d, s%d, 192' % (s_so + 2, s_so + 2))
            st('s_mul_i32 s%d, s%d, 288' % (s_so + 3, s_par))
        for q in range(3):
            d = v_dma[q]
            st('v_add_u32 v%d, s%d, v0' % (d, s_t0))
            if q:
                st('v_add_u32 v%d, %d, v%d' % (d, q * 512, d))
            st('v_mul_u32_u24 v%d, s%d, v%d' % (v_t0, s_t1, d))
            st('v_lshrrev_b32 v%d, 20, v%d' % (v_t0, v_t0))
            st('v_mul_u32_u24 v%d, %d, v%d' % (v_t1, 6 if p2 else 12, v_t0))
            st('v_sub_u32 v%d, v%d, v%d' % (d, d, v_t1))
            if not p2:
                st('v_bfe_u32 v%d, v%d, 2, 1' % (v_t1, v_t0))
                st('v_lshlrev_b32 v%d, 1, v%d' % (v_t1, v_t1))
                st('v_xor_b32 v%d, v%d, v%d' % (d, d, v_t1))
                st('v_lshlrev_b32 v%d, 4, v%d' % (d, d))
            else:
                st('v_lshrrev_b32 v%d, 2, v%d' % (v_t1, d))
                st('v_mul_u32_u24 v%d, s%d, v%d' % (v_t1, s_so + 3, v_t1))
                st('v_lshlrev_b32 v%d, 4, v%d' % (d, d))
                st('v_add_u32 v%d, s%d, v%d' % (d, s_so + 2, d))
                st('v_sub_u32 v%d, v%d, v%d' % (d, d, v_t1))
            st('v_mul_u32_u24 v%d, 9216, v%d' % (v_t0, v_t0))
            st('v_add_u32 v%d, v%d, v%d' % (d, d, v_t0))

    dma_setup(e, False)

    def bdma(q):
        st = Stream()
        if q == 14:
            dma_setup(st, True)
        lim = {13: 4, 20: 6}.get(q)
        if lim:
            st('s_cmp_ge_u32 s%d, %d' % (s_wave, lim))
            st('s_cbranch_scc1 .Lk1_dma%d' % q)
            st.cond_begin()
        so = s_so + (q % 2)
        if q < 14:
            st('s_add_u32 s%d, s%d, 0x%x' % (so, s_n1, (q // 3) * 128 * 9216))
            pat = q % 3
        else:
            st('s_add_u32 s%d, s%d, 0x%x' % (so, s_n0, ((q - 14) // 3) * 256 * 9216))
            pat = (q - 14) % 3
        st('s_add_u32 m0, s%d, 0x%x' % (s_m0b, (q % 20) * 8192))
        st('buffer_load_dwordx4 v%d, s[%d:%d], s%d offen lds' % (v_dma[pat], S_W1, S_W1 + 3, so), tok=('d', q))
        if lim:
            st.cond_end()
            st.label('.Lk1_dma%d' % q)
        return st

    nq = [0]
    na = [1]

    def issue_upto(st, ka, qlim):
        while True:
            did = False
            if nq[0] < min(qlim, 21):
                st.extend(bdma(nq[0]))
                nq[0] += 1
                did = True
            if na[0] < min(ka, 18):
                st.extend(aload(na[0]))
                na[0] += 1
                did = True
            if not did:
                break

    issue_upto(e, 2, 3)
    make_srd(e, S_B1, 14, 9216)
    e('v_lshrrev_b32 v%d, 4, v0' % v_t0)
    e('v_lshlrev_b32 v%d, 3, v%d' % (v_bz, v_t0))
    for t in range(6):
        e('buffer_load_dwordx2 %s, v%d, s[%d:%d], s%d offen offset:%d' % (vr(40 + 4 * t, 2), v_bz, S_B1, S_B1 + 3, s_n1, t * 32))
    LA, LQ = int(os.environ.get('K1LA', '6')), int(os.environ.get('K1LQ', '5'))
    issue_upto(e, LA, LQ)
    make_srd(e, S_H, 10, H_SZ, H_OFF)
    make_srd(e, S_W2, 4, W1_SZ)
    if STAMP:
        make_srd(e, S_ST, 10, 1 << 20, ST_OFF)
    stamp(e, 0)
    e('v_lshrrev_b32 v%d, 2, v0' % v_t0)
    e('v_mul_u32_u24 v%d, 192, v%d' % (v_be, v_t0))
    e('v_and_b32 v%d, 3, v0' % v_t1)
    e('v_lshl_add_u32 v%d, v%d, 3, v%d' % (v_be, v_t1, v_be))
    e('v_mul_u32_u24 v%d, 96, v%d' % (v_b2, v_t0))
    e('v_lshl_add_u32 v%d, v%d, 3, v%d' % (v_b2, v_t1, v_b2))
    e('v_bfe_u32 v%d, v0, 4, 1' % v_t1)
    e('v_lshlrev_b32 v%d, 5, v%d' % (v_t1, v_t1))
    e('v_sub_u32 v%d, v%d, v%d' % (v_bo, v_be, v_t1))
    e('v_add_u32 v%d, 32, v%d' % (v_bo, v_bo))
    e('v_add_u32 v%d, v%d, v%d' % (v_be, v_be, v_t1))
    e('v_mov_b32 v%d, %s' % (v_k1, fbits(k0 * 0.044715)))
    e('s_mul_i32 s%d, s%d, 9' % (s_t1, s_cb))
    e('s_add_u32 s%d, s%d, s%d' % (s_hp, s_t1, s_par))
    e('s_lshl_b32 s%d, s%d, 9' % (s_hp, s_hp))
    e('s_add_u32 s%d, s%d, 4096' % (s_hs, s_hp))
    e('s_sub_u32 s%d, s%d, 1016' % (s_t0, s_hp))
    e('s_cmp_eq_u32 s%d, 1' % s_par)
    e('s_cselect_b32 s%d, s%d, s%d' % (s_hs, s_t0, s_hs))
    for t in range(6):
        b = 40 + 4 * t
        e('v_and_b32 v%d, 0xffff0000, v%d' % (b + 3, b + 1))
        e('v_lshlrev_b32 v%d, 16, v%d' % (b + 2, b + 1))
        e('v_and_b32 v%d, 0xffff0000, v%d' % (b + 1, b))
        e('v_lshlrev_b32 v%d, 16, v%d' % (b, b))

    WIN = 55296
    ring1 = lambda k: k * 6144
    ring2 = lambda k: ((112 + 3 * k) % 160) * 1024
    wbase = {v_be: 0, v_bo: 0, v_b2: 0}

    def based(st, reg, ro, span):
        if not (0 <= ro - wbase[reg] and ro - wbase[reg] + span <= 65536):
            st('v_add_u32 v%d, 0x%x, v%d' % (reg, (ro - wbase[reg]) & 0xffffffff, reg))
            wbase[reg] = ro
        return ro - wbase[reg]

    def fread(st, p, al):
        f_ = p % 6
        if p < 108:
            k, t = divmod(p, 6)
            reg = (v_be, v_bo)[t & 1]
            off = based(st, reg, ring1(k), 6144) + al * 3072 + (t >> 1) * 64
        else:
            k, t = divmod(p - 108, 3)
            reg = v_b2
            off = based(st, reg, ring2(k), 3072) + al * 1536 + t * 32
        st('ds_read_b64_tr_b16 %s, v%d offset:%d' % (vr(vB(f_) + 2 * al, 2), reg, off))

    def slots_for(p):
        if p < 108:
            return min(-(-(p // 6 + 1) * 6 // 8), 14)
        return 14 + min(-(-((p - 108) // 3 + 1) * 3 // 8), 7)

    def mf(p, rt):
        if p < 108:
            k, t = divmod(p, 6)
            c = vC1(rt, t)
            cin = vr(c, 4) if k else vr(40 + 4 * t, 4)
        else:
            k, t = divmod(p - 108, 3)
            c = vC2(rt, t)
            cin = vr(c, 4)
        return 'v_mfma_f32_16x16x32_bf16 %s, %s, %s, %s' % (vr(c, 4), vr(vB(p % 6), 4), vr(vA(rt, k), 4), cin)

    def bias2():
        st = Stream()
        st('s_add_u32 s%d, s%d, 192' % (s_so + 2, s_n1))
        st('buffer_load_dwordx2 %s, v%d, s[%d:%d], s%d offen' % (vr(vC2(1, 0), 2), v_bz, S_B1, S_B1 + 3, s_so + 2))
        st('buffer_load_dwordx2 %s, v%d, s[%d:%d], s%d offen offset:32' % (vr(vC2(1, 1), 2), v_bz, S_B1, S_B1 + 3, s_so + 2))
        st('s_mul_i32 s%d, s%d, 256' % (s_so + 3, s_par))
        st('s_sub_u32 s%d, 256, s%d' % (s_so + 3, s_so + 3))
        st('s_add_u32 s%d, s%d, s%d' % (s_so + 3, s_so + 3, s_n0))
        st('buffer_load_dwordx2 %s, v%d, s[%d:%d], s%d offen' % (vr(vC2(1, 2), 2), v_bz, S_B1, S_B1 + 3, s_so + 3))
        un = Stream()
        for t in range(3):
            a, b = vC2(0, t), vC2(1, t)
            un('v_lshlrev_b32 v%d, 16, v%d' % (a, b))
            un('v_and_b32 v%d, 0xffff0000, v%d' % (a + 1, b))
            un('v_lshlrev_b32 v%d, 16, v%d' % (a + 2, b + 1))
            un('v_and_b32 v%d, 0xffff0000, v%d' % (a + 3, b + 1))
            for r in range(4):
                un('v_mov_b32 v%d, v%d' % (b + r, a + r))
        return st, un

    def epi(accf, tiles, T):
        st = Stream()
        n = len(tiles)
        for rt in range(2):
            w_ = T + 8 * rt
            A = accf(rt, tiles[0])
            E = range(4 * n)
            for r in E:
                st('v_mul_f32 v%d, v%d, v%d' % (w_ + r, A + r, A + r))
            for r in E:
                st('v_fmaak_f32 v%d, v%d, v%d, %s' % (w_ + r, v_k1, w_ + r, fbits(k0)))
            for r in E:
                st('v_mul_f32 v%d, v%d, v%d' % (w_ + r, w_ + r, A + r))
            for r in E:
                st('v_exp_f32 v%d, v%d' % (w_ + r, w_ + r))
            for r in E:
                st('v_add_f32 v%d, 1.0, v%d' % (w_ + r, w_ + r))
            for r in E:
                st('v_rcp_f32 v%d, v%d' % (w_ + r, w_ + r))
            for r in E:
                st('v_mul_f32 v%d, v%d, v%d' % (w_ + r, A + r, w_ + r))
            for j in range(2 * n):
                st('v_cvt_pk_bf16_f32 v%d, v%d, v%d' % (A + j, w_ + 2 * j, w_ + 2 * j + 1))
            if n == 2:
                st('buffer_store_dwordx4 %s, v%d, s[%d:%d], s%d offen offset:%d%s' % (vr(A, 4), (v_a0, v_a1)[rt], S_H, S_H + 3, s_hp, (tiles[0] >> 1) * 1024, SC))
            else:
                st('buffer_store_dwordx2 %s, v%d, s[%d:%d], s%d offen%s' % (vr(A, 2), (v_a0, v_a1)[rt], S_H, S_H + 3, s_hs, SC))
        return st

    def touch_w2():
        st = Stream()
        st('s_mul_i32 s%d, s%d, 41' % (s_t0, s_wave))
        st('v_add_u32 v%d, s%d, v0' % (v_t0, s_t0))
        st('v_cmp_gt_u32 vcc, 41, v0')
        st('v_lshlrev_b32 v%d, 7, v%d' % (v_t0, v_t0))
        st('v_mov_b32 v%d, 0x7ffffff0' % v_t1)
        st('v_cndmask_b32 v%d, v%d, v%d, vcc' % (v_t1, v_t1, v_t0))
        st('s_bfe_u32 s%d, s2, 0x20001' % s_t0)
        st('s_lshl_b32 s%d, s%d, 5' % (s_t0, s_t0))
        st('s_lshr_b32 s%d, s2, 3' % s_t1)
        st('s_add_u32 s%d, s%d, s%d' % (s_t0, s_t0, s_t1))
        st('s_mul_i32 s%d, s%d, 41472' % (s_t0, s_t0))
        st('buffer_load_dword v14, v%d, s[%d:%d], s%d offen' % (v_t1, S_W2, S_W2 + 3, s_t0))
        return st

    GRP, D = 12, 5
    stamp(e, 2)
    e('s_barrier', needs=[('d', q) for q in range(slots_for(GRP + D - 1))])
    stamp(e, 3)
    for p in range(D):
        fread(e, p, 0)
        fread(e, p, 1)
    epi_items = []
    for m in range(3):
        epi_items += epi(vC1, [2 * m, 2 * m + 1], vA(0, 0)).items
    ne = len(epi_items)
    b2l, b2u = bias2()
    TW2G = int(os.environ.get('K1TW2', '8'))
    for g in range(14):
        p0, p1 = g * GRP, min((g + 1) * GRP, 162)
        fill = Stream()
        stamp(e, 0, grp=g)
        if g == 9:
            stamp(e, 4)
        if g > 0:
            e('s_barrier', needs=[('d', q) for q in range(slots_for(min(p1 + D - 1, 161)))])
        want = slots_for(min(p1 + D - 1 + LQ * 8, 161))
        if g == 0:
            want = min(want, 20)
        issue_upto(fill, 2 * g + 2 + LA, want)
        if g == 5:
            fill.extend(b2l)
        if g == 8:
            fill.extend(b2u)
        if g == TW2G and PREF2 == 1:
            fill.extend(touch_w2())
        main = Stream()
        for p in range(p0, p1):
            main(mf(p, 0))
            if p + D < 162:
                fread(main, p + D, 0)
            main(mf(p, 1))
            if p + D < 162:
                fread(main, p + D, 1)
        if g == 9:
            h1 = Stream(); h1.items = main.items[:len(main.items) // 2 + 2]
            h2 = Stream(); h2.items = main.items[len(main.items) // 2 + 2:]
            e.extend(merge_keep(h1, fill))
            f2 = Stream(); f2.items = epi_items[:ne * 12 // 100]
            e.extend(merge_keep(h2, f2))
            continue
        if g >= 10:
            lo, hi = {10: (12, 37), 11: (37, 62), 12: (62, 87), 13: (87, 100)}[g]
            fill.items.extend(epi_items[ne * lo // 100: ne * hi // 100])
        e.extend(merge_keep(main, fill))
    stamp(e, 5)
    e.extend(epi(lambda rt, t: vC2(rt, t - 6), [6, 7], vA(0, 0)))
    e.extend(epi(lambda rt, t: vC2(rt, t - 6), [8], vA(0, 2)))
    stamp(e, 6)
    stamp_store(e, 8, S_ST, s_wave, 0)
    e.label('.Lk1_end')
    e('s_endpgm')
    return e


if __name__ == '__main__':
    ks = [('k0_kernel', gen_k0(), 256, 512, 36864, 184, 102, 184),
          ('k1_kernel', gen_k1p(), 256, 512, 163840, 256, 102, 256),
          ('k2_kernel', gen_k2(), 256, 512, 163840, 256, 102, 256),
          ('k3_kernel', gen_k3(), 256, 512, 70144, 176, 102, 176)]
    dst = sys.argv[1] if len(sys.argv) > 1 else 'cdna_kernels/%s.s' % NAME
    open(dst, 'w').write(build(ks))
    print('wrote', dst)
```

```python
import sys
import struct
import numpy as np
from asmgen import Stream, merge, finalize
import tables as TB

NAME = 'recurrent_scan__spectral_gfnet__mixer_channel_mlp__prompt'

H_OFF, P_OFF, XF_OFF, WT_OFF, YF_OFF, WM_OFF = 0, 0x1200000, 0x2400000, 0x2700000, 0x2A00000, 0x2D00000
H_SZ = 2048 * 4608 * 2
P_SZ = 4 * 2048 * 576 * 4
XF_ROW = 9344
XF_SZ = 256 * XF_ROW
X_SZ = 2048 * 576 * 2
W_SZ = 2048 * 289 * 2
W1_SZ = 576 * 4608 * 2

T1_OFF = 0
T2_OFF = T1_OFF + 52 * 256
T3_OFF = T2_OFF + 16 * 256
TW8_OFF = T3_OFF + 56 * 256
TAB_SZ = TW8_OFF + 256 * 64


def fbits(x):
    return '0x%08x' % struct.unpack('<I', struct.pack('<f', x))[0]


def vr(base, n=1):
    return 'v%d' % base if n == 1 else 'v[%d:%d]' % (base, base + n - 1)


def ar(base, n=1):
    return 'a%d' % base if n == 1 else 'a[%d:%d]' % (base, base + n - 1)


def sr(base, n=1):
    return 's%d' % base if n == 1 else 's[%d:%d]' % (base, base + n - 1)


def make_srd(e, d, ptr, size, off=0):
    if off:
        e('s_add_u32 s%d, s%d, 0x%x' % (d, ptr, off))
        e('s_addc_u32 s%d, s%d, 0' % (d + 1, ptr + 1))
    else:
        e('s_mov_b32 s%d, s%d' % (d, ptr))
        e('s_mov_b32 s%d, s%d' % (d + 1, ptr + 1))
    e('s_mov_b32 s%d, 0x%x' % (d + 2, size))
    e('s_mov_b32 s%d, 0x20000' % (d + 3))


def table_srd(e, d, tag):
    e('s_getpc_b64 s[%d:%d]' % (d, d + 1))
    e.label('.Lpc_%s' % tag)
    e('s_add_u32 s%d, s%d, const_tab-.Lpc_%s' % (d, d, tag))
    e('s_addc_u32 s%d, s%d, 0' % (d + 1, d + 1))
    e('s_mov_b32 s%d, 0x%x' % (d + 2, TAB_SZ))
    e('s_mov_b32 s%d, 0x20000' % (d + 3))


def allreduce_rows(e, v, t, op='v_add_f32'):
    e('v_mov_b32 v%d, v%d' % (t, v))
    e('v_permlane16_swap_b32 v%d, v%d' % (v, t))
    e('%s v%d, v%d, v%d' % (op, v, v, t))
    e('v_mov_b32 v%d, v%d' % (t, v))
    e('v_permlane32_swap_b32 v%d, v%d' % (v, t))
    e('%s v%d, v%d, v%d' % (op, v, v, t))


def allreduce_wave(e, v, t, op='v_add_f32'):
    for rot in (8, 4, 2, 1):
        e('%s_dpp v%d, v%d, v%d row_ror:%d row_mask:0xf bank_mask:0xf' % (op, v, v, v, rot))
    allreduce_rows(e, v, t, op)


def cadd(e, d, a, b):
    e('v_add_f32 v%d, v%d, v%d' % (d, a, b))
    e('v_add_f32 v%d, v%d, v%d' % (d + 1, a + 1, b + 1))


def csub(e, d, a, b):
    e('v_sub_f32 v%d, v%d, v%d' % (d, a, b))
    e('v_sub_f32 v%d, v%d, v%d' % (d + 1, a + 1, b + 1))


def cadd_mi(e, d, a, b):
    e('v_add_f32 v%d, v%d, v%d' % (d, a, b + 1))
    e('v_sub_f32 v%d, v%d, v%d' % (d + 1, a + 1, b))


def cadd_pi(e, d, a, b):
    e('v_sub_f32 v%d, v%d, v%d' % (d, a, b + 1))
    e('v_add_f32 v%d, v%d, v%d' % (d + 1, a + 1, b))


def radix8(e, a, t, s_r2, inverse=False):
    mi, pi = (cadd_mi, cadd_pi) if not inverse else (cadd_pi, cadd_mi)
    r2 = fbits(0.5 ** 0.5)
    nr2 = fbits(-(0.5 ** 0.5))
    A = [a + 2 * n for n in range(8)]
    U = [t + 2 * n for n in range(4)]
    V = [t + 8 + 2 * n for n in range(4)]
    for n in range(4):
        cadd(e, U[n], A[n], A[n + 4])
        csub(e, V[n], A[n], A[n + 4])
    mi(e, A[4], V[1], V[1])
    pi(e, A[5], V[3], V[3])
    e('v_mul_f32 v%d, %s, v%d' % (V[1], r2, A[4]))
    e('v_mul_f32 v%d, %s, v%d' % (V[1] + 1, r2, A[4] + 1))
    e('v_mul_f32 v%d, %s, v%d' % (V[3], nr2, A[5]))
    e('v_mul_f32 v%d, %s, v%d' % (V[3] + 1, nr2, A[5] + 1))
    S = [A[0], A[1], A[2], A[3]]
    cadd(e, S[0], U[0], U[2])
    csub(e, S[1], U[0], U[2])
    cadd(e, S[2], U[1], U[3])
    csub(e, S[3], U[1], U[3])
    cadd(e, U[0], S[0], S[2])
    csub(e, U[2], S[0], S[2])
    mi(e, U[1], S[1], S[3])
    pi(e, U[3], S[1], S[3])
    S = [A[4], A[5], A[6], A[7]]
    mi(e, S[0], V[0], V[2])
    pi(e, S[1], V[0], V[2])
    cadd(e, S[2], V[1], V[3])
    csub(e, S[3], V[1], V[3])
    cadd(e, V[0], S[0], S[2])
    csub(e, V[2], S[0], S[2])
    mi(e, V[1], S[1], S[3])
    pi(e, V[3], S[1], S[3])
    return [U[0], V[0], U[1], V[1], U[2], V[2], U[3], V[3]]


def bf16_round1(e, v):
    e('v_cvt_pk_bf16_f32 v%d, v%d, v%d' % (v, v, v))
    e('v_lshlrev_b32 v%d, 16, v%d' % (v, v))


import os
STAMP = os.environ.get('STAMP')
MEGA = int(os.environ.get('MEGA', '0'))
FLG_OFF = 0x3300000
S_FLG, s_pwave, s_nonce = 92, 88, 90
LD1 = ' sc1' if MEGA else ''


def phase_begin(e, name):
    if not MEGA:
        e.label('%s_kernel' % name)
        e('s_cmp_ge_u32 s2, 256')
        e('s_cbranch_scc1 .L%s_end' % name)
    else:
        e('v_mbcnt_lo_u32_b32 v0, -1, 0')
        e('v_mbcnt_hi_u32_b32 v0, -1, v0')
        e('s_lshl_b32 s86, s%d, 6' % s_pwave)
        e('v_add_u32 v0, s86, v0')


def phase_end(e, name):
    if not MEGA:
        e.label('.L%s_end' % name)
        e('s_endpgm')


_uid = [0]


def publish(e, arr, s_idx):
    _uid[0] += 1
    u = _uid[0]
    e('s_waitcnt vmcnt(0)')
    e('s_barrier')
    e('s_cmp_lg_u32 s%d, 0' % s_pwave)
    e('s_cbranch_scc1 .Lpub%d' % u)
    e.cond_begin()
    e('s_lshl_b32 s86, s%d, 3' % s_idx)
    e('s_add_u32 s86, s86, %d' % (arr * 2048))
    e('v_mov_b32 v2, s%d' % s_nonce)
    e('v_mov_b32 v3, s%d' % (s_nonce + 1))
    e('v_mov_b32 v1, 0')
    e('s_mov_b64 exec, 1')
    e('buffer_store_dwordx2 v[2:3], v1, s[%d:%d], s86 offen sc1' % (S_FLG, S_FLG + 3))
    e('s_mov_b64 exec, -1')
    e.cond_end()
    e.label('.Lpub%d' % u)


def wait_flags(e, specs, vt=1):
    _uid[0] += 1
    u = _uid[0]
    e('s_cmp_lg_u32 s%d, 0' % s_pwave)
    e('s_cbranch_scc1 .Lwf%d_done' % u)
    e.cond_begin()
    e('v_mbcnt_lo_u32_b32 v%d, -1, 0' % vt)
    e('v_mbcnt_hi_u32_b32 v%d, -1, v%d' % (vt, vt))
    loads = []
    base = (vt + 4) & ~1
    na = 0
    for (arr, s_first, n) in specs:
        va = vt + 1 if na == 0 else vt + 2
        na += 1
        e('v_and_b32 v%d, %d, v%d' % (va, min(n, 64) - 1, vt))
        if s_first is not None:
            e('v_add_u32 v%d, s%d, v%d' % (va, s_first, va))
        e('v_lshlrev_b32 v%d, 3, v%d' % (va, va))
        for j in range(max(n // 64, 1)):
            loads.append((va, arr * 2048 + j * 512))
    assert len(loads) <= 5
    e('s_mov_b32 s87, 0')
    e.label('.Lwf%d_loop' % u)
    for i, (va, off) in enumerate(loads):
        e('s_movk_i32 s86, %d' % off)
        e('buffer_load_dwordx2 v[%d:%d], v%d, s[%d:%d], s86 offen sc1' % (base + 2 * i, base + 2 * i + 1, va, S_FLG, S_FLG + 3))
    e('s_waitcnt vmcnt(0)')
    e('s_mov_b64 s[84:85], -1')
    for i in range(len(loads)):
        e('v_cmp_eq_u64 vcc, s[%d:%d], v[%d:%d]' % (s_nonce, s_nonce + 1, base + 2 * i, base + 2 * i + 1))
        e('s_nop 1')
        e('s_and_b64 s[84:85], s[84:85], vcc')
    e('s_cmp_eq_u64 s[84:85], -1')
    e('s_cbranch_scc1 .Lwf%d_ok' % u)
    e('s_sleep 1')
    e('s_add_u32 s87, s87, 1')
    e('s_cmp_lt_u32 s87, 0x40000')
    e('s_cbranch_scc1 .Lwf%d_loop' % u)
    e.label('.Lwf%d_ok' % u)
    e.cond_end()
    e.label('.Lwf%d_done' % u)
    e('s_barrier')
PREF = int(os.environ.get('PREF', '0'))
PREF2 = int(os.environ.get('PREF2', '1'))
SC = os.environ.get('SC', ' sc1')
SCX = os.environ.get('SCX', ' sc1' if MEGA else '')
XT_SZ = 289 * 8192
ST_OFF = 0x2E00000


STG = [int(x) for x in os.environ.get('STG', '').split(',') if x]


def stamp(e, idx, base=4, grp=None):
    if not STAMP:
        return
    if STG:
        if grp is None or grp not in STG:
            return
        idx = STG.index(grp)
    elif grp is not None:
        return
    e('s_memtime s[100:101]')
    e('s_waitcnt lgkmcnt(0)')
    e('s_mov_b32 s%d, s100' % (base + idx))


def stamp_entry(e):
    if not STAMP:
        return
    e('s_memtime s[100:101]')
    e('s_waitcnt lgkmcnt(0)')
    e('s_mov_b32 s3, s100')


def stamp_store(e, n, s_ws_srd, s_wave, kidx, base=4, nw=8):
    if not STAMP:
        return
    if os.environ.get('XCC'):
        e('s_getreg_b32 s%d, hwreg(HW_REG_XCC_ID)' % (base + 7))
    e('s_mul_i32 s98, s2, %d' % nw)
    e('s_add_u32 s98, s98, s%d' % s_wave)
    e('s_lshl_b32 s98, s98, 5')
    e('s_add_u32 s98, s98, %d' % (kidx * 65536))
    e('v_mov_b32 v1, 0')
    for i in range(n):
        e('v_mov_b32 v2, s%d' % (base + i - 1))
        e('buffer_store_dword v2, v1, s[%d:%d], s98 offen offset:%d' % (s_ws_srd, s_ws_srd + 3, 4 * i))


def gen_k1():
    e = Stream()
    ALDS = 0
    BR = 65536
    TL = BR + 72 * 1024
    XL = TL + 13 * 1024
    MISC = 162560
    CS, BB, WMX = MISC, MISC + 576, MISC + 1152
    assert XL + 8 * TB.XL_ROW <= MISC
    S_X, S_WR, S_WI, S_W1, S_B1, S_H, S_XF, S_WT, S_TAB = 16, 20, 24, 28, 32, 36, 40, 44, 48
    S_WM = 52
    s_wave, s_rb, s_cb, s_t0, s_t1, s_n0 = 56, 57, 58, 59, 60, 61
    s_par, s_hp, s_hs = 62, 63, 64
    s_n1 = 65
    s_r2 = 66
    s_w3 = 68
    s_xo = 69
    s_m0b = 70
    s_m0a = 71
    s_ex = 72
    s_arow = 74
    s_n2 = 75
    s_tw = 76
    s_so = 92
    S_W2 = 96
    vA = lambda rt, k: 112 + (k * 2 + rt) * 4
    vC1 = lambda rt, t: 64 + ((t >> 1) * 2 + rt) * 8 + (t & 1) * 4
    vC2 = lambda rt, t: (40 + rt * 8 + t * 4) if t < 2 else (56 + rt * 4)
    vB = lambda f: 16 + 4 * f
    v_be, v_bo = 1, 2
    v_dma = [3, 4, 5]
    v_st = [6, 7, 8, 9]
    v_a0, v_a1 = 10, 11
    v_t0, v_t1, v_csa, v_tid = 12, 13, 14, 15
    vG = lambda rt: 40 + rt * 4
    vS = lambda rt: 48 + rt * 4
    vCSA, vCSF = 56, 60
    vONE = 6
    k0 = -2.0 * (2.0 / np.pi) ** 0.5 * np.log2(np.e)

    e.label('k1_kernel')
    e('s_cmp_ge_u32 s2, 256')
    e('s_cbranch_scc1 .Lk1_end')
    stamp_entry(e)
    e('s_load_dwordx4 s[4:7], s[0:1], 0')
    e('s_load_dwordx2 s[8:9], s[0:1], 16')
    e('s_load_dwordx4 s[12:15], s[0:1], 32')
    e('s_load_dwordx2 s[10:11], s[0:1], 80')
    e('s_load_dwordx2 s[%d:%d], s[0:1], 48' % (S_W2, S_W2 + 1))
    table_srd(e, S_TAB, 'k1')
    e('v_mov_b32 v%d, v0' % v_tid)
    e('v_lshrrev_b32 v1, 6, v0')
    e('v_and_b32 v0, 63, v0')
    e('v_readfirstlane_b32 s%d, v1' % s_wave)
    e('s_and_b32 s%d, s2, 7' % s_t0)
    e('s_lshr_b32 s%d, s2, 3' % s_t1)
    e('s_lshl_b32 s%d, s%d, 5' % (s_n2, s_t0))
    e('s_add_u32 s%d, s%d, s%d' % (s_n2, s_n2, s_t1))
    e('s_and_b32 s%d, s%d, 1' % (s_rb, s_t0))
    e('s_lshl_b32 s%d, s%d, 2' % (s_rb, s_rb))
    e('s_and_b32 s%d, s%d, 3' % (s_cb, s_t1))
    e('s_add_u32 s%d, s%d, s%d' % (s_rb, s_rb, s_cb))
    e('s_lshr_b32 s%d, s%d, 1' % (s_cb, s_t0))
    e('s_lshl_b32 s%d, s%d, 3' % (s_cb, s_cb))
    e('s_lshr_b32 s%d, s%d, 2' % (s_t1, s_t1))
    e('s_add_u32 s%d, s%d, s%d' % (s_cb, s_cb, s_t1))
    e('s_mul_i32 s%d, s%d, 288' % (s_n0, s_cb))
    e('s_and_b32 s%d, s%d, 1' % (s_par, s_cb))
    e('s_lshl_b32 s%d, s%d, 5' % (s_n1, s_par))
    e('s_add_u32 s%d, s%d, s%d' % (s_n1, s_n1, s_n0))
    e('s_lshl_b32 s%d, s%d, 13' % (s_m0a, s_wave))
    e('s_lshl_b32 s%d, s%d, 10' % (s_m0b, s_wave))
    e('v_lshlrev_b32 v3, 4, v0')
    e('s_add_u32 m0, s%d, 0x%x' % (s_m0b, TL))
    e('buffer_load_dwordx4 v3, s[%d:%d], s%d offen lds' % (S_TAB, S_TAB + 3, s_m0b), tok=('tl', 0))
    e('s_add_u32 s%d, s%d, 8192' % (s_t0, s_m0b))
    e('s_add_u32 m0, s%d, 0x%x' % (s_m0b, TL + 8192))
    e('buffer_load_dwordx4 v3, s[%d:%d], s%d offen lds' % (S_TAB, S_TAB + 3, s_t0), tok=('tl', 1))
    e('s_add_u32 s%d, s%d, 0x%x' % (s_m0b, s_m0b, BR))
    e('v_lshrrev_b32 v%d, 4, v0' % v_t0)
    e('v_and_b32 v%d, 15, v0' % v_t1)
    F = 192
    xl_items = []
    e('v_lshlrev_b32 v1, 8, v%d' % v_t0)
    e('v_lshl_add_u32 v%d, v%d, 1, v1' % (F + 20, v_t1))
    e('v_lshlrev_b32 v2, 5, v%d' % v_t0)
    e('v_lshl_add_u32 v%d, v%d, 1, v2' % (F + 21, v_t1))
    e('s_lshl_b32 s%d, s%d, 8' % (s_t0, s_wave))
    e('s_add_u32 s%d, s%d, s%d' % (s_t0, s_t0, s_n2))
    e('s_mul_i32 s%d, s%d, 1152' % (s_hp, s_t0))
    make_srd(e, S_X, 4, X_SZ)
    for j in range(8):
        xl_items.append('buffer_load_ushort v%d, v%d, s[%d:%d], s%d offen offset:%d' % (F + j, F + 20, S_X, S_X + 3, s_hp, j * 32))
    xl_items.append('buffer_load_ushort v%d, v%d, s[%d:%d], s%d offen offset:1024' % (F + 8, F + 21, S_X, S_X + 3, s_hp))
    make_srd(e, S_W1, 12, W1_SZ)
    e('s_lshl_b32 s%d, s%d, 5' % (s_t0, s_rb))
    e('s_lshl_b32 s%d, s%d, 2' % (s_t1, s_wave))
    e('s_add_u32 s%d, s%d, s%d' % (s_t0, s_t0, s_t1))
    e('s_mul_i32 s%d, s%d, 1152' % (s_arow, s_t0))
    e('v_lshrrev_b32 v1, 3, v0')
    e('v_lshrrev_b32 v2, 4, v0')
    e('v_xor_b32 v2, v2, v0')
    e('v_and_b32 v2, 7, v2')
    e('v_mul_u32_u24 v1, %d, v1' % (256 * 1152))
    e('v_lshl_add_u32 v%d, v2, 4, v1' % v_a0)
    e('v_xor_b32 v2, 4, v2')
    e('v_lshl_add_u32 v%d, v2, 4, v1' % v_a1)
    e('v_add_u32 v%d, %d, v%d' % (v_a1, 1152, v_a1))

    def adma(c):
        st = Stream()
        for j in range(4):
            so = s_so + 2 + (j >> 1)
            if j % 2 == 0:
                st('s_add_u32 s%d, s%d, 0x%x' % (so, s_arow, (j >> 1) * 2 * 1152 + c * 128))
            st('s_add_u32 m0, s%d, 0x%x' % (s_m0a, ALDS + (c & 1) * 4096 + j * 1024))
            st('buffer_load_dwordx4 v%d, s[%d:%d], s%d offen lds' % ((v_a0, v_a1)[j & 1], S_X, S_X + 3, so), tok=('a', c),
               needs=[('ar', c - 2)] if j == 0 else None)
        return st

    e.extend(adma(0))
    e('s_lshl_b32 s%d, s%d, 6' % (s_t0, s_wave))
    e('s_mov_b32 s%d, 0x15556' % s_t1)
    for q in range(3):
        d = v_dma[q]
        e('v_add_u32 v%d, s%d, v0' % (d, s_t0))
        if q:
            e('v_add_u32 v%d, %d, v%d' % (d, q * 512, d))
        e('v_mul_u32_u24 v1, s%d, v%d' % (s_t1, d))
        e('v_lshrrev_b32 v1, 20, v1')
        e('v_mul_u32_u24 v2, 12, v1')
        e('v_sub_u32 v2, v%d, v2' % d)
        e('v_bfe_u32 v%d, v1, 3, 1' % d)
        e('v_lshlrev_b32 v%d, 1, v%d' % (d, d))
        e('v_xor_b32 v2, v2, v%d' % d)
        e('v_mul_u32_u24 v1, 9216, v1')
        e('v_lshl_add_u32 v%d, v2, 4, v1' % d)

    def dma1(q):
        st = Stream()
        cond = (q == 13)
        if cond:
            st('s_cmp_ge_u32 s%d, 4' % s_wave)
            st('s_cbranch_scc1 .Lk1_dma13')
            st.cond_begin()
        so = s_so + (q % 2)
        st('s_add_u32 s%d, s%d, 0x%x' % (so, s_n1, (q // 3) * 128 * 9216))
        st('s_add_u32 m0, s%d, 0x%x' % (s_m0b, (q % 9) * 8192))
        st('buffer_load_dwordx4 v%d, s[%d:%d], s%d offen lds' % (v_dma[q % 3], S_W1, S_W1 + 3, so), tok=('d1', q))
        if cond:
            st.cond_end()
            st.label('.Lk1_dma13')
        return st

    def dma2(q):
        st = Stream()
        cond = (q == 6)
        if cond:
            st('s_cmp_ge_u32 s%d, 6' % s_wave)
            st('s_cbranch_scc1 .Lk1_dma26')
            st.cond_begin()
        so = s_so + (q % 2)
        st('s_add_u32 s%d, s%d, 0x%x' % (so, s_n0, (q // 3) * 256 * 9216))
        st('s_add_u32 m0, s%d, 0x%x' % (s_m0b, ((6 + q) % 9) * 8192))
        st('buffer_load_dwordx4 v%d, s[%d:%d], s%d offen lds' % (v_dma[q % 3], S_W1, S_W1 + 3, so), tok=('d2', q))
        if cond:
            st.cond_end()
            st.label('.Lk1_dma26')
        return st

    e.extend(dma1(0))
    e.extend(dma1(1))
    e.extend(dma1(2))
    for it in xl_items:
        e(it)
    e.extend(adma(1))
    if PREF:
        e('s_lshr_b32 s%d, s2, 3' % s_t1)
        e('s_and_b32 s%d, s2, 1' % s_t0)
        e('s_lshl_b32 s%d, s%d, 5' % (s_t0, s_t0))
        e('s_add_u32 s%d, s%d, s%d' % (s_t0, s_t0, s_t1))
        e('s_mul_i32 s%d, s%d, 4608' % (s_t0, s_t0))
        e('s_lshl_b32 s%d, s%d, 7' % (s_so, s_wave))
        e('s_add_u32 s%d, s%d, s%d' % (s_t0, s_t0, s_so))
        e('s_add_u32 s%d, s%d, 128' % (s_t0, s_t0))
        e('v_mov_b32 v25, 0x7ffffff0')
        e('v_lshrrev_b32 v1, 2, v0')
        e('v_mul_u32_u24 v1, %d, v1' % (256 * 1152))
        e('v_and_b32 v2, 3, v0')
        e('v_mul_u32_u24 v2, 1152, v2')
        e('v_add_u32 v1, v1, v2')
        e('v_cmp_gt_u32 vcc, 32, v0')
        e('v_cndmask_b32 v1, v25, v1, vcc')
        e('buffer_load_dword v240, v1, s[%d:%d], s%d offen' % (S_X, S_X + 3, s_t0))
        e('v_cmp_lt_u32 vcc, 17, v0')
        e('v_lshlrev_b32 v1, 7, v0')
        e('v_add_u32 v2, %d, v1' % (9216 - 18 * 128))
        e('v_cndmask_b32 v1, v1, v2, vcc')
        e('v_cmp_gt_u32 vcc, 36, v0')
        e('v_cndmask_b32 v1, v25, v1, vcc')
        e('s_add_u32 s%d, s%d, 1' % (s_so, s_wave))
        e('s_lshl_b32 s%d, s%d, 5' % (s_so, s_so))
        e('s_add_u32 s%d, s%d, s%d' % (s_so, s_so, s_t1))
        e('s_mul_i32 s%d, s%d, %d' % (s_so, s_so, 2 * 9216))
        e('s_bfe_u32 s%d, s2, 0x20001' % s_t0)
        e('s_mul_i32 s%d, s%d, 2304' % (s_t0, s_t0))
        e('s_add_u32 s%d, s%d, s%d' % (s_t0, s_t0, s_so))
        e('buffer_load_dword v241, v1, s[%d:%d], s%d offen' % (S_W1, S_W1 + 3, s_t0))
    e('s_lshl_b32 s%d, s%d, 6' % (s_t0, s_n2))
    e('s_add_u32 s%d, s%d, 0x%x' % (s_t0, s_t0, TW8_OFF))
    e('s_add_u32 s%d, s%d, s%d' % (s_ex, S_TAB, s_t0))
    e('s_addc_u32 s%d, s%d, 0' % (s_ex + 1, S_TAB + 1))
    e('s_load_dwordx16 s[%d:%d], s[%d:%d], 0' % (s_tw, s_tw + 15, s_ex, s_ex + 1))
    make_srd(e, S_B1, 14, 9216)
    e('s_lshl_b32 s%d, s%d, 4' % (s_t0, s_par))
    e('v_add_u32 v1, s%d, v%d' % (s_t0, v_tid))
    e('v_subrev_u32 v2, 144, v1')
    e('v_cmp_gt_u32 vcc, 144, v1')
    e('v_cndmask_b32 v1, v2, v1, vcc')
    e('v_lshlrev_b32 v1, 1, v1')
    e('buffer_load_ushort v%d, v1, s[%d:%d], s%d offen' % (F + 22, S_B1, S_B1 + 3, s_n0))
    for q in range(3, 9):
        e.extend(dma1(q))
    make_srd(e, S_WR, 6, W_SZ)
    make_srd(e, S_WI, 8, W_SZ)
    make_srd(e, S_H, 10, H_SZ, H_OFF)
    make_srd(e, S_XF, 10, XT_SZ, XF_OFF)
    make_srd(e, S_WT, 10, XT_SZ, WT_OFF)
    make_srd(e, S_WM, 10, 1024, WM_OFF)
    e('s_mov_b32 s%d, 0x%x' % (S_W2 + 2, 4608 * 1152))
    e('s_mov_b32 s%d, 0x20000' % (S_W2 + 3))
    e('s_mov_b32 s%d, %s' % (s_r2, fbits(0.5 ** 0.5)))
    e('s_mov_b32 s%d, %s' % (s_r2 + 1, fbits(0.5 ** 0.5)))
    e('s_lshl_b32 s%d, s%d, 5' % (s_xo, s_n2))
    if STAMP:
        make_srd(e, S_B1, 10, 1 << 20, ST_OFF)
    stamp(e, 0)

    f = Stream()
    X0, T0_, M_, V_, Q_ = F, F + 9, F + 18, F + 19, F + 20
    for j in range(9):
        f('v_lshlrev_b32 v%d, 16, v%d' % (X0 + j, X0 + j))
    f('v_add_f32 v%d, v%d, v%d' % (M_, X0, X0 + 1))
    f('v_add_f32 v%d, v%d, v%d' % (V_, X0 + 2, X0 + 3))
    f('v_add_f32 v%d, v%d, v%d' % (Q_, X0 + 4, X0 + 5))
    f('v_add_f32 v%d, v%d, v%d' % (Q_ + 1, X0 + 6, X0 + 7))
    f('v_add_f32 v%d, v%d, v%d' % (M_, M_, V_))
    f('v_add_f32 v%d, v%d, v%d' % (Q_, Q_, Q_ + 1))
    f('v_add_f32 v%d, v%d, v%d' % (M_, M_, X0 + 8))
    f('v_add_f32 v%d, v%d, v%d' % (M_, M_, Q_))
    allreduce_wave(f, M_, V_)
    f('v_mul_f32 v%d, %s, v%d' % (M_, fbits(1.0 / 576), M_))
    for j in range(9):
        f('v_sub_f32 v%d, v%d, v%d' % (T0_ + j, X0 + j, M_))
    f('v_mul_f32 v%d, v%d, v%d' % (V_, T0_, T0_))
    f('v_mul_f32 v%d, v%d, v%d' % (Q_, T0_ + 1, T0_ + 1))
    for j in range(2, 9):
        f('v_fmac_f32 v%d, v%d, v%d' % (V_ + (j & 1), T0_ + j, T0_ + j))
    f('v_add_f32 v%d, v%d, v%d' % (V_, V_, Q_))
    allreduce_wave(f, V_, Q_)
    f('v_mul_f32 v%d, %s, v%d' % (V_, fbits(1.0 / 576), V_))
    f('v_cvt_pk_bf16_f32 v%d, v%d, v%d' % (M_, M_, V_))
    f('v_and_b32 v%d, 0xffff0000, v%d' % (V_, M_))
    f('v_lshlrev_b32 v%d, 16, v%d' % (M_, M_))
    f('v_add_f32 v%d, %s, v%d' % (V_, fbits(1e-5), V_))
    bf16_round1(f, V_)
    f('v_sqrt_f32 v%d, v%d' % (V_, V_))
    bf16_round1(f, V_)
    f('v_rcp_f32 v%d, v%d' % (V_, V_))
    TA = F + 23
    f('v_lshlrev_b32 v%d, 4, v0' % TA)
    f('v_add_u32 v%d, 0x%x, v%d' % (TA, TL, TA))
    for q in range(5):
        f('ds_read_b128 %s, v%d offset:%d' % (vr(F + 32 + 4 * q, 4), TA, q * 1024))
    for q in range(2):
        f('ds_read_b128 %s, v%d offset:%d' % (vr(F + 56 + 4 * q, 4), TA, (11 + q) * 1024))
    for j in range(9):
        f('v_sub_f32 v%d, v%d, v%d' % (X0 + j, X0 + j, M_))
    for rnd in range(2):
        for p in range(5):
            a, b = X0 + 2 * p, (X0 + 2 * p + 1 if p < 4 else X0 + 2 * p)
            f('v_cvt_pk_bf16_f32 v%d, v%d, v%d' % (T0_ + p, a, b))
        for p in range(5):
            f('v_lshlrev_b32 v%d, 16, v%d' % (X0 + 2 * p, T0_ + p))
            if p < 4:
                f('v_and_b32 v%d, 0xffff0000, v%d' % (X0 + 1 + 2 * p, T0_ + p))
        if rnd == 0:
            for j in range(9):
                f('v_mul_f32 v%d, v%d, v%d' % (X0 + j, X0 + j, V_))
    A4, A2 = F + 24, F + 28
    f('v_mov_b32 v%d, 0' % (A2 + 1))
    f('v_mov_b32 v%d, 0' % (A2 + 2))
    for p in range(4):
        f('v_cvt_pk_f16_f32 v%d, v%d, v%d' % (A4 + p, X0 + 2 * p, X0 + 1 + 2 * p))
    f('v_cvt_pk_f16_f32 v%d, v%d, v%d' % (A2, X0 + 8, A2 + 1))
    f('v_cvt_pk_f16_f32 v%d, v%d, v%d' % (A2 + 3, X0 + 8, A2 + 1))
    for i in range(4):
        f('v_mfma_f32_16x16x32_f16 %s, %s, %s, 0' % (vr(F + 4 * i, 4), vr(A4, 4), vr(F + 32 + 4 * i, 4)))
    for i in range(4):
        f('v_mfma_f32_16x16x16_f16 %s, %s, %s, %s' % (vr(F + 4 * i, 4), vr(A2 + 2 * (i & 1), 2), vr(F + 48 + (i & 2), 2), vr(F + 4 * i, 4)))
    for q in range(6):
        f('ds_read_b128 %s, v%d offset:%d' % (vr(F + 32 + 4 * q, 4), TA, (5 + q) * 1024))
    f('s_mul_i32 s%d, s%d, %d' % (s_hs, s_wave, TB.XL_ROW))
    f('s_add_u32 s%d, s%d, 0x%x' % (s_hs, s_hs, XL))
    for i in range(8):
        f('v_add_u32 v%d, s%d, v%d' % (F + 56 + i, s_hs, F + 56 + i))
    for ct in range(2):
        dre, dim = F + ct * 8, F + ct * 8 + 4
        twr, twi = F + 32 + ct * 8, F + 32 + ct * 8 + 4
        t1_, t2_ = F + 16, F + 20 - 0
        for r in range(4):
            f('v_mul_f32 v%d, v%d, v%d' % (F + 16 + r, dre + r, twr + r))
            f('v_mul_f32 v%d, v%d, v%d' % (dre + r, dre + r, twi + r))
        for r in range(4):
            f('v_fma_f32 v%d, -v%d, v%d, v%d' % (F + 16 + r, dim + r, twi + r, F + 16 + r))
            f('v_fmac_f32 v%d, v%d, v%d' % (dre + r, dim + r, twr + r))
        for r in range(4):
            f('v_cvt_pk_f16_f32 v%d, v%d, v%d' % (F + 24 + 4 * ct + r, F + 16 + r, dre + r))
    for ct in range(2):
        for ri in range(2):
            f('v_mfma_f32_16x16x32_f16 %s, %s, %s, 0' % (vr(F + (ct * 2 + ri) * 4, 4), vr(F + 48 + ri * 4, 4), vr(F + 24 + 4 * ct, 4)))
    for ct in range(2):
        for r in range(4):
            f('v_cvt_pk_f16_f32 v%d, v%d, v%d' % (F + ct * 8 + r, F + ct * 8 + r, F + ct * 8 + 4 + r))
            f('ds_write_b32 v%d, v%d' % (F + 56 + ct * 4 + r, F + ct * 8 + r), tok=('xlw', 0))
    fftA = f

    bi = Stream()
    bi('s_cmp_ge_u32 s%d, 3' % s_wave)
    bi('s_cbranch_scc1 .Lk1_noinit')
    bi.cond_begin()
    B_ = 176
    bi('s_lshl_b32 s%d, s%d, 6' % (s_t0, s_wave))
    bi('v_add_u32 v%d, s%d, v0' % (B_, s_t0))
    bi('v_cmp_gt_u32 vcc, 144, v%d' % B_)
    bi('v_lshlrev_b32 v%d, 2, v%d' % (B_, B_))
    bi('v_add_u32 v%d, 0x%x, v%d' % (B_, BB, B_))
    bi('v_mov_b32 v%d, 0' % (B_ + 1))
    bi('v_mov_b32 v%d, 0x%x' % (B_ + 2, WMX))
    bi('ds_write_b32 v%d, v%d' % (B_ + 2, B_ + 1))
    bi('s_and_saveexec_b64 s[%d:%d], vcc' % (s_ex, s_ex + 1))
    bi('v_lshlrev_b32 v%d, 16, v%d' % (B_ + 1, F + 22))
    bi('ds_write_b32 v%d, v%d' % (B_, B_ + 1))
    bi('s_mov_b64 exec, s[%d:%d]' % (s_ex, s_ex + 1))
    bi.cond_end()
    bi.label('.Lk1_noinit')

    G_ = 224
    r8 = Stream()
    r8('s_lshl_b32 s%d, s%d, 8' % (s_t0, s_wave))
    r8('v_lshl_add_u32 v%d, v0, 2, s%d' % (G_ + 24, s_t0))
    r8('v_add_u32 v%d, 0x%x, v%d' % (G_ + 24, XL, G_ + 24))
    for n in range(8):
        r8('ds_read_b32 v%d, v%d offset:%d' % (G_ + 16 + n, G_ + 24, n * TB.XL_ROW))
    for n in range(8):
        r8('v_cvt_f32_f16 v%d, v%d' % (G_ + 2 * n, G_ + 16 + n))
        r8('v_cvt_f32_f16_sdwa v%d, v%d dst_sel:DWORD dst_unused:UNUSED_PAD src0_sel:WORD_1' % (G_ + 2 * n + 1, G_ + 16 + n))
    X = radix8(r8, G_, G_ + 16, s_r2)
    for k1 in range(8):
        x = X[k1]
        c, s = s_tw + 2 * k1, s_tw + 2 * k1 + 1
        t_ = G_ + 2 * k1
        r8('v_mul_f32 v%d, s%d, v%d' % (t_, c, x))
        r8('v_mul_f32 v%d, s%d, v%d' % (t_ + 1, s, x))
        r8('v_mul_f32 v%d, s%d, v%d' % (x, s, x + 1))
        r8('v_mul_f32 v%d, s%d, v%d' % (x + 1, c, x + 1))
        r8('v_sub_f32 v%d, v%d, v%d' % (t_, t_, x))
        r8('v_add_f32 v%d, v%d, v%d' % (t_ + 1, t_ + 1, x + 1))
        r8('v_cvt_pk_f16_f32 v%d, v%d, v%d' % (G_ + 16 + k1, t_, t_ + 1))
    r8('s_lshl_b32 s%d, s%d, 6' % (s_t0, s_wave))
    r8('v_add_u32 v%d, s%d, v0' % (G_ + 24, s_t0))
    r8('v_cmp_gt_u32 vcc, 289, v%d' % (G_ + 24))
    r8('v_mov_b32 v%d, 0x7ffffff0' % (G_ + 25))
    r8('v_lshlrev_b32 v%d, 13, v%d' % (G_ + 24, G_ + 24))
    r8('v_cndmask_b32 v%d, v%d, v%d, vcc' % (G_ + 24, G_ + 25, G_ + 24))
    r8('buffer_store_dwordx4 %s, v%d, s[%d:%d], s%d offen%s' % (vr(G_ + 16, 4), G_ + 24, S_XF, S_XF + 3, s_xo, SCX))
    r8('buffer_store_dwordx4 %s, v%d, s[%d:%d], s%d offen offset:16%s' % (vr(G_ + 20, 4), G_ + 24, S_XF, S_XF + 3, s_xo, SCX))

    def touches(which):
        st = Stream()
        T0 = 250
        if which == 0:
            st('s_mul_i32 s%d, s%d, 41' % (s_t0, s_wave))
            st('v_add_u32 v%d, s%d, v0' % (T0, s_t0))
            st('v_cmp_gt_u32 vcc, 41, v0')
            st('v_lshlrev_b32 v%d, 7, v%d' % (T0, T0))
            st('v_mov_b32 v%d, 0x7ffffff0' % (T0 + 1))
            st('v_cndmask_b32 v%d, v%d, v%d, vcc' % (T0 + 1, T0 + 1, T0))
            st('s_bfe_u32 s%d, s2, 0x20001' % s_t0)
            st('s_lshl_b32 s%d, s%d, 5' % (s_t0, s_t0))
            st('s_lshr_b32 s%d, s2, 3' % s_t1)
            st('s_add_u32 s%d, s%d, s%d' % (s_t0, s_t0, s_t1))
            st('s_mul_i32 s%d, s%d, 41472' % (s_t0, s_t0))
            st('buffer_load_dword v%d, v%d, s[%d:%d], s%d offen' % (T0 + 2, T0 + 1, S_W2, S_W2 + 3, s_t0))
            st('v_cmp_gt_u32 vcc, 6, v0')
            st('v_lshlrev_b32 v%d, 7, v0' % T0)
            st('v_mov_b32 v%d, 0x7ffffff0' % (T0 + 1))
            st('v_min_u32 v%d, 576, v%d' % (T0, T0))
            st('v_cndmask_b32 v%d, v%d, v%d, vcc' % (T0 + 1, T0 + 1, T0))
            st('s_and_b32 s%d, s%d, 127' % (s_t0, s_n2))
            st('s_lshr_b32 s%d, s%d, 7' % (s_t1, s_n2))
            st('s_lshl_b32 s%d, s%d, 3' % (s_t1, s_t1))
            st('s_add_u32 s%d, s%d, s%d' % (s_t1, s_t1, s_wave))
            st('s_lshl_b32 s%d, s%d, 7' % (s_t1, s_t1))
            st('s_add_u32 s%d, s%d, s%d' % (s_t0, s_t0, s_t1))
            st('s_mul_i32 s%d, s%d, 578' % (s_t0, s_t0))
            st('buffer_load_ushort v%d, v%d, s[%d:%d], s%d offen' % (T0 + 3, T0 + 1, S_WR, S_WR + 3, s_t0))
            st('buffer_load_ushort v%d, v%d, s[%d:%d], s%d offen' % (T0 + 4, T0 + 1, S_WI, S_WI + 3, s_t0))
            st('s_cmp_ge_u32 s2, 8')
            st('s_cbranch_scc1 .Lk1_notab')
            st.cond_begin()
            st('s_lshl_b32 s%d, s%d, 13' % (s_t0, s_wave))
            st('s_add_u32 s%d, s%d, 0x%x' % (s_t0, s_t0, T2_OFF))
            st('v_lshlrev_b32 v%d, 7, v0' % T0)
            st('buffer_load_dword v%d, v%d, s[%d:%d], s%d offen' % (T0 + 5, T0, S_TAB, S_TAB + 3, s_t0))
            st.cond_end()
            st.label('.Lk1_notab')
        return st

    e('v_lshrrev_b32 v%d, 4, v0' % v_t0)
    e('v_bfe_u32 v%d, v0, 1, 3' % v_t1)
    e('v_xor_b32 v%d, v%d, v%d' % (v_t1, v_t1, v_t0))
    e('v_and_b32 v%d, 15, v0' % v_csa)
    e('v_lshlrev_b32 v%d, 7, v%d' % (v_csa, v_csa))
    e('v_add_u32 v%d, s%d, v%d' % (v_csa, s_m0a, v_csa))

    def aread(c, r0, r1):
        st = Stream()
        for kk in range(2):
            for rt in range(2):
                st('ds_read_b128 %s, v%d offset:%d' % (vr(vA(rt, 2 * c + kk), 4), (r0, r1)[kk], (c & 1) * 4096 + rt * 2048), needs=[('a', c)], tok=('ar', c))
        return st

    e('v_lshl_add_u32 v%d, v%d, 4, v%d' % (v_be, v_t1, v_csa))
    e('v_xor_b32 v%d, 4, v%d' % (v_t1, v_t1))
    e('v_lshl_add_u32 v%d, v%d, 4, v%d' % (v_bo, v_t1, v_csa))

    v_ar0, v_ar1 = v_csa, v_tid
    e('v_mov_b32 v%d, v%d' % (v_ar0, v_be))
    e('v_mov_b32 v%d, v%d' % (v_ar1, v_bo))
    e('v_lshrrev_b32 v%d, 4, v0' % v_t0)
    e('v_bfe_u32 v%d, v0, 2, 2' % v_t1)
    e('v_lshl_add_u32 v%d, v%d, 3, v%d' % (v_be, v_t0, v_t1))
    e('v_mul_u32_u24 v%d, 192, v%d' % (v_be, v_be))
    e('v_and_b32 v%d, 3, v0' % v_t1)
    e('v_lshl_add_u32 v%d, v%d, 3, v%d' % (v_be, v_t1, v_be))
    e('v_add_u32 v%d, 0x%x, v%d' % (v_be, BR + 8192, v_be))
    e('v_and_b32 v%d, 1, v%d' % (v_t1, v_t0))
    e('v_lshlrev_b32 v%d, 5, v%d' % (v_t1, v_t1))
    e('v_sub_u32 v%d, v%d, v%d' % (v_bo, v_be, v_t1))
    e('v_add_u32 v%d, 32, v%d' % (v_bo, v_bo))
    e('v_add_u32 v%d, v%d, v%d' % (v_be, v_be, v_t1))
    e('v_subrev_u32 v%d, 8192, v%d' % (v_be, v_be))
    e('v_subrev_u32 v%d, 8192, v%d' % (v_bo, v_bo))
    e('s_min_u32 s%d, s%d, 5' % (s_t0, s_wave))
    e('s_and_b32 s%d, s%d, 1' % (s_t1, s_t0))
    e('s_cmp_eq_u32 s%d, 1' % s_t1)
    e('s_cselect_b64 vcc, -1, 0')
    e('s_lshr_b32 s%d, s%d, 1' % (s_t0, s_t0))
    e('s_lshl_b32 s%d, s%d, 6' % (s_t0, s_t0))
    e('v_cndmask_b32 v%d, v%d, v%d, vcc' % (v_t0, v_be, v_bo))
    e('v_add_u32 v%d, s%d, v%d' % (v_t0, s_t0, v_t0))
    v_csr = v_t0
    e('v_lshrrev_b32 v6, 5, v0')
    e('v_bfe_u32 v7, v0, 4, 1')
    e('v_lshlrev_b32 v7, 2, v7')
    e('v_lshl_add_u32 v6, v6, 4, v7')
    e('v_bfe_u32 v7, v0, 2, 2')
    e('v_add_u32 v6, v6, v7')
    e('v_mul_u32_u24 v6, 96, v6')
    e('v_and_b32 v7, 3, v0')
    e('v_lshl_add_u32 v%d, v7, 3, v6' % v_t1)
    e('v_add_u32 v%d, 0x%x, v%d' % (v_t1, BR + 36864, v_t1))
    v_b2 = v_t1
    for i in range(4):
        e('v_mov_b32 v%d, 0x3f803f80' % (vONE + i))
    e('s_mul_i32 s%d, s%d, 0x5556' % (s_w3, s_wave))
    e('s_lshr_b32 s%d, s%d, 16' % (s_w3, s_w3))
    e('s_mul_i32 s%d, s%d, 3' % (s_w3, s_w3))
    e('s_sub_u32 s%d, s%d, s%d' % (s_w3, s_wave, s_w3))

    ring1 = lambda k: (k % 12) * 6144
    ring2 = lambda k: ((48 + 3 * k) % 72) * 1024
    HI = 36864
    wst = {v_be: 0, v_bo: 0, v_csr: 0, v_b2: 1}

    def based(st, reg, ro):
        w_ = 1 if ro >= HI else 0
        if wst[reg] != w_:
            st('v_add_u32 v%d, 0x%x, v%d' % (reg, (HI if w_ else (1 << 32) - HI), reg))
            wst[reg] = w_
        return ro - w_ * HI

    def fread(st, p, al):
        f_ = p % 6
        if p < 108:
            k, t = divmod(p, 6)
            reg = (v_be, v_bo)[t & 1]
            off = based(st, reg, ring1(k)) + al * 768 + (t >> 1) * 64
        else:
            k, t = divmod(p - 108, 3)
            reg = v_b2
            off = based(st, reg, ring2(k)) + al * 768 + t * 32
        st('ds_read_b64_tr_b16 %s, v%d offset:%d' % (vr(vB(f_) + 2 * al, 2), reg, off))

    def csread1(st, k):
        off = based(st, v_csr, ring1(k))
        for al in range(2):
            st('ds_read_b64_tr_b16 %s, v%d offset:%d' % (vr(vCSF + 2 * al, 2), v_csr, off + al * 768))

    def toks_for(p):
        if p < 108:
            nq_ = min(-(-(p // 6 + 1) * 6 // 8), 14)
            return [('d1', q) for q in range(nq_)]
        nq_ = min(-(-((p - 108) // 3 + 1) * 3 // 8), 7)
        return [('d1', q) for q in range(14)] + [('d2', q) for q in range(nq_)]

    def mf(p, rt):
        if p < 108:
            k, t = divmod(p, 6)
            c = vC1(rt, t)
        else:
            k, t = divmod(p - 108, 3)
            c = vC2(rt, t)
        return 'v_mfma_f32_16x16x32_bf16 %s, %s, %s, %s' % (vr(c, 4), vr(vB(p % 6), 4), vr(vA(rt, k), 4), vr(c, 4) if k else '0')

    def dma2_setup(st):
        T0, T1 = vCSF, vCSF + 1
        st('s_lshl_b32 s%d, s%d, 6' % (s_t0, s_wave))
        st('s_mov_b32 s%d, 0x2aaab' % s_t1)
        st('s_lshl_b32 s%d, s%d, 5' % (s_so + 2, s_par))
        st('s_add_u32 s%d, s%d, 192' % (s_so + 2, s_so + 2))
        st('s_mul_i32 s%d, s%d, 288' % (s_so + 3, s_par))
        for q in range(3):
            d = v_dma[q]
            st('v_add_u32 v%d, s%d, v0' % (d, s_t0))
            if q:
                st('v_add_u32 v%d, %d, v%d' % (d, q * 512, d))
            st('v_mul_u32_u24 v%d, s%d, v%d' % (T0, s_t1, d))
            st('v_lshrrev_b32 v%d, 20, v%d' % (T0, T0))
            st('v_mul_u32_u24 v%d, 6, v%d' % (T1, T0))
            st('v_sub_u32 v%d, v%d, v%d' % (d, d, T1))
            st('v_lshrrev_b32 v%d, 2, v%d' % (T1, d))
            st('v_mul_u32_u24 v%d, s%d, v%d' % (T1, s_so + 3, T1))
            st('v_lshlrev_b32 v%d, 4, v%d' % (d, d))
            st('v_add_u32 v%d, s%d, v%d' % (d, s_so + 2, d))
            st('v_sub_u32 v%d, v%d, v%d' % (d, d, T1))
            st('v_lshrrev_b32 v%d, 1, v%d' % (T1, T0))
            st('v_xor_b32 v%d, v%d, v%d' % (T1, T1, T0))
            st('v_and_b32 v%d, 4, v%d' % (T1, T1))
            st('v_mul_u32_u24 v%d, 3, v%d' % (T1, T1))
            st('v_xor_b32 v%d, v%d, v%d' % (T0, T0, T1))
            st('v_mul_u32_u24 v%d, 9216, v%d' % (T0, T0))
            st('v_add_u32 v%d, v%d, v%d' % (d, d, T0))

    last1 = lambda q: (8 * q + 7) // 6
    pend = [(last1(q - 9) + 1, 'd1', q) for q in range(9, 14)]
    for q in range(7):
        rs = (6 + q) % 9
        prev = rs + 9 if rs + 9 <= 13 else rs
        pend.append((min(last1(prev), 17) + 1, 'd2', q))

    v_epa, v_k1 = v_ar0, v_ar1

    def endpass1(st):
        st('v_lshrrev_b32 v%d, 4, v0' % v_be)
        st('v_lshlrev_b32 v%d, 4, v%d' % (v_epa, v_be))
        st('v_add_u32 v%d, 0x%x, v%d' % (v_epa, CS, v_epa))
        st('s_min_u32 s%d, s%d, 5' % (s_t0, s_wave))
        st('s_lshl_b32 s%d, s%d, 6' % (s_t0, s_t0))
        st('v_add_u32 v%d, s%d, v%d' % (v_t0, s_t0, v_epa))
        st('ds_write_b128 v%d, %s' % (v_t0, vr(vCSA, 4)), tok=('csw', 0))
        st('v_and_b32 v%d, 3, v0' % v_t0)
        st('v_bfe_u32 v%d, v0, 2, 2' % v_bo)
        for rt in range(2):
            g_ = vG(rt)
            st('v_cmp_eq_u32 vcc, 1, v%d' % v_t0)
            st('v_cndmask_b32 v%d, v%d, v%d, vcc' % (g_, g_, g_ + 1))
            st('v_cmp_eq_u32 vcc, 2, v%d' % v_t0)
            st('v_cndmask_b32 v%d, v%d, v%d, vcc' % (g_, g_, g_ + 2))
            st('v_cmp_eq_u32 vcc, 3, v%d' % v_t0)
            st('v_cndmask_b32 v%d, v%d, v%d, vcc' % (g_, g_, g_ + 3))
            st('v_cmp_eq_u32 vcc, v%d, v%d' % (v_bo, v_be))
            st('v_cndmask_b32 v%d, 0, v%d, vcc' % (v_st[2 * rt + 1], g_))
            st('v_mov_b32 v%d, v%d' % (v_st[2 * rt], vS(rt)))

    def stats():
        st = Stream()
        st('s_lshl_b32 s%d, s%d, 4' % (s_t0, s_rb))
        st('s_lshl_b32 s%d, s%d, 1' % (s_t1, s_wave))
        st('s_add_u32 s%d, s%d, s%d' % (s_t0, s_t0, s_t1))
        st('s_mul_i32 s%d, s%d, %d' % (s_t0, s_t0, 144 * 1024))
        st('v_lshlrev_b32 v%d, 4, v0' % v_a0)
        st('v_add_u32 v%d, s%d, v%d' % (v_a0, s_t0, v_a0))
        st('v_add_u32 v%d, 0x%x, v%d' % (v_a1, 144 * 1024, v_a0))
        st('s_mul_i32 s%d, s%d, 9' % (s_t1, s_cb))
        st('s_add_u32 s%d, s%d, s%d' % (s_hp, s_t1, s_par))
        st('s_lshl_b32 s%d, s%d, 9' % (s_hp, s_hp))
        st('s_add_u32 s%d, s%d, 4096' % (s_hs, s_hp))
        st('s_sub_u32 s%d, s%d, 1016' % (s_t0, s_hp))
        st('s_cmp_eq_u32 s%d, 1' % s_par)
        st('s_cselect_b32 s%d, s%d, s%d' % (s_hs, s_t0, s_hs))
        st('v_mov_b32 v%d, %s' % (v_k1, fbits(k0 * 0.044715)))
        for rt in range(2):
            allreduce_rows(st, v_st[2 * rt + 1], v_t0)
        for rt in range(2):
            sm, sq = v_st[2 * rt], v_st[2 * rt + 1]
            t0, t1, t2, t3 = v_t0, v_be, v_bo, v_dma[0]
            st('v_mul_f32 v%d, %s, v%d' % (sm, fbits(1.0 / 576), sm))
            st('v_mul_f32 v%d, %s, v%d' % (sq, fbits(1.0 / 576), sq))
            st('v_fma_f32 v%d, -v%d, v%d, v%d' % (sq, sm, sm, sq))
            st('v_max_f32 v%d, 0, v%d' % (sq, sq))
            st('v_cvt_pk_bf16_f32 v%d, v%d, v%d' % (t0, sm, sq))
            st('v_and_b32 v%d, 0xffff0000, v%d' % (t1, t0))
            st('v_lshlrev_b32 v%d, 16, v%d' % (t0, t0))
            st('v_add_f32 v%d, %s, v%d' % (t1, fbits(1e-5), t1))
            bf16_round1(st, t1)
            st('v_sqrt_f32 v%d, v%d' % (t1, t1))
            bf16_round1(st, t1)
            st('v_rcp_f32 v%d, v%d' % (t1, t1))
            st('v_sub_f32 v%d, v%d, v%d' % (sm, sm, t0))
            st('v_mul_f32 v%d, v%d, v%d' % (sm, sm, t1))
            st('v_mul_f32 v%d, v%d, v%d' % (sq, sq, t1))
            st('v_mul_f32 v%d, v%d, v%d' % (sq, sq, t1))
            st('v_cvt_pk_bf16_f32 v%d, v%d, v%d' % (t2, sm, sq))
            st('v_and_b32 v%d, 0xffff0000, v%d' % (t3, t2))
            st('v_lshlrev_b32 v%d, 16, v%d' % (t2, t2))
            st('v_add_f32 v%d, %s, v%d' % (t3, fbits(1e-5), t3))
            bf16_round1(st, t3)
            st('v_sqrt_f32 v%d, v%d' % (t3, t3))
            bf16_round1(st, t3)
            st('v_rcp_f32 v%d, v%d' % (t3, t3))
            st('v_fma_f32 v%d, v%d, v%d, v%d' % (t2, t0, t1, t2))
            st('v_mul_f32 v%d, v%d, v%d' % (sm, t1, t3))
            st('v_mul_f32 v%d, v%d, v%d' % (sq, t2, t3))
        return st

    def epi(accf, tiles, T):
        st = Stream()
        n = len(tiles)
        for i, t in enumerate(tiles):
            st('ds_read_b128 %s, v%d offset:%d' % (vr(T + 8 * i, 4), v_epa, t * 64))
            st('ds_read_b128 %s, v%d offset:%d' % (vr(T + 8 * i + 4, 4), v_epa, 576 + t * 64))
        for rt in range(2):
            a_, c_ = v_st[2 * rt], v_st[2 * rt + 1]
            w_ = T + 8 * n
            A = accf(rt, tiles[0])
            E = range(4 * n)
            cs = lambda r: T + 8 * (r >> 2) + (r & 3)
            bb = lambda r: T + 8 * (r >> 2) + 4 + (r & 3)
            for r in E:
                st('v_fma_f32 v%d, -v%d, v%d, v%d' % (w_ + r, c_, cs(r), bb(r)))
            for r in E:
                st('v_fmac_f32 v%d, v%d, v%d' % (w_ + r, a_, A + r))
            for r in E:
                st('v_mul_f32 v%d, v%d, v%d' % (A + r, w_ + r, w_ + r))
            for r in E:
                st('v_fmaak_f32 v%d, v%d, v%d, %s' % (A + r, v_k1, A + r, fbits(k0)))
            for r in E:
                st('v_mul_f32 v%d, v%d, v%d' % (A + r, A + r, w_ + r))
            for r in E:
                st('v_exp_f32 v%d, v%d' % (A + r, A + r))
            for r in E:
                st('v_add_f32 v%d, 1.0, v%d' % (A + r, A + r))
            for r in E:
                st('v_rcp_f32 v%d, v%d' % (A + r, A + r))
            for r in E:
                st('v_mul_f32 v%d, v%d, v%d' % (w_ + r, A + r, w_ + r))
            for j in range(2 * n):
                st('v_cvt_pk_bf16_f32 v%d, v%d, v%d' % (A + j, w_ + 2 * j, w_ + 2 * j + 1))
            if n == 2:
                st('buffer_store_dwordx4 %s, v%d, s[%d:%d], s%d offen offset:%d%s' % (vr(A, 4), (v_a0, v_a1)[rt], S_H, S_H + 3, s_hp, (tiles[0] >> 1) * 1024, SC))
            else:
                st('buffer_store_dwordx2 %s, v%d, s[%d:%d], s%d offen%s' % (vr(A, 2), (v_a0, v_a1)[rt], S_H, S_H + 3, s_hs, SC))
        return st

    WREG = vA(0, 6)

    def wloads():
        st = Stream()
        T0 = vA(0, 3)
        st('s_lshl_b32 s%d, s%d, 6' % (s_t0, s_wave))
        st('v_add_u32 v%d, s%d, v0' % (T0, s_t0))
        st('v_cmp_gt_u32 vcc, 289, v%d' % T0)
        st('v_mov_b32 v%d, 0x7ffffff0' % (T0 + 1))
        st('v_lshlrev_b32 v%d, 1, v%d' % (T0 + 2, T0))
        st('v_cndmask_b32 v%d, v%d, v%d, vcc' % (T0 + 2, T0 + 1, T0 + 2))
        st('v_lshlrev_b32 v%d, 13, v%d' % (T0 + 3, T0))
        st('v_cndmask_b32 v%d, v%d, v%d, vcc' % (T0 + 3, T0 + 1, T0 + 3))
        st('s_and_b32 s%d, s%d, 127' % (s_t0, s_n2))
        st('s_lshr_b32 s%d, s%d, 7' % (s_t1, s_n2))
        st('s_lshl_b32 s%d, s%d, 10' % (s_t1, s_t1))
        st('s_add_u32 s%d, s%d, s%d' % (s_t0, s_t0, s_t1))
        st('s_mul_i32 s%d, s%d, 578' % (s_tw, s_t0))
        for i in range(8):
            if i:
                st('s_add_u32 s%d, s%d, %d' % (s_tw, s_tw, 128 * 578))
            st('buffer_load_ushort v%d, v%d, s[%d:%d], s%d offen' % (WREG + i, T0 + 2, S_WR, S_WR + 3, s_tw))
            st('buffer_load_ushort v%d, v%d, s[%d:%d], s%d offen' % (WREG + 8 + i, T0 + 2, S_WI, S_WI + 3, s_tw))
        return st

    def wstore(st):
        vo = vA(0, 3) + 3
        for i in range(8):
            st('v_lshl_or_b32 v%d, v%d, 16, v%d' % (WREG + i, WREG + 8 + i, WREG + i))
        st('buffer_store_dwordx4 %s, v%d, s[%d:%d], s%d offen%s' % (vr(WREG, 4), vo, S_WT, S_WT + 3, s_xo, SCX))
        st('buffer_store_dwordx4 %s, v%d, s[%d:%d], s%d offen offset:16%s' % (vr(WREG + 4, 4), vo, S_WT, S_WT + 3, s_xo, SCX))
        M = WREG + 8
        for i in range(8):
            st('v_and_b32 v%d, 0x7fff7fff, v%d' % (M + i, WREG + i))
        for s_ in (4, 2, 1):
            for i in range(s_):
                st('v_pk_max_u16 v%d, v%d, v%d' % (M + i, M + i, M + i + s_))
        st('v_lshrrev_b32 v%d, 16, v%d' % (M + 1, M))
        st('v_and_b32 v%d, 0xffff, v%d' % (M, M))
        st('v_max_u32 v%d, v%d, v%d' % (M, M, M + 1))
        allreduce_wave(st, M, M + 1, 'v_max_u32')
        st('v_mov_b32 v%d, 0x%x' % (M + 1, WMX))
        st('s_mov_b64 exec, 1')
        st('ds_max_u32 v%d, v%d' % (M + 1, M))
        st('s_mov_b64 exec, -1')

    c2ONE, c2ACC, c2F = vA(0, 4), vA(1, 4), [vA(0, 5), vA(1, 5)]
    v_c2 = v_t0

    def cs2read(st, k):
        off = based(st, v_c2, ring2(k))
        for al in range(2):
            st('ds_read_b64_tr_b16 %s, v%d offset:%d' % (vr(c2F[k & 1] + 2 * al, 2), v_c2, off + al * 768))

    GRP, D = 12, 5
    stamp(e, 2)
    e.extend(aread(0, v_ar0, v_ar1))
    e.extend(adma(2))
    e('s_barrier', needs=toks_for(GRP + D) + [('tl', 0), ('tl', 1)])
    stamp(e, 3)
    for p in range(D):
        fread(e, p, 0)
        fread(e, p, 1)
    csread1(e, 0)
    epi_items = epi(vC1, [0, 1], vA(0, 0)).items + epi(vC1, [2, 3], vA(0, 0)).items + epi(vC1, [4, 5], vA(0, 0)).items
    ne = len(epi_items)
    did_setup = False
    for g in range(14):
        p0, p1 = g * GRP, min((g + 1) * GRP, 162)
        fill = Stream()
        stamp(e, 0, grp=g)
        if g < 8:
            e.extend(aread(g + 1, v_ar0, v_ar1))
        if g == 9:
            stamp(e, 4)
            endpass1(e)
        if g > 0:
            extra = [('csw', 0)] if g == 10 else ([('xlw', 0)] if g == 4 else [])
            e('s_barrier', needs=toks_for(min(p1 + D, 161)) + extra)
        setup_now = False
        while pend and pend[0][0] <= 2 * g and g > 0:
            _, kind, q = pend.pop(0)
            if kind == 'd2' and not did_setup:
                setup_now = True
                did_setup = True
            fill.extend(dma1(q) if kind == 'd1' else dma2(q))
        if g + 3 < 9:
            fill.extend(adma(g + 3))
        if g < 4:
            nA = len(fftA.items)
            fill.items.extend(fftA.items[g * nA // 4:(g + 1) * nA // 4])
        if g == 1:
            fill.extend(bi)
        if g in (4, 5):
            nR = len(r8.items)
            fill.items.extend(r8.items[(g - 4) * nR // 2:(g - 3) * nR // 2])
        if g == 6 and PREF2:
            fill.extend(touches(0))
        if g == 9:
            fill.extend(stats())
        if g == 11:
            fill.extend(wloads())
        if g >= 10:
            lo, hi = {10: (0, 28), 11: (28, 52), 12: (52, 84), 13: (84, 100)}[g]
            fill.items.extend(epi_items[ne * lo // 100: ne * hi // 100])
        main = Stream()
        head = Stream()
        for p in range(p0, p1):
            if p < 108 and p % 6 == 0:
                k = p // 6
                tgt = head if (setup_now and p == p0) else main
                tgt('v_mfma_f32_16x16x32_bf16 %s, %s, %s, %s' % (vr(vCSA, 4), vr(vCSF, 4), vr(vONE, 4), vr(vCSA, 4) if k else '0'))
                if setup_now and p == p0:
                    dma2_setup(head)
                if k + 1 < 18:
                    csread1(main, k + 1)
            main(mf(p, 0))
            if p + D < 162:
                fread(main, p + D, 0)
            main(mf(p, 1))
            if p + D < 162:
                fread(main, p + D, 1)
            if p < 108 and p % 6 in (1, 3):
                k, rt = p // 6, (p % 6) >> 1
                main('v_mfma_f32_16x16x32_bf16 %s, %s, %s, %s' % (vr(vG(rt), 4), vr(vA(rt, k), 4), vr(vA(rt, k), 4), vr(vG(rt), 4) if k else '0'))
                main('v_mfma_f32_16x16x32_bf16 %s, %s, %s, %s' % (vr(vS(rt), 4), vr(vONE, 4), vr(vA(rt, k), 4), vr(vS(rt), 4) if k else '0'))
            if p >= 132:
                i0, i1 = (p - 132) * 18 // 30, (p - 131) * 18 // 30
                for ck in range(i0, i1):
                    if ck == 0:
                        main('s_lshl_b32 s%d, s%d, 5' % (s_so + 2, s_w3))
                        main('v_add_u32 v%d, s%d, v%d' % (v_c2, s_so + 2, v_b2))
                        wst[v_c2] = wst[v_b2]
                        for i in range(4):
                            main('v_mov_b32 v%d, 0x3f803f80' % (c2ONE + i))
                        cs2read(main, 0)
                        cs2read(main, 1)
                    main('v_mfma_f32_16x16x32_bf16 %s, %s, %s, %s' % (vr(c2ACC, 4), vr(c2F[ck & 1], 4), vr(c2ONE, 4), vr(c2ACC, 4) if ck else '0'))
                    if ck + 2 < 18:
                        assert ck + 2 <= (min(p1 + D, 161) - 108) // 3
                        cs2read(main, ck + 2)
        e.extend(head)
        e.extend(merge_keep(main, fill))
    stamp(e, 5)
    e('s_lshl_b32 s%d, s%d, 6' % (s_t0, s_w3))
    e('v_add_u32 v%d, s%d, v%d' % (v_t0, s_t0, v_epa))
    e('ds_write_b128 v%d, %s offset:384' % (v_t0, vr(c2ACC, 4)))
    wstore(e)
    e('s_waitcnt lgkmcnt(0)')
    e('s_barrier')
    e('s_cmp_lg_u32 s%d, 0' % s_wave)
    e('s_cbranch_scc1 .Lk1_nowm')
    e.cond_begin()
    e('v_mov_b32 v%d, 0x%x' % (v_t0, WMX))
    e('ds_read_b32 v%d, v%d' % (v_t1, v_t0))
    e('s_lshl_b32 s%d, s2, 2' % s_t0)
    e('v_mov_b32 v%d, 0' % v_t0)
    e('buffer_store_dword v%d, v%d, s[%d:%d], s%d offen' % (v_t1, v_t0, S_WM, S_WM + 3, s_t0))
    e.cond_end()
    e.label('.Lk1_nowm')
    e.extend(epi(lambda rt, t: vC2(rt, t - 6), [6, 7], vA(0, 0)))
    e.extend(epi(lambda rt, t: vC2(rt, t - 6), [8], vA(0, 8)))
    stamp(e, 6)
    stamp_store(e, 8, S_B1, s_wave, 0)
    e.label('.Lk1_end')
    e('s_endpgm')
    return e


def merge_keep(main, fill):
    from asmgen import Raw, Label
    chunks = []
    i = 0
    f = fill.items
    while i < len(f):
        it = f[i]
        if (not isinstance(it, (Raw, Label))) and it.mn.startswith('s_cmp'):
            j = i
            while not isinstance(f[j], Label):
                j += 1
            chunks.append(f[i:j + 1])
            i = j + 1
        elif (not isinstance(it, (Raw, Label))) and it.kind == 'salu':
            j = i
            while j < len(f) - 1 and (not isinstance(f[j], (Raw, Label))) and f[j].kind == 'salu':
                j += 1
            chunks.append(f[i:j + 1])
            i = j + 1
        else:
            chunks.append([it])
            i += 1
    out = Stream()
    m = main.items
    n = len(m)
    ci = 0
    for idx, it in enumerate(m):
        out.items.append(it)
        want = (idx + 1) * len(chunks) // max(n, 1)
        while ci < want:
            out.items.extend(chunks[ci])
            ci += 1
    while ci < len(chunks):
        out.items.extend(chunks[ci])
        ci += 1
    return out


def kd(name, vgpr, sgpr, accum):
    return """.section .rodata,"a"
.p2align 6
.amdhsa_kernel %s
  .amdhsa_next_free_vgpr %d
  .amdhsa_next_free_sgpr %d
  .amdhsa_accum_offset %d
  .amdhsa_group_segment_fixed_size 0
  .amdhsa_kernarg_size 88
  .amdhsa_user_sgpr_count 2
  .amdhsa_user_sgpr_kernarg_segment_ptr 1
  .amdhsa_system_sgpr_workgroup_id_x 1
  .amdhsa_float_denorm_mode_32 3
  .amdhsa_float_denorm_mode_16_64 3
.end_amdhsa_kernel
""" % (name, vgpr, sgpr, accum)


HEADER = open('cdna_kernels/%s.s.ref' % NAME).read().split('; Override launch geometry')[0]


def build(kernels):
    out = [HEADER.rstrip('\n')]
    for (name, st, grid, block, lds, vg, sg, ac) in kernels:
        out.append('; @launch kernel=%s grid=(%d,1,1) block=(%d,1,1) lds=%d' % (name, grid, block, lds))
    out.append('.amdgcn_target "amdgcn-amd-amdhsa--gfx950"')
    out.append('.text')
    for (name, st, grid, block, lds, vg, sg, ac) in kernels:
        out.append('.globl %s' % name)
        out.append('.p2align 8')
        out.append('.type %s,@function' % name)
        drop = os.environ.get('DROP')
        if drop:
            import re as _re
            from asmgen import Ins as _Ins
            st.items = [it for it in st.items if not (isinstance(it, _Ins) and _re.search(drop, it.text))]
        out.extend(finalize(st))
    tab = np.concatenate([TB.image(TB.table_k1()), TB.image(TB.table_k2()), TB.image(TB.table_k3()), TB.table_tw8()])
    assert tab.size * 4 == TAB_SZ
    out.append('.p2align 8')
    out.append('.type const_tab,@object')
    out.append('const_tab:')
    for i in range(0, tab.size, 8):
        out.append('.long ' + ','.join('0x%x' % v for v in tab[i:i + 8]))
    out.append('.size const_tab, %d' % TAB_SZ)
    for (name, st, grid, block, lds, vg, sg, ac) in kernels:
        out.append(kd(name, vg, sg, ac))
    return '\n'.join(out) + '\n'


if __name__ == '__main__':
    ks = [('k1_kernel', gen_k1(), 256, 512, 163840, 256, 102, 256)]
    try:
        from gen23 import gen_k2, gen_k3
        ks.append(('k2_kernel', gen_k2(), 256, 512, 163840, 256, 102, 256))
        ks.append(('k3_kernel', gen_k3(), 256, 512, 53760, 168, 102, 168))
    except ImportError:
        pass
    dst = sys.argv[1] if len(sys.argv) > 1 else 'cdna_kernels/%s.s' % NAME
    open(dst, 'w').write(build(ks))
    print('wrote', dst)
```

```python
import numpy as np
from asmgen import Stream
import tables as TB
from gen import *

W2_SZ = 4608 * 576 * 2
SCP = os.environ.get('SCP', ' sc1')
SCY = os.environ.get('SCY', ' sc1' if MEGA else '')
PROW = 2304


def wscale(e, S_WM, v, t, neg):
    e('v_max_u32 v%d, v%d, v%d' % (v, v, v + 1))
    e('v_max_u32 v%d, v%d, v%d' % (v + 2, v + 2, v + 3))
    e('v_max_u32 v%d, v%d, v%d' % (v, v, v + 2))
    allreduce_wave(e, v, t, 'v_max_u32')
    e('v_lshlrev_b32 v%d, 16, v%d' % (v, v))
    e('v_frexp_exp_i32_f32 v%d, v%d' % (v, v))
    if neg:
        e('v_sub_u32 v%d, 0, v%d' % (v, v))
    e('v_ldexp_f32 v%d, 1.0, v%d' % (v, v))


def cmul_regs(e, ore, oim, dre, dim, twr, twi):
    for r in range(4):
        e('v_mul_f32 v%d, v%d, v%d' % (ore + r, dre + r, twr + r))
        e('v_mul_f32 v%d, v%d, v%d' % (oim + r, dre + r, twi + r))
    for r in range(4):
        e('v_fma_f32 v%d, -v%d, v%d, v%d' % (ore + r, dim + r, twi + r, ore + r))
        e('v_fmac_f32 v%d, v%d, v%d' % (oim + r, dim + r, twr + r))


def gen_k2():
    e = Stream()
    EX = 122880
    FX, FW = 147456, 147456 + 8192
    S_H, S_W2, S_P, S_XF, S_YF, S_WT, S_WM, S_TAB, S_ST = 16, 20, 24, 28, 32, 36, 40, 44, 48
    s_wave, s_ks, s_rb, s_cb, s_t0, s_t1 = 56, 57, 58, 59, 60, 61
    s_b0 = 62
    s_m0b = 63
    s_a0 = 64
    s_a1 = 65
    s_p0 = 66
    s_kh = 67
    s_col = 68
    s_so = 70
    s_rg = 74
    v_be, v_bo = 1, 2
    v_dma = [3, 4, 5]
    v_exw, v_exr = 6, 7
    v_l16 = 8
    v_t0, v_t1 = 9, 10
    v_ya, v_wa, v_sc, v_xl, v_yl = 11, 12, 13, 14, 15
    vB = lambda f: 16 + 4 * f
    vC1 = lambda rt, t: 64 + (t * 2 + rt) * 4
    vC2 = lambda rt, t: 40 + (t * 2 + rt) * 4
    vA = lambda rt, k: 112 + (k * 2 + rt) * 4

    phase_begin(e, 'k2')
    stamp_entry(e)
    e('s_load_dwordx2 s[4:5], s[0:1], 48')
    e('s_load_dwordx2 s[10:11], s[0:1], 80')
    table_srd(e, S_TAB, 'k2')
    e('v_lshrrev_b32 v1, 6, v0')
    e('v_and_b32 v0, 63, v0')
    e('v_readfirstlane_b32 s%d, v1' % s_wave)
    e('s_and_b32 s%d, s2, 7' % s_t0)
    e('s_lshr_b32 s%d, s2, 3' % s_t1)
    e('s_lshl_b32 s%d, s%d, 5' % (s_col, s_t0))
    e('s_add_u32 s%d, s%d, s%d' % (s_col, s_col, s_t1))
    e('s_lshl_b32 s%d, s%d, 5' % (s_col, s_col))
    e('s_lshl_b32 s%d, s%d, 2' % (s_col + 1, s_t0))
    e('s_add_u32 s%d, s%d, s%d' % (s_col + 1, s_col + 1, s_t1))
    e('s_cmp_eq_u32 s2, 32')
    e('s_cselect_b32 s%d, 32, s%d' % (s_col + 1, s_col + 1))
    e('s_add_u32 s%d, s%d, 256' % (s_col + 1, s_col + 1))
    e('s_lshl_b32 s%d, s%d, 5' % (s_col + 1, s_col + 1))
    e('s_lshr_b32 s%d, s%d, 1' % (s_ks, s_t0))
    e('s_and_b32 s%d, s%d, 1' % (s_rb, s_t0))
    e('s_lshl_b32 s%d, s%d, 3' % (s_rb, s_rb))
    e('s_and_b32 s%d, s%d, 7' % (s_cb, s_t1))
    e('s_add_u32 s%d, s%d, s%d' % (s_rb, s_rb, s_cb))
    e('s_lshr_b32 s%d, s%d, 3' % (s_cb, s_t1))
    e('s_mul_i32 s%d, s%d, %d' % (s_b0, s_ks, 1152 * 1152))
    e('s_mul_i32 s%d, s%d, 288' % (s_t0, s_cb))
    e('s_add_u32 s%d, s%d, s%d' % (s_b0, s_b0, s_t0))
    e('s_and_b32 s%d, s%d, 3' % (s_rg, s_wave))
    e('s_lshr_b32 s%d, s%d, 2' % (s_kh, s_wave))
    e('s_lshl_b32 s%d, s%d, 3' % (s_t0, s_rb))
    e('s_lshl_b32 s%d, s%d, 1' % (s_t1, s_rg))
    e('s_add_u32 s%d, s%d, s%d' % (s_t0, s_t0, s_t1))
    e('s_mul_i32 s%d, s%d, 144' % (s_a0, s_t0))
    e('s_mul_i32 s%d, s%d, 36' % (s_t1, s_ks))
    e('s_add_u32 s%d, s%d, s%d' % (s_a0, s_a0, s_t1))
    e('s_mul_i32 s%d, s%d, 18' % (s_t1, s_kh))
    e('s_add_u32 s%d, s%d, s%d' % (s_a0, s_a0, s_t1))
    e('s_lshl_b32 s%d, s%d, 10' % (s_a0, s_a0))
    e('s_add_u32 s%d, s%d, %d' % (s_a1, s_a0, 144 * 1024))
    e('s_add_u32 s%d, s%d, s%d' % (s_t0, s_t0, s_kh))
    e('s_lshl_b32 s%d, s%d, 7' % (s_t1, s_ks))
    e('s_add_u32 s%d, s%d, s%d' % (s_t0, s_t0, s_t1))
    e('s_mul_i32 s%d, s%d, 36' % (s_p0, s_t0))
    e('s_mul_i32 s%d, s%d, 9' % (s_t1, s_cb))
    e('s_add_u32 s%d, s%d, s%d' % (s_p0, s_p0, s_t1))
    e('s_lshl_b32 s%d, s%d, 10' % (s_p0, s_p0))
    e('s_lshl_b32 s%d, s%d, 10' % (s_m0b, s_wave))
    e('v_lshlrev_b32 v%d, 4, v0' % v_l16)
    make_srd(e, S_H, 10, H_SZ, H_OFF)
    make_srd(e, S_XF, 10, XT_SZ, XF_OFF)
    make_srd(e, S_WT, 10, XT_SZ, WT_OFF)
    if MEGA:
        e('s_lshr_b32 s%d, s%d, 1' % (s_t0, s_rb))
        e('s_lshl_b32 s%d, s%d, 5' % (s_t0, s_t0))
        e('s_lshl_b32 s%d, s%d, 3' % (s_t1, s_ks))
        e('s_add_u32 s%d, s%d, s%d' % (s_t0, s_t0, s_t1))
        wait_flags(e, [(0, None, 256), (1, s_t0, 8)], vt=16)

    def fft_dma(st, scol, tag, FX=FX, FW=FW):
        st('s_lshl_b32 s%d, s%d, 8' % (s_so + 2, scol))
        st('s_add_u32 s%d, s%d, s%d' % (s_so + 2, s_so + 2, s_m0b))
        st('s_add_u32 m0, s%d, 0x%x' % (s_m0b, FX))
        st('buffer_load_dwordx4 v%d, s[%d:%d], s%d offen%s lds' % (v_l16, S_XF, S_XF + 3, s_so + 2, LD1), tok=(tag, 0))
        st('s_add_u32 m0, s%d, 0x%x' % (s_m0b, FW))
        st('buffer_load_dwordx4 v%d, s[%d:%d], s%d offen%s lds' % (v_l16, S_WT, S_WT + 3, s_so + 2, LD1), tok=(tag, 1))

    def aload(k):
        st = Stream()
        for rt in range(2):
            so = (s_a0, s_a1)[rt]
            if k >= 4 and k % 4 == 0:
                st('s_add_u32 s%d, s%d, 4096' % (so, so))
            st('buffer_load_dwordx4 %s, v%d, s[%d:%d], s%d offen offset:%d%s' % (vr(vA(rt, k), 4), v_l16, S_H, S_H + 3, so, (k % 4) * 1024, LD1))
        return st

    fft_dma(e, s_col, 'f1')
    e('s_cmp_gt_u32 s2, 32')
    e('s_cbranch_scc1 .Lk2_nod2')
    e.cond_begin()
    fft_dma(e, s_col + 1, 'f2', EX, EX + 8192)
    e.cond_end()
    e.label('.Lk2_nod2')
    TB2 = 96
    for q in range(4):
        e('s_movk_i32 s%d, 0x%x' % (s_t1, T2_OFF + q * 1024))
        e('buffer_load_dwordx4 %s, v%d, s[%d:%d], s%d offen' % (vr(TB2 + 4 * q, 4), v_l16, S_TAB, S_TAB + 3, s_t1))
    make_srd(e, S_WM, 10, 1024, WM_OFF)
    e('buffer_load_dwordx4 v[92:95], v%d, s[%d:%d], 0 offen%s' % (v_l16, S_WM, S_WM + 3, LD1))
    e.extend(aload(0))
    make_srd(e, S_W2, 4, W2_SZ)

    def dma_setup(st, upr, swz):
        st('s_lshl_b32 s%d, s%d, 6' % (s_t0, s_wave))
        st('s_mov_b32 s%d, 0x%x' % (s_t1, 0x15556 if upr == 12 else 0x2aaab))
        for q in range(3):
            d = v_dma[q]
            st('v_add_u32 v%d, s%d, v0' % (d, s_t0))
            if q:
                st('v_add_u32 v%d, %d, v%d' % (d, q * 512, d))
            st('v_mul_u32_u24 v%d, s%d, v%d' % (v_t0, s_t1, d))
            st('v_lshrrev_b32 v%d, 20, v%d' % (v_t0, v_t0))
            st('v_mul_u32_u24 v%d, %d, v%d' % (v_t1, upr, v_t0))
            st('v_sub_u32 v%d, v%d, v%d' % (d, d, v_t1))
            if swz:
                st('v_bfe_u32 v%d, v%d, 2, 1' % (v_t1, v_t0))
                st('v_lshlrev_b32 v%d, 1, v%d' % (v_t1, v_t1))
                st('v_xor_b32 v%d, v%d, v%d' % (d, d, v_t1))
            st('v_lshlrev_b32 v%d, 4, v%d' % (d, d))
            st('v_bfe_u32 v%d, v%d, 5, 1' % (v_t1, v_t0))
            st('v_mul_u32_u24 v%d, %d, v%d' % (v_t1, 576 * 1152, v_t1))
            st('v_add_u32 v%d, v%d, v%d' % (d, d, v_t1))
            st('v_lshrrev_b32 v%d, 6, v%d' % (v_t1, v_t0))
            st('v_and_b32 v%d, 31, v%d' % (v_t0, v_t0))
            st('v_lshl_add_u32 v%d, v%d, 5, v%d' % (v_t0, v_t1, v_t0))
            st('v_mul_u32_u24 v%d, 1152, v%d' % (v_t0, v_t0))
            st('v_add_u32 v%d, v%d, v%d' % (d, d, v_t0))

    dma_setup(e, 12, True)

    def bdma(q):
        st = Stream()
        if q == 27:
            dma_setup(st, 6, False)
        cond = (q == 40)
        if cond:
            st('s_cmp_ge_u32 s%d, 4' % s_wave)
            st('s_cbranch_scc1 .Lk2_dma40')
            st.cond_begin()
        so = s_so + (q % 2)
        if q < 27:
            st('s_add_u32 s%d, s%d, 0x%x' % (so, s_b0, (q // 3) * 64 * 1152))
        else:
            st('s_add_u32 s%d, s%d, 0x%x' % (so, s_b0, ((q - 27) // 3) * 128 * 1152 + 192))
        st('s_add_u32 m0, s%d, 0x%x' % (s_m0b, (q % 15) * 8192))
        st('buffer_load_dwordx4 v%d, s[%d:%d], s%d offen lds' % (v_dma[q % 3], S_W2, S_W2 + 3, so), tok=('d', q))
        if cond:
            st.cond_end()
            st.label('.Lk2_dma40')
        return st

    nq = [0]
    na = [1]

    def issue_upto(st, ka, unit_lim):
        while True:
            did = False
            for _ in range(2 if nq[0] % 3 == 0 else 1):
                if nq[0] < 41 and (nq[0] + 1) * 8 <= unit_lim:
                    st.extend(bdma(nq[0]))
                    nq[0] += 1
                    did = True
            if na[0] < min(ka, 18):
                st.extend(aload(na[0]))
                na[0] += 1
                did = True
            if not did:
                break

    issue_upto(e, 3, 32)
    make_srd(e, S_YF, 10, XF_SZ, YF_OFF)
    make_srd(e, S_P, 10, P_SZ, P_OFF)
    if STAMP:
        make_srd(e, S_ST, 10, 1 << 20, ST_OFF)
    stamp(e, 0)
    e('v_lshrrev_b32 v%d, 4, v0' % v_t0)
    e('v_and_b32 v%d, 15, v0' % v_t1)
    e('v_lshl_add_u32 v%d, v%d, 6, v%d' % (v_xl, v_t0, v_t1))
    e('s_lshl_b32 s%d, s%d, 2' % (s_t0, s_wave))
    e('v_lshlrev_b32 v%d, 5, v%d' % (v_xl, v_xl))
    e('v_add_u32 v%d, s%d, v%d' % (v_xl, s_t0, v_xl))
    e('v_add_u32 v%d, 0x%x, v%d' % (v_xl, FX, v_xl))
    e('v_lshrrev_b32 v%d, 5, v0' % v_wa)
    e('v_lshlrev_b32 v%d, 4, v%d' % (v_wa, v_wa))
    e('v_add_u32 v%d, v%d, v%d' % (v_wa, v_wa, v_t1))
    e('v_lshlrev_b32 v%d, 3, v%d' % (v_wa, v_wa))
    e('v_add_u32 v%d, s%d, v%d' % (v_wa, s_wave, v_wa))
    e('v_lshlrev_b32 v%d, 5, v%d' % (v_wa, v_wa))
    e('v_and_b32 v%d, 1, v%d' % (v_t0, v_t0))
    e('v_lshl_add_u32 v%d, v%d, 4, v%d' % (v_wa, v_t0, v_wa))
    e('v_add_u32 v%d, 0x%x, v%d' % (v_wa, FW, v_wa))
    e('v_add_u32 v%d, s%d, v%d' % (v_yl, s_m0b, v_l16))
    e('v_lshrrev_b32 v%d, 5, v%d' % (v_ya, v_yl))
    e('v_mul_u32_u24 v%d, %d, v%d' % (v_ya, XF_ROW, v_ya))
    e('v_and_b32 v%d, 16, v%d' % (v_t0, v_l16))
    e('v_add_u32 v%d, v%d, v%d' % (v_ya, v_ya, v_t0))
    e('v_add_u32 v%d, 0x%x, v%d' % (v_yl, FX, v_yl))

    def fft_col(st):
        F_re, F_im, twr, twi = TB2, TB2 + 4, TB2 + 8, TB2 + 12
        A, Dre, Dim, Tre, Tim, Wp, Wr, Wi = 40, 44, 48, 52, 56, 60, 64, 68
        for r in range(4):
            st('ds_read_b32 v%d, v%d offset:%d' % (A + r, v_xl, r * 512))
        st('ds_read_b128 %s, v%d' % (vr(Wp, 4), v_wa))
        for half in range(2):
            st('v_mfma_f32_16x16x32_f16 %s, %s, %s, 0' % (vr(Dre, 4), vr(A, 4), vr(F_re, 4)))
            st('v_mfma_f32_16x16x32_f16 %s, %s, %s, 0' % (vr(Dim, 4), vr(A, 4), vr(F_im, 4)))
            if half == 0:
                for r in range(4):
                    st('v_lshlrev_b32 v%d, 16, v%d' % (Wr + r, Wp + r))
                    st('v_and_b32 v%d, 0xffff0000, v%d' % (Wi + r, Wp + r))
            cmul_regs(st, Tre, Tim, Dre, Dim, twr, twi)
            for r in range(4):
                st('v_cvt_pk_f16_f32 v%d, v%d, v%d' % (A + r, Tre + r, Tim + r))
            st('v_mfma_f32_16x16x32_f16 %s, %s, %s, 0' % (vr(Dre, 4), vr(F_re, 4), vr(A, 4)))
            st('v_mfma_f32_16x16x32_f16 %s, %s, %s, 0' % (vr(Dim, 4), vr(F_im, 4), vr(A, 4)))
            if half == 0:
                for r in range(4):
                    st('v_mul_f32 v%d, v%d, v%d' % (Wr + r, v_sc, Wr + r))
                    st('v_mul_f32 v%d, v%d, v%d' % (Wi + r, v_sc, Wi + r))
                cmul_regs(st, Tre, Tim, Dre, Dim, Wr, Wi)
                for r in range(4):
                    st('v_cvt_pk_f16_f32 v%d, v%d, v%d' % (A + r, Tim + r, Tre + r))
            else:
                for r in range(4):
                    st('v_cvt_pk_f16_f32 v%d, v%d, v%d' % (A + r, Dim + r, Dre + r))
        for r in range(4):
            st('ds_write_b32 v%d, v%d offset:%d' % (v_xl, A + r, r * 512))

    def fft_out(st, scol):
        st('ds_read_b128 v[40:43], v%d' % v_yl)
        st('buffer_store_dwordx4 v[40:43], v%d, s[%d:%d], s%d offen%s' % (v_ya, S_YF, S_YF + 3, scol, SCY))

    f1 = Stream()
    wscale(f1, S_WM, 92, v_sc, True)
    f1('v_mov_b32 v%d, v92' % v_sc)
    f1('s_barrier', needs=[('f1', 0), ('f1', 1), ('f2', 0), ('f2', 1)])
    fft_col(f1)
    ld = Stream()
    LA, LB = int(os.environ.get('K2LA', '6')), int(os.environ.get('K2LB', '6'))
    issue_upto(ld, LA, LB * 12)
    e.extend(merge_keep(f1, ld))
    e('s_waitcnt lgkmcnt(0)')
    e('s_barrier')
    fft_out(e, s_col)
    e('s_cmp_gt_u32 s2, 32')
    e('s_cbranch_scc1 .Lk2_noc2')
    e.cond_begin()
    for r_ in (v_xl, v_wa, v_yl):
        e('v_subrev_u32 v%d, %d, v%d' % (r_, FX - EX, r_))
    fft_col(e)
    e('s_waitcnt lgkmcnt(0)')
    e('s_barrier')
    fft_out(e, s_col + 1)
    e.cond_end()
    e.label('.Lk2_noc2')
    stamp(e, 1)

    e('v_lshrrev_b32 v%d, 2, v0' % v_t0)
    e('v_mul_u32_u24 v%d, 192, v%d' % (v_be, v_t0))
    e('v_and_b32 v%d, 3, v0' % v_t1)
    e('v_lshl_add_u32 v%d, v%d, 3, v%d' % (v_be, v_t1, v_be))
    e('s_mul_i32 s%d, s%d, 6144' % (s_t0, s_kh))
    e('v_add_u32 v%d, s%d, v%d' % (v_be, s_t0, v_be))
    e('v_bfe_u32 v%d, v0, 4, 1' % v_t1)
    e('v_lshlrev_b32 v%d, 5, v%d' % (v_t1, v_t1))
    e('v_sub_u32 v%d, v%d, v%d' % (v_bo, v_be, v_t1))
    e('v_add_u32 v%d, 32, v%d' % (v_bo, v_bo))
    e('v_add_u32 v%d, v%d, v%d' % (v_be, v_be, v_t1))
    e('v_mul_u32_u24 v%d, 96, v%d' % (v_wa, v_t0))
    e('v_and_b32 v%d, 3, v0' % v_t1)
    e('v_lshl_add_u32 v%d, v%d, 3, v%d' % (v_wa, v_t1, v_wa))
    e('s_mul_i32 s%d, s%d, 3072' % (s_t0, s_kh))
    e('v_add_u32 v%d, s%d, v%d' % (v_wa, s_t0, v_wa))
    e('v_add_u32 v%d, 61440, v%d' % (v_xl, v_wa))
    e('v_add_u32 v%d, 61440, v%d' % (v_ya, v_be))
    e('v_add_u32 v%d, 61440, v%d' % (v_yl, v_bo))
    e('s_mul_i32 s%d, s%d, 3072' % (s_t0, s_wave))
    e('s_add_u32 s%d, s%d, 0x%x' % (s_t0, s_t0, EX))
    e('v_add_u32 v%d, s%d, v%d' % (v_exw, s_t0, v_l16))
    e('s_xor_b32 s%d, s%d, 4' % (s_t1, s_wave))
    e('s_mul_i32 s%d, s%d, 3072' % (s_t0, s_t1))
    e('s_add_u32 s%d, s%d, 0x%x' % (s_t0, s_t0, EX))
    e('v_add_u32 v%d, s%d, v%d' % (v_exr, s_t0, v_l16))
    e('s_cmp_eq_u32 s%d, 1' % s_kh)
    e('s_cselect_b64 s[76:77], -1, 0')

    WIN = 61440
    ring1 = lambda k: (k % 10) * 12288
    ring2 = lambda k: ((96 + 6 * k) % 120) * 1024

    def fread(p, al):
        f = p % 6
        if p < 108:
            k, t = divmod(p, 6)
            ro = ring1(k)
            base = ((v_be, v_bo), (v_ya, v_yl))[ro >= WIN][t & 1]
            off = ro % WIN + al * 3072 + (t >> 1) * 64
        else:
            k, t = divmod(p - 108, 3)
            ro = ring2(k)
            base = (v_wa, v_xl)[ro >= WIN]
            off = ro % WIN + al * 1536 + t * 32
        return 'ds_read_b64_tr_b16 %s, v%d offset:%d' % (vr(vB(f) + 2 * al, 2), base, off)

    def units_needed(p):
        if p < 108:
            return (p // 6 + 1) * 12
        return 216 + ((p - 108) // 3 + 1) * 6

    def sync(units, extra=()):
        st = Stream()
        st('s_barrier', needs=[('d', q) for q in range(min(-(-units // 8), 41))] + list(extra))
        return st

    def mf(p, rt):
        if p < 108:
            k, t = divmod(p, 6)
            c = vC1(rt, t)
        else:
            k, t = divmod(p - 108, 3)
            c = vC2(rt, t)
        return 'v_mfma_f32_16x16x32_bf16 %s, %s, %s, %s' % (vr(c, 4), vr(vB(p % 6), 4), vr(vA(rt, k), 4), vr(c, 4) if k else '0')

    def ex_send(accf, tiles, T):
        st = Stream()
        for i, t in enumerate(tiles):
            for r in range(4):
                st('v_cndmask_b32 v%d, v%d, v%d, s[76:77]' % (T + 4 * i + r, accf(1, t) + r, accf(0, t) + r))
            for r in range(4):
                st('v_cndmask_b32 v%d, v%d, v%d, s[76:77]' % (accf(0, t) + r, accf(0, t) + r, accf(1, t) + r))
            st('ds_write_b128 v%d, %s offset:%d' % (v_exw, vr(T + 4 * i, 4), i * 1024), tok=('exw', t))
        return st

    def ex_recv(accf, tiles, T, tbase):
        st = Stream()
        for i, t in enumerate(tiles):
            st('ds_read_b128 %s, v%d offset:%d' % (vr(T + 4 * i, 4), v_exr, i * 1024), tok=('exr', t + tbase))
        for i, t in enumerate(tiles):
            for r in range(4):
                st('v_add_f32 v%d, v%d, v%d' % (accf(0, t) + r, accf(0, t) + r, T + 4 * i + r))
            gt = tbase + t
            st('s_add_u32 s%d, s%d, %d' % (s_so + 3, s_p0, (gt // 4) * 4096))
            st('buffer_store_dwordx4 %s, v%d, s[%d:%d], s%d offen offset:%d%s' % (vr(accf(0, t), 4), v_l16, S_P, S_P + 3, s_so + 3, (gt % 4) * 1024, SCP))
        return st

    stamp(e, 2)
    GRP = 12
    D = 5
    e.extend(sync(units_needed(GRP + D - 1)))
    stamp(e, 3)
    for p in range(D):
        e(fread(p, 0))
        e(fread(p, 1))
    T1, T2 = vA(0, 0), vA(0, 2)
    fills = {}
    fills[10] = ex_send(vC1, [0, 1, 2], T1)
    fills[11] = ex_recv(vC1, [0, 1, 2], T2, 0)
    fills[12] = ex_send(vC1, [3, 4, 5], T1)
    fills[13] = ex_recv(vC1, [3, 4, 5], T2, 0)
    for g in range(14):
        p0, p1 = g * GRP, min((g + 1) * GRP, 162)
        fill = Stream()
        stamp(e, 0, grp=g)
        if g > 0:
            extra = []
            if g in (11, 13):
                extra = [('exw', t) for t in range(6)]
            if g == 12:
                extra = [('exr', t) for t in range(6)]
            e.extend(sync(units_needed(min(p1 + D - 1, 161)), extra))
            if g == 9:
                stamp(e, 4)
            free = (p0 // 6) * 12 if p0 <= 108 else 216 + ((p0 - 108) // 3) * 6
            issue_upto(fill, 2 * g + 2 + LA, min(free + 120, (2 * g + 2 + LB) * 12 if g < 9 else 10000))
        else:
            issue_upto(fill, 2 + LA, min(120, (2 + LB) * 12))
        if g in fills:
            fill.extend(fills[g])
        main = Stream()
        for p in range(p0, p1):
            main(mf(p, 0))
            if p + D < 162:
                main(fread(p + D, 0))
            main(mf(p, 1))
            if p + D < 162:
                main(fread(p + D, 1))
        e.extend(merge_keep(main, fill))
    stamp(e, 5)
    e('s_barrier', needs=[('exr', t) for t in range(6)])
    e.extend(ex_send(vC2, [0, 1, 2], T1))
    e('s_waitcnt lgkmcnt(0)')
    e('s_barrier')
    e.extend(ex_recv(vC2, [0, 1, 2], T2, 6))
    stamp(e, 6)
    stamp_store(e, 8, S_ST, s_wave, 1, nw=8)
    if MEGA:
        e('s_lshl_b32 s%d, s%d, 4' % (s_t0, s_rb))
        e('s_lshl_b32 s%d, s%d, 2' % (s_t1, s_ks))
        e('s_add_u32 s%d, s%d, s%d' % (s_t0, s_t0, s_t1))
        e('s_add_u32 s%d, s%d, s%d' % (s_t0, s_t0, s_cb))
        publish(e, 2, s_t0)
    phase_end(e, 'k2')
    return e


def gen_k3():
    e = Stream()
    YL = 0
    OL = 9600
    S_X, S_B2, S_O, S_P, S_YF, S_WM, S_TAB, S_ST = 16, 20, 24, 28, 32, 36, 40, 44
    s_wave, s_t0, s_t1, s_row = 56, 57, 58, 59
    s_r2 = 60
    s_ex = 62
    s_tw = 64
    s_l2e = 80
    v_tid, v_l16, v_t0, v_t1, v_l8 = 1, 2, 3, 4, 5
    v_tl = 168
    TB3 = 8
    phase_begin(e, 'k3')
    stamp_entry(e)
    e('s_load_dwordx2 s[4:5], s[0:1], 0')
    e('s_load_dwordx4 s[8:11], s[0:1], 56')
    e('s_load_dwordx2 s[12:13], s[0:1], 80')
    table_srd(e, S_TAB, 'k3')
    e('v_mov_b32 v%d, v0' % v_tid)
    e('v_lshrrev_b32 v2, 6, v0')
    e('v_and_b32 v0, 63, v0')
    e('v_readfirstlane_b32 s%d, v2' % s_wave)
    e('v_lshlrev_b32 v%d, 4, v0' % v_l16)
    e('v_lshlrev_b32 v%d, 3, v0' % v_l8)
    e('v_add_u32 v%d, 53760, v%d' % (v_tl, v_l16))
    e('s_mov_b32 s%d, %s' % (s_r2, fbits(0.5 ** 0.5)))
    e('s_mov_b32 s%d, %s' % (s_r2 + 1, fbits(0.5 ** 0.5)))
    e('s_mov_b32 s%d, %s' % (s_l2e, fbits(-np.log2(np.e))))
    make_srd(e, S_YF, 12, XF_SZ, YF_OFF)
    e('s_lshl_b32 s%d, s2, 6' % s_t0)
    e('s_add_u32 s%d, s%d, 0x%x' % (s_t0, s_t0, TW8_OFF))
    e('s_add_u32 s%d, s%d, s%d' % (s_ex, S_TAB, s_t0))
    e('s_addc_u32 s%d, s%d, 0' % (s_ex + 1, S_TAB + 1))
    e('s_load_dwordx16 s[%d:%d], s[%d:%d], 0' % (s_tw, s_tw + 15, s_ex, s_ex + 1))
    if MEGA:
        wait_flags(e, [(2, None, 256)], vt=16)
    e('s_mul_i32 s%d, s2, %d' % (s_t1, XF_ROW))
    e('v_lshlrev_b32 v%d, 5, v%d' % (v_t0, v_tid))
    e('buffer_load_dwordx4 v[64:67], v%d, s[%d:%d], s%d offen%s' % (v_t0, S_YF, S_YF + 3, s_t1, LD1))
    e('buffer_load_dwordx4 v[68:71], v%d, s[%d:%d], s%d offen offset:16%s' % (v_t0, S_YF, S_YF + 3, s_t1, LD1))
    make_srd(e, S_P, 12, P_SZ, P_OFF)
    make_srd(e, S_WM, 12, 1024, WM_OFF)
    make_srd(e, S_X, 4, X_SZ)
    make_srd(e, S_B2, 8, 1152)
    make_srd(e, S_O, 10, X_SZ)
    if STAMP:
        make_srd(e, S_ST, 12, 1 << 20, ST_OFF)
    stamp(e, 0)
    TL3 = 53760
    e('s_lshl_b32 s%d, s%d, 10' % (s_t0, s_wave))
    e('s_add_u32 m0, s%d, 0x%x' % (s_t0, TL3))
    e('s_add_u32 s%d, s%d, 0x%x' % (s_t1, s_t0, T3_OFF))
    e('buffer_load_dwordx4 v%d, s[%d:%d], s%d offen lds' % (v_l16, S_TAB, S_TAB + 3, s_t1), tok=('tl', 0))
    e('s_add_u32 m0, s%d, 0x%x' % (s_t0, TL3 + 8192))
    e('s_add_u32 s%d, s%d, 0x%x' % (s_t1, s_t0, T3_OFF + 8192))
    e('buffer_load_dwordx4 v%d, s[%d:%d], s%d offen lds' % (v_l16, S_TAB, S_TAB + 3, s_t1), tok=('tl', 1))
    e('buffer_load_dwordx4 v[104:107], v%d, s[%d:%d], 0 offen%s' % (v_l16, S_WM, S_WM + 3, LD1))
    e('s_lshl_b32 s%d, s%d, 8' % (s_row, s_wave))
    e('s_add_u32 s%d, s%d, s2' % (s_row, s_row))
    e('v_cmp_gt_u32 vcc, 16, v0')
    e('v_mov_b32 v%d, 0x7ffffff0' % v_t1)
    e('v_cndmask_b32 v7, v%d, v%d, vcc' % (v_t1, v_l8))
    PR = 108
    e('v_lshrrev_b32 v%d, 3, v%d' % (v_t0, v_tid))
    e('v_lshlrev_b32 v%d, 8, v%d' % (v_t0, v_t0))
    e('v_and_b32 v6, 7, v%d' % v_tid)
    e('v_lshl_add_u32 v%d, v6, 4, v%d' % (v_t0, v_t0))
    e('v_cmp_gt_u32 vcc, 128, v%d' % v_tid)
    e('v_cndmask_b32 v6, v%d, v%d, vcc' % (v_t1, v_t0))
    e('s_lshr_b32 s%d, s2, 1' % s_t0)
    e('s_mul_i32 s%d, s%d, 36864' % (s_t0, s_t0))
    e('s_and_b32 s%d, s2, 1' % s_t1)
    e('s_lshl_b32 s%d, s%d, 7' % (s_t1, s_t1))
    e('s_add_u32 s%d, s%d, s%d' % (s_t0, s_t0, s_t1))
    s_pb, s_po = 82, 83
    v_pa = 169
    e('s_mov_b32 s%d, s%d' % (s_pb, s_t0))
    e('v_mov_b32 v%d, v%d' % (v_pa, v_t0))
    XR, BR2 = 156, 162
    e('s_mul_i32 s%d, s%d, 1152' % (s_row, s_row))
    ld = Stream()
    for ks in range(4):
        for j in range(3):
            ld('s_add_u32 s%d, s%d, 0x%x' % (s_po, s_pb, ks * 128 * 36864 + j * 16384))
            ld('buffer_load_dwordx4 %s, v%d, s[%d:%d], s%d offen%s' % (vr(PR + (ks * 3 + j) * 4, 4), v_pa if j < 2 else 6, S_P, S_P + 3, s_po, LD1))
    for j in range(3):
        ld('buffer_load_dwordx2 %s, v%d, s[%d:%d], s%d offen offset:%d' % (vr(XR + 2 * j, 2), v_l8 if j < 2 else 7, S_X, S_X + 3, s_row, j * 512))
        ld('buffer_load_dwordx2 %s, v%d, s[%d:%d], 0 offen offset:%d' % (vr(BR2 + 2 * j, 2), v_l8 if j < 2 else 7, S_B2, S_B2 + 3, j * 512))
    K3A, K3B = int(os.environ.get('K3A', '4')), int(os.environ.get('K3B', '8'))
    l0 = Stream(); l0.items = ld.items[:2 * K3A]
    l1 = Stream(); l1.items = ld.items[2 * K3A:2 * K3B]
    l2 = Stream(); l2.items = ld.items[2 * K3B:]
    e.extend(l0)
    stamp(e, 4)
    f = Stream()
    for k1 in range(8):
        c, s = s_tw + 2 * k1, s_tw + 2 * k1 + 1
        f('v_cvt_f32_f16 v%d, v%d' % (v_t0, 64 + k1))
        f('v_cvt_f32_f16_sdwa v%d, v%d dst_sel:DWORD dst_unused:UNUSED_PAD src0_sel:WORD_1' % (v_t1, 64 + k1))
        d = 72 + 2 * k1
        f('v_mul_f32 v%d, s%d, v%d' % (d, c, v_t0))
        f('v_mul_f32 v%d, s%d, v%d' % (d + 1, c, v_t1))
        f('v_mul_f32 v%d, s%d, v%d' % (v_t1, s, v_t1))
        f('v_mul_f32 v%d, s%d, v%d' % (v_t0, s, v_t0))
        f('v_add_f32 v%d, v%d, v%d' % (d, d, v_t1))
        f('v_sub_f32 v%d, v%d, v%d' % (d + 1, d + 1, v_t0))
    X = radix8(f, 72, 88, s_r2, inverse=True)
    f('v_cmp_ne_u32 vcc, 0, v%d' % v_tid)
    f('v_mov_b32 v%d, 0x120' % v_t0)
    f('v_cmp_ne_u32 s[%d:%d], v%d, v%d' % (s_ex, s_ex + 1, v_t0, v_tid))
    f('s_and_b64 vcc, vcc, s[%d:%d]' % (s_ex, s_ex + 1))
    f('v_lshlrev_b32 v%d, 2, v%d' % (v_t0, v_tid))
    f('v_min_u32 v%d, %d, v%d' % (v_t0, 295 * 4, v_t0))
    for n in range(8):
        f('v_cndmask_b32 v%d, 0, v%d, vcc' % (X[n] + 1, X[n] + 1))
        f('v_cvt_pk_f16_f32 v%d, v%d, v%d' % (64 + n, X[n], X[n] + 1))
        f('ds_write_b32 v%d, v%d offset:%d' % (v_t0, 64 + n, YL + n * TB.YL_ROW))
    e('s_cmp_ge_u32 s%d, 5' % s_wave)
    e('s_cbranch_scc1 .Lk3_nor8')
    e.cond_begin()
    e.extend(f)
    e.cond_end()
    e.label('.Lk3_nor8')
    stamp(e, 6)
    e.extend(l1)
    e('s_waitcnt lgkmcnt(0)')
    e('s_barrier', needs=[('tl', 0), ('tl', 1)])
    stamp(e, 1)
    f = Stream()
    for q in (12, 13, 0, 1, 2, 3, 4, 5, 6, 7, 8, 9, 10, 11):
        f('ds_read_b128 %s, v%d offset:%d' % (vr(TB3 + 4 * q, 4), v_tl, q * 1024))
    f('s_mul_i32 s%d, s%d, %d' % (s_t0, s_wave, TB.YL_ROW))
    for i in range(8):
        f('v_add_u32 v%d, s%d, v%d' % (TB3 + 48 + i, s_t0, TB3 + 48 + i))
    for i in range(8):
        f('ds_read_b32 v%d, v%d offset:%d' % (64 + i, TB3 + 48 + i, YL))
    wscale(f, S_WM, 104, v_t0, False)
    for ct in range(2):
        f('v_mfma_f32_16x16x32_f16 %s, %s, %s, 0' % (vr(72 + ct * 8, 4), vr(64 + 4 * ct, 4), vr(TB3, 4)))
        f('v_mfma_f32_16x16x32_f16 %s, %s, %s, 0' % (vr(76 + ct * 8, 4), vr(64 + 4 * ct, 4), vr(TB3 + 4, 4)))
    for ct in range(2):
        cmul_regs(f, 88, 92, 72 + ct * 8, 76 + ct * 8, TB3 + 8 + ct * 8, TB3 + 12 + ct * 8)
        for r in range(4):
            f('v_cvt_pk_f16_f32 v%d, v%d, v%d' % (64 + 4 * ct + r, 88 + r, 92 + r))
    for ta in range(3):
        f('v_mfma_f32_16x16x32_f16 %s, v[64:67], %s, 0' % (vr(72 + 4 * ta, 4), vr(TB3 + 24 + ta * 8, 4)))
    for ta in range(3):
        f('v_mfma_f32_16x16x32_f16 %s, v[68:71], %s, %s' % (vr(72 + 4 * ta, 4), vr(TB3 + 28 + ta * 8, 4), vr(72 + 4 * ta, 4)))
    e.extend(merge_keep(f, l2))
    stamp(e, 5)
    for j in range(3):
        for r in range(4):
            i0 = PR + j * 4 + r
            e('v_add_f32 v%d, v%d, v%d' % (i0, i0, i0 + 12))
            e('v_add_f32 v%d, v%d, v%d' % (i0 + 24, i0 + 24, i0 + 36))
    for j in range(3):
        for r in range(4):
            i0 = PR + j * 4 + r
            e('v_add_f32 v%d, v%d, v%d' % (i0, i0, i0 + 24))
    OS = OL + 8 * 3072
    e('v_and_b32 v%d, 7, v%d' % (v_t0, v_tid))
    e('v_mul_u32_u24 v%d, 2320, v%d' % (v_t0, v_t0))
    e('v_lshrrev_b32 v%d, 3, v%d' % (v_t1, v_tid))
    e('v_lshl_add_u32 v%d, v%d, 4, v%d' % (v_t0, v_t1, v_t0))
    e('ds_write_b128 v%d, %s offset:%d' % (v_t0, vr(PR, 4), OS))
    e('ds_write_b128 v%d, %s offset:%d' % (v_t0, vr(PR + 4, 4), OS + 1024))
    e('s_cmp_ge_u32 s%d, 2' % s_wave)
    e('s_cbranch_scc1 .Lk3_now2')
    e.cond_begin()
    e('ds_write_b128 v%d, %s offset:%d' % (v_t0, vr(PR + 8, 4), OS + 2048))
    e.cond_end()
    e.label('.Lk3_now2')
    e('v_and_b32 v%d, 15, v0' % v_t0)
    e('v_lshrrev_b32 v%d, 4, v0' % v_t1)
    e('v_lshl_add_u32 v%d, v%d, 2, v%d' % (v_t0, v_t0, v_t1))
    e('v_lshlrev_b32 v%d, 4, v%d' % (v_t0, v_t0))
    e('s_mul_i32 s%d, s%d, 3072' % (s_t0, s_wave))
    e('s_add_u32 s%d, s%d, %d' % (s_t0, s_t0, OL))
    e('v_add_u32 v%d, s%d, v%d' % (v_t0, s_t0, v_t0))
    e('v_add_u32 v%d, s%d, v%d' % (v_t1, s_t0, v_l16))
    for ta in range(3):
        e('ds_write_b128 v%d, %s offset:%d' % (v_t0, vr(72 + 4 * ta, 4), ta * 1024))
    e('s_waitcnt lgkmcnt(0)')
    e('s_barrier')
    for ta in range(3):
        e('ds_read_b128 %s, v%d offset:%d' % (vr(84 + 4 * ta, 4), v_t1, ta * 1024))
    e('s_mul_i32 s%d, s%d, 2320' % (s_t0, s_wave))
    e('v_add_u32 v%d, s%d, v%d' % (v_t1, s_t0, v_l16))
    for j in range(3):
        e('ds_read_b128 %s, v%d offset:%d' % (vr(PR + 4 * j, 4), v_t1, OS + j * 1024))
    U = 120

    def round_pairs(regs):
        for i in range(0, len(regs), 2):
            e('v_cvt_pk_bf16_f32 v%d, v%d, v%d' % (regs[i + 1], regs[i], regs[i + 1]))
        for i in range(0, len(regs), 2):
            e('v_lshlrev_b32 v%d, 16, v%d' % (regs[i], regs[i + 1]))
            e('v_and_b32 v%d, 0xffff0000, v%d' % (regs[i + 1], regs[i + 1]))
    O = [PR + i for i in range(12)]
    Bv = [U + i for i in range(12)]
    Xv = [U + 12 + i for i in range(12)]
    Tv = [U + 24 + i for i in range(12)]
    Sv = [84 + i for i in range(12)]
    round_pairs(O)
    for i in range(6):
        e('v_lshlrev_b32 v%d, 16, v%d' % (Bv[2 * i], BR2 + i))
        e('v_and_b32 v%d, 0xffff0000, v%d' % (Bv[2 * i + 1], BR2 + i))
        e('v_lshlrev_b32 v%d, 16, v%d' % (Xv[2 * i], XR + i))
        e('v_and_b32 v%d, 0xffff0000, v%d' % (Xv[2 * i + 1], XR + i))
    for i in range(12):
        e('v_add_f32 v%d, v%d, v%d' % (O[i], O[i], Bv[i]))
    round_pairs(O)
    for i in range(12):
        e('v_mul_f32 v%d, s%d, v%d' % (Tv[i], s_l2e, O[i]))
    for i in range(12):
        e('v_exp_f32 v%d, v%d' % (Tv[i], Tv[i]))
    for i in range(12):
        e('v_add_f32 v%d, 1.0, v%d' % (Tv[i], Tv[i]))
    for i in range(12):
        e('v_rcp_f32 v%d, v%d' % (Tv[i], Tv[i]))
    for i in range(12):
        e('v_mul_f32 v%d, v%d, v%d' % (O[i], O[i], Tv[i]))
    round_pairs(O)
    for i in range(12):
        e('v_mul_f32 v%d, v104, v%d' % (Sv[i], Sv[i]))
    round_pairs(Sv)
    for i in range(12):
        e('v_mul_f32 v%d, v%d, v%d' % (O[i], O[i], Sv[i]))
    round_pairs(O)
    for i in range(12):
        e('v_add_f32 v%d, v%d, v%d' % (O[i], O[i], Xv[i]))
    for i in range(6):
        e('v_cvt_pk_bf16_f32 v%d, v%d, v%d' % (Tv[i], O[2 * i], O[2 * i + 1]))
    for j in range(3):
        e('buffer_store_dwordx2 %s, v%d, s[%d:%d], s%d offen offset:%d' % (vr(Tv[2 * j], 2), v_l8 if j < 2 else 7, S_O, S_O + 3, s_row, j * 512))
    stamp(e, 2)
    if STAMP:
        e('s_waitcnt vmcnt(0)')
    stamp(e, 3)
    stamp_store(e, 8, S_ST, s_wave, 2)
    phase_end(e, 'k3')
    return e
```

```python
import sys
import numpy as np
from asmgen import Stream
import tables as TB
from gen import *
from gen23 import gen_k2, gen_k3

Y_OFF = 0x3000000
Y_SZ = 128 * 18 * 1024


def ln_rows(f, X0, T0_, M_, V_, Q_):
    f('v_add_f32 v%d, v%d, v%d' % (M_, X0, X0 + 1))
    f('v_add_f32 v%d, v%d, v%d' % (V_, X0 + 2, X0 + 3))
    f('v_add_f32 v%d, v%d, v%d' % (Q_, X0 + 4, X0 + 5))
    f('v_add_f32 v%d, v%d, v%d' % (Q_ + 1, X0 + 6, X0 + 7))
    f('v_add_f32 v%d, v%d, v%d' % (M_, M_, V_))
    f('v_add_f32 v%d, v%d, v%d' % (Q_, Q_, Q_ + 1))
    f('v_add_f32 v%d, v%d, v%d' % (M_, M_, X0 + 8))
    f('v_add_f32 v%d, v%d, v%d' % (M_, M_, Q_))
    allreduce_wave(f, M_, V_)
    f('v_mul_f32 v%d, %s, v%d' % (M_, fbits(1.0 / 576), M_))
    for j in range(9):
        f('v_sub_f32 v%d, v%d, v%d' % (T0_ + j, X0 + j, M_))
    f('v_mul_f32 v%d, v%d, v%d' % (V_, T0_, T0_))
    f('v_mul_f32 v%d, v%d, v%d' % (Q_, T0_ + 1, T0_ + 1))
    for j in range(2, 9):
        f('v_fmac_f32 v%d, v%d, v%d' % ((V_, Q_)[j & 1], T0_ + j, T0_ + j))
    f('v_add_f32 v%d, v%d, v%d' % (V_, V_, Q_))
    allreduce_wave(f, V_, Q_)
    f('v_mul_f32 v%d, %s, v%d' % (V_, fbits(1.0 / 576), V_))
    f('v_cvt_pk_bf16_f32 v%d, v%d, v%d' % (M_, M_, V_))
    f('v_and_b32 v%d, 0xffff0000, v%d' % (V_, M_))
    f('v_lshlrev_b32 v%d, 16, v%d' % (M_, M_))
    f('v_add_f32 v%d, %s, v%d' % (V_, fbits(1e-5), V_))
    bf16_round1(f, V_)
    f('v_sqrt_f32 v%d, v%d' % (V_, V_))
    bf16_round1(f, V_)
    f('v_rcp_f32 v%d, v%d' % (V_, V_))
    for j in range(9):
        f('v_sub_f32 v%d, v%d, v%d' % (X0 + j, X0 + j, M_))
    for rnd in range(2):
        for p in range(5):
            a, b = X0 + 2 * p, (X0 + 2 * p + 1 if p < 4 else X0 + 2 * p)
            f('v_cvt_pk_bf16_f32 v%d, v%d, v%d' % (T0_ + p, a, b))
        for p in range(5):
            f('v_lshlrev_b32 v%d, 16, v%d' % (X0 + 2 * p, T0_ + p))
            if p < 4:
                f('v_and_b32 v%d, 0xffff0000, v%d' % (X0 + 1 + 2 * p, T0_ + p))
        if rnd == 0:
            for j in range(9):
                f('v_mul_f32 v%d, v%d, v%d' % (X0 + j, X0 + j, V_))


def gen_k0():
    e = Stream()
    TL = 0
    XL = 16384
    YL = XL + 9344
    YROW = 1168
    WMX = YL + 8 * YROW
    S_X, S_WR, S_WI, S_W1, S_W2, S_Y, S_XF, S_WT, S_TAB, S_WM, S_ST = 16, 20, 24, 28, 32, 36, 40, 44, 48, 52, 80
    s_wave, s_t0, s_t1, s_n2, s_xo, s_m0 = 56, 57, 58, 59, 60, 61
    s_ex = 62
    s_tw = 64
    s_tt = 96
    v_tid, v_g, v_i, v_t0, v_t1, v_so = 1, 2, 3, 4, 5, 6
    F = 64
    WREG = 16
    phase_begin(e, 'k0')
    stamp_entry(e)
    e('s_load_dwordx4 s[4:7], s[0:1], 0')
    e('s_load_dwordx2 s[8:9], s[0:1], 16')
    e('s_load_dwordx2 s[12:13], s[0:1], 32')
    e('s_load_dwordx2 s[14:15], s[0:1], 48')
    e('s_load_dwordx2 s[10:11], s[0:1], 80')
    table_srd(e, S_TAB, 'k0')
    e('v_mov_b32 v%d, v0' % v_tid)
    e('v_lshrrev_b32 v2, 6, v0')
    e('v_and_b32 v0, 63, v0')
    e('v_readfirstlane_b32 s%d, v2' % s_wave)
    e('s_and_b32 s%d, s2, 7' % s_t0)
    e('s_lshr_b32 s%d, s2, 3' % s_t1)
    e('s_lshl_b32 s%d, s%d, 5' % (s_n2, s_t0))
    e('s_add_u32 s%d, s%d, s%d' % (s_n2, s_n2, s_t1))
    e('s_lshl_b32 s%d, s%d, 5' % (s_xo, s_n2))
    e('s_lshl_b32 s%d, s%d, 10' % (s_m0, s_wave))
    e('v_lshrrev_b32 v%d, 4, v0' % v_g)
    e('v_and_b32 v%d, 15, v0' % v_i)
    e('v_lshlrev_b32 v%d, 8, v%d' % (v_t0, v_g))
    e('v_lshl_add_u32 v%d, v%d, 1, v%d' % (F + 20, v_i, v_t0))
    e('v_lshlrev_b32 v%d, 5, v%d' % (v_t0, v_g))
    e('v_lshl_add_u32 v%d, v%d, 1, v%d' % (F + 21, v_i, v_t0))
    e('s_lshl_b32 s%d, s%d, 8' % (s_t0, s_wave))
    e('s_add_u32 s%d, s%d, s%d' % (s_t0, s_t0, s_n2))
    e('s_mul_i32 s%d, s%d, 1152' % (s_t0, s_t0))
    make_srd(e, S_X, 4, X_SZ)
    for j in range(8):
        e('buffer_load_ushort v%d, v%d, s[%d:%d], s%d offen offset:%d' % (F + j, F + 20, S_X, S_X + 3, s_t0, j * 32))
    e('buffer_load_ushort v%d, v%d, s[%d:%d], s%d offen offset:1024' % (F + 8, F + 21, S_X, S_X + 3, s_t0))
    e('v_lshlrev_b32 v%d, 4, v0' % v_t0)
    e('s_add_u32 m0, s%d, 0x%x' % (s_m0, TL))
    e('buffer_load_dwordx4 v%d, s[%d:%d], s%d offen lds' % (v_t0, S_TAB, S_TAB + 3, s_m0), tok=('tl', 0))
    e('s_add_u32 s%d, s%d, 8192' % (s_t0, s_m0))
    e('s_add_u32 m0, s%d, 0x%x' % (s_m0, TL + 8192))
    e('buffer_load_dwordx4 v%d, s[%d:%d], s%d offen lds' % (v_t0, S_TAB, S_TAB + 3, s_t0), tok=('tl', 1))
    e('s_lshl_b32 s%d, s%d, 6' % (s_t0, s_n2))
    e('s_add_u32 s%d, s%d, 0x%x' % (s_t0, s_t0, TW8_OFF))
    e('s_add_u32 s%d, s%d, s%d' % (s_ex, S_TAB, s_t0))
    e('s_addc_u32 s%d, s%d, 0' % (s_ex + 1, S_TAB + 1))
    e('s_load_dwordx16 s[%d:%d], s[%d:%d], 0' % (s_tw, s_tw + 15, s_ex, s_ex + 1))
    make_srd(e, S_WR, 6, W_SZ)
    make_srd(e, S_WI, 8, W_SZ)
    e('v_cmp_gt_u32 vcc, 289, v%d' % v_tid)
    e('v_mov_b32 v%d, 0x7ffffff0' % v_t1)
    e('v_lshlrev_b32 v%d, 1, v%d' % (v_t0, v_tid))
    e('v_cndmask_b32 v%d, v%d, v%d, vcc' % (v_t0, v_t1, v_t0))
    e('v_lshlrev_b32 v%d, 13, v%d' % (v_so, v_tid))
    e('v_cndmask_b32 v%d, v%d, v%d, vcc' % (v_so, v_t1, v_so))
    e('s_and_b32 s%d, s%d, 127' % (s_t0, s_n2))
    e('s_lshr_b32 s%d, s%d, 7' % (s_t1, s_n2))
    e('s_lshl_b32 s%d, s%d, 10' % (s_t1, s_t1))
    e('s_add_u32 s%d, s%d, s%d' % (s_t0, s_t0, s_t1))
    e('s_mul_i32 s%d, s%d, 578' % (s_t0, s_t0))
    for i in range(8):
        if i:
            e('s_add_u32 s%d, s%d, %d' % (s_t0, s_t0, 128 * 578))
        e('buffer_load_ushort v%d, v%d, s[%d:%d], s%d offen' % (WREG + i, v_t0, S_WR, S_WR + 3, s_t0))
        e('buffer_load_ushort v%d, v%d, s[%d:%d], s%d offen' % (WREG + 8 + i, v_t0, S_WI, S_WI + 3, s_t0))
    make_srd(e, S_W1, 12, W1_SZ)
    make_srd(e, S_W2, 14, W1_SZ)
    make_srd(e, S_Y, 10, Y_SZ, Y_OFF)
    make_srd(e, S_XF, 10, XT_SZ, XF_OFF)
    make_srd(e, S_WT, 10, XT_SZ, WT_OFF)
    make_srd(e, S_WM, 10, 1024, WM_OFF)
    if STAMP:
        make_srd(e, S_ST, 10, 1 << 20, ST_OFF)
    e('v_mov_b32 v%d, 0' % v_t0)
    e('v_mov_b32 v%d, 0x%x' % (v_t1, WMX))
    e('ds_write_b32 v%d, v%d' % (v_t1, v_t0))
    stamp(e, 0)
    f = e
    X0, T0_, M_, V_, Q_ = F, F + 9, F + 18, F + 19, F + 22
    for j in range(9):
        f('v_lshlrev_b32 v%d, 16, v%d' % (X0 + j, X0 + j))
    ln_rows(f, X0, T0_, M_, V_, Q_)
    A4, A2 = F + 24, F + 28
    f('v_mov_b32 v%d, 0' % (A2 + 1))
    f('v_mov_b32 v%d, 0' % (A2 + 2))
    for p in range(4):
        f('v_cvt_pk_f16_f32 v%d, v%d, v%d' % (A4 + p, X0 + 2 * p, X0 + 1 + 2 * p))
    f('v_cvt_pk_f16_f32 v%d, v%d, v%d' % (A2, X0 + 8, A2 + 1))
    f('v_cvt_pk_f16_f32 v%d, v%d, v%d' % (A2 + 3, X0 + 8, A2 + 1))
    T = 128
    f('s_waitcnt lgkmcnt(0)')
    f('s_barrier', needs=[('tl', 0), ('tl', 1)])
    f('v_lshlrev_b32 v%d, 4, v0' % v_t0)
    for q in range(13):
        f('ds_read_b128 %s, v%d offset:%d' % (vr(T + 4 * q, 4), v_t0, TL + q * 1024))
    if PREF2:
        e('v_mul_u32_u24 v44, 0xe39, v%d' % v_tid)
        e('v_lshrrev_b32 v44, 16, v44')
        e('v_mul_u32_u24 v45, 18, v44')
        e('v_sub_u32 v45, v%d, v45' % v_tid)
        e('v_mul_u32_u24 v44, 9216, v44')
        e('v_lshl_add_u32 v44, v45, 7, v44')
        e('v_mov_b32 v46, 0x7ffffff0')
        e('v_cmp_gt_u32 vcc, 324, v%d' % v_tid)
        e('v_cndmask_b32 v44, v46, v44, vcc')
        e('v_lshlrev_b32 v45, 7, v%d' % v_tid)
        e('v_cndmask_b32 v46, v46, v45, vcc')
        e('s_lshr_b32 s%d, s2, 3' % s_t1)
        e('s_bfe_u32 s%d, s2, 0x20001' % s_t0)
        e('s_mul_i32 s%d, s%d, 2304' % (s_tt, s_t0))
        e('s_mul_i32 s%d, s%d, %d' % (s_tt + 1, s_t1, 18 * 9216))
        e('s_add_u32 s%d, s%d, s%d' % (s_tt, s_tt, s_tt + 1))
        e('buffer_load_dword v47, v44, s[%d:%d], s%d offen' % (S_W1, S_W1 + 3, s_tt))
        e('s_lshl_b32 s%d, s%d, 5' % (s_t0, s_t0))
        e('s_add_u32 s%d, s%d, s%d' % (s_t0, s_t0, s_t1))
        e('s_mul_i32 s%d, s%d, 41472' % (s_t0, s_t0))
        if PREF2 > 1:
            e('buffer_load_dword v48, v46, s[%d:%d], s%d offen' % (S_W2, S_W2 + 3, s_t0))
        e('s_cmp_ge_u32 s2, 8')
        e('s_cbranch_scc1 .Lk0_notab')
        e.cond_begin()
        e('s_movk_i32 s%d, 0x%x' % (s_t0, T2_OFF))
        e('buffer_load_dword v49, v45, s[%d:%d], s%d offen' % (S_TAB, S_TAB + 3, s_t0))
        e.cond_end()
        e.label('.Lk0_notab')
    ln_rows(f, X0, T0_, M_, V_, Q_)
    f('s_mul_i32 s%d, s%d, %d' % (s_t0, s_wave, YROW))
    f('s_add_u32 s%d, s%d, 0x%x' % (s_t0, s_t0, YL))
    f('v_add_u32 v%d, s%d, v%d' % (F + 20, s_t0, F + 20))
    f('v_add_u32 v%d, s%d, v%d' % (F + 21, s_t0, F + 21))
    for j in range(8):
        f('ds_write_b16_d16_hi v%d, v%d offset:%d' % (F + 20, X0 + j, j * 32))
    f('ds_write_b16_d16_hi v%d, v%d offset:1024' % (F + 21, X0 + 8))
    D1 = F + 32
    for i in range(4):
        f('v_mfma_f32_16x16x32_f16 %s, %s, %s, 0' % (vr(D1 + 4 * i, 4), vr(A4, 4), vr(T + 4 * i, 4)))
    for i in range(4):
        f('v_mfma_f32_16x16x16_f16 %s, %s, %s, %s' % (vr(D1 + 4 * i, 4), vr(A2 + 2 * (i & 1), 2), vr(T + 16 + (i & 2), 2), vr(D1 + 4 * i, 4)))
    f('s_mul_i32 s%d, s%d, %d' % (s_t0, s_wave, TB.XL_ROW))
    f('s_add_u32 s%d, s%d, 0x%x' % (s_t0, s_t0, XL))
    for i in range(8):
        f('v_add_u32 v%d, s%d, v%d' % (T + 44 + i, s_t0, T + 44 + i))
    for ct in range(2):
        dre, dim = D1 + ct * 8, D1 + ct * 8 + 4
        twr, twi = T + 20 + ct * 8, T + 20 + ct * 8 + 4
        for r in range(4):
            f('v_mul_f32 v%d, v%d, v%d' % (F + 48 + r, dre + r, twr + r))
            f('v_mul_f32 v%d, v%d, v%d' % (dre + r, dre + r, twi + r))
        for r in range(4):
            f('v_fma_f32 v%d, -v%d, v%d, v%d' % (F + 48 + r, dim + r, twi + r, F + 48 + r))
            f('v_fmac_f32 v%d, v%d, v%d' % (dre + r, dim + r, twr + r))
        for r in range(4):
            f('v_cvt_pk_f16_f32 v%d, v%d, v%d' % (F + 24 + 4 * ct + r, F + 48 + r, dre + r))
    for ct in range(2):
        for ri in range(2):
            f('v_mfma_f32_16x16x32_f16 %s, %s, %s, 0' % (vr(D1 + (ct * 2 + ri) * 4, 4), vr(T + 36 + ri * 4, 4), vr(F + 24 + 4 * ct, 4)))
    for ct in range(2):
        for r in range(4):
            f('v_cvt_pk_f16_f32 v%d, v%d, v%d' % (D1 + ct * 8 + r, D1 + ct * 8 + r, D1 + ct * 8 + 4 + r))
            f('ds_write_b32 v%d, v%d' % (T + 44 + ct * 4 + r, D1 + ct * 8 + r))
    for i in range(8):
        e('v_lshl_or_b32 v%d, v%d, 16, v%d' % (WREG + i, WREG + 8 + i, WREG + i))
    M = WREG + 8
    for i in range(8):
        e('v_and_b32 v%d, 0x7fff7fff, v%d' % (M + i, WREG + i))
    for s_ in (4, 2, 1):
        for i in range(s_):
            e('v_pk_max_u16 v%d, v%d, v%d' % (M + i, M + i, M + i + s_))
    e('v_lshrrev_b32 v%d, 16, v%d' % (M + 1, M))
    e('v_and_b32 v%d, 0xffff, v%d' % (M, M))
    e('v_max_u32 v%d, v%d, v%d' % (M, M, M + 1))
    allreduce_wave(e, M, M + 1, 'v_max_u32')
    e('v_mov_b32 v%d, 0x%x' % (M + 1, WMX))
    e('s_mov_b64 exec, 1')
    e('ds_max_u32 v%d, v%d' % (M + 1, M))
    e('s_mov_b64 exec, -1')
    stamp(e, 1)
    e('s_waitcnt lgkmcnt(0)')
    e('s_barrier')
    e('v_and_b32 v%d, 7, v%d' % (v_t0, v_tid))
    e('v_mul_u32_u24 v32, %d, v%d' % (YROW, v_t0))
    e('v_lshrrev_b32 v%d, 5, v%d' % (v_t1, v_tid))
    e('v_lshl_add_u32 v32, v%d, 6, v32' % v_t1)
    e('v_bfe_u32 v%d, v%d, 3, 2' % (v_t1, v_tid))
    e('v_lshl_add_u32 v32, v%d, 3, v32' % v_t1)
    e('ds_read_b64 v[36:37], v32 offset:%d' % YL)
    e('ds_read_b64 v[38:39], v32 offset:%d' % (YL + 32))
    e('ds_read_b64 v[40:41], v32 offset:%d' % (YL + 1024))
    e('ds_read_b64 v[42:43], v32 offset:%d' % (YL + 1024 + 32))
    e('v_lshrrev_b32 v33, 3, v%d' % v_tid)
    e('v_lshlrev_b32 v33, 8, v33')
    e('v_lshl_add_u32 v33, v%d, 4, v33' % v_t0)
    e('s_lshr_b32 s%d, s%d, 1' % (s_t0, s_n2))
    e('s_mul_i32 s%d, s%d, 18432' % (s_t0, s_t0))
    e('s_and_b32 s%d, s%d, 1' % (s_t1, s_n2))
    e('s_lshl_b32 s%d, s%d, 7' % (s_t1, s_t1))
    e('s_add_u32 s%d, s%d, s%d' % (s_t0, s_t0, s_t1))
    e('s_mov_b32 s%d, s%d' % (s_tt, s_t0))
    e('s_cmp_ge_u32 s%d, 5' % s_wave)
    e('s_cbranch_scc1 .Lk0_nor8')
    e.cond_begin()
    G_ = F
    e('v_lshlrev_b32 v%d, 2, v%d' % (v_t0, v_tid))
    for n in range(8):
        e('ds_read_b32 v%d, v%d offset:%d' % (G_ + 16 + n, v_t0, XL + n * TB.XL_ROW))
    for n in range(8):
        e('v_cvt_f32_f16 v%d, v%d' % (G_ + 2 * n, G_ + 16 + n))
        e('v_cvt_f32_f16_sdwa v%d, v%d dst_sel:DWORD dst_unused:UNUSED_PAD src0_sel:WORD_1' % (G_ + 2 * n + 1, G_ + 16 + n))
    X = radix8(e, G_, G_ + 16, None)
    for k1 in range(8):
        x = X[k1]
        c, s = s_tw + 2 * k1, s_tw + 2 * k1 + 1
        t_ = G_ + 2 * k1
        e('v_mul_f32 v%d, s%d, v%d' % (t_, c, x))
        e('v_mul_f32 v%d, s%d, v%d' % (t_ + 1, s, x))
        e('v_mul_f32 v%d, s%d, v%d' % (x, s, x + 1))
        e('v_mul_f32 v%d, s%d, v%d' % (x + 1, c, x + 1))
        e('v_sub_f32 v%d, v%d, v%d' % (t_, t_, x))
        e('v_add_f32 v%d, v%d, v%d' % (t_ + 1, t_ + 1, x + 1))
        e('v_cvt_pk_f16_f32 v%d, v%d, v%d' % (G_ + 32 + k1, t_, t_ + 1))
    e('buffer_store_dwordx4 %s, v%d, s[%d:%d], s%d offen%s' % (vr(G_ + 32, 4), v_so, S_XF, S_XF + 3, s_xo, SCX))
    e('buffer_store_dwordx4 %s, v%d, s[%d:%d], s%d offen offset:16%s' % (vr(G_ + 36, 4), v_so, S_XF, S_XF + 3, s_xo, SCX))
    e('buffer_store_dwordx4 %s, v%d, s[%d:%d], s%d offen%s' % (vr(WREG, 4), v_so, S_WT, S_WT + 3, s_xo, SCX))
    e('buffer_store_dwordx4 %s, v%d, s[%d:%d], s%d offen offset:16%s' % (vr(WREG + 4, 4), v_so, S_WT, S_WT + 3, s_xo, SCX))
    e.cond_end()
    e.label('.Lk0_nor8')
    e('s_mov_b32 s%d, s%d' % (s_t0, s_tt))
    e('buffer_store_dwordx4 v[36:39], v33, s[%d:%d], s%d offen%s' % (S_Y, S_Y + 3, s_t0, SC))
    e('s_cmp_lg_u32 s%d, 0' % s_wave)
    e('s_cbranch_scc1 .Lk0_now0')
    e.cond_begin()
    e('s_add_u32 s%d, s%d, 16384' % (s_t0, s_t0))
    e('buffer_store_dwordx4 v[40:43], v33, s[%d:%d], s%d offen%s' % (S_Y, S_Y + 3, s_t0, SC))
    e('v_mov_b32 v34, 0x%x' % WMX)
    e('ds_read_b32 v35, v34')
    e('s_lshl_b32 s%d, s2, 2' % s_t0)
    e('v_mov_b32 v34, 0')
    e('buffer_store_dword v35, v34, s[%d:%d], s%d offen%s' % (S_WM, S_WM + 3, s_t0, LD1))
    e.cond_end()
    e.label('.Lk0_now0')
    stamp(e, 2)
    stamp(e, 3)
    stamp_store(e, 8, S_ST, s_wave, 3)
    if MEGA:
        get_nonce(e)
        publish(e, 0, s_n2)
    phase_end(e, 'k0')
    return e


def gen_k1p():
    e = Stream()
    S_Y, S_W1, S_B1, S_H, S_W2, S_ST = 16, 20, 24, 28, 32, 36
    s_wave, s_rb, s_cb, s_t0, s_t1, s_n0 = 56, 57, 58, 59, 60, 61
    s_par, s_hp, s_hs, s_n1 = 62, 63, 64, 65
    s_m0b, s_a0, s_a1 = 66, 67, 68
    s_so = 70
    vA = lambda rt, k: 112 + (k * 2 + rt) * 4
    vC1 = lambda rt, t: 64 + ((t >> 1) * 2 + rt) * 8 + (t & 1) * 4
    vC2 = lambda rt, t: (40 + rt * 8 + t * 4) if t < 2 else (56 + rt * 4)
    vB = lambda f: 16 + 4 * f
    v_be, v_bo, v_b2 = 1, 2, 9
    v_dma = [3, 4, 5]
    v_l16, v_t0, v_t1 = 6, 7, 8
    v_a0, v_a1, v_k1 = 10, 11, 12
    v_bz = 13
    k0 = -2.0 * (2.0 / np.pi) ** 0.5 * np.log2(np.e)

    phase_begin(e, 'k1')
    stamp_entry(e)
    e('s_load_dwordx4 s[12:15], s[0:1], 32')
    e('s_load_dwordx2 s[10:11], s[0:1], 80')
    e('s_load_dwordx2 s[4:5], s[0:1], 48')
    e('v_lshrrev_b32 v1, 6, v0')
    e('v_and_b32 v0, 63, v0')
    e('v_readfirstlane_b32 s%d, v1' % s_wave)
    e('s_and_b32 s%d, s2, 7' % s_t0)
    e('s_lshr_b32 s%d, s2, 3' % s_t1)
    e('s_and_b32 s%d, s%d, 1' % (s_rb, s_t0))
    e('s_lshl_b32 s%d, s%d, 2' % (s_rb, s_rb))
    e('s_and_b32 s%d, s%d, 3' % (s_cb, s_t1))
    e('s_add_u32 s%d, s%d, s%d' % (s_rb, s_rb, s_cb))
    e('s_lshr_b32 s%d, s%d, 1' % (s_cb, s_t0))
    e('s_lshl_b32 s%d, s%d, 3' % (s_cb, s_cb))
    e('s_lshr_b32 s%d, s%d, 2' % (s_t1, s_t1))
    e('s_add_u32 s%d, s%d, s%d' % (s_cb, s_cb, s_t1))
    e('s_mul_i32 s%d, s%d, 288' % (s_n0, s_cb))
    e('s_and_b32 s%d, s%d, 1' % (s_par, s_cb))
    e('s_lshl_b32 s%d, s%d, 5' % (s_n1, s_par))
    e('s_add_u32 s%d, s%d, s%d' % (s_n1, s_n1, s_n0))
    e('s_lshl_b32 s%d, s%d, 10' % (s_m0b, s_wave))
    e('s_lshl_b32 s%d, s%d, 4' % (s_t0, s_rb))
    e('s_lshl_b32 s%d, s%d, 1' % (s_t1, s_wave))
    e('s_add_u32 s%d, s%d, s%d' % (s_t0, s_t0, s_t1))
    e('s_mul_i32 s%d, s%d, 18432' % (s_a0, s_t0))
    e('s_add_u32 s%d, s%d, 18432' % (s_a1, s_a0))
    e('v_lshlrev_b32 v%d, 4, v0' % v_l16)
    e('s_mul_i32 s%d, s%d, %d' % (s_t0, s_t0, 144 * 1024))
    e('v_add_u32 v%d, s%d, v%d' % (v_a0, s_t0, v_l16))
    e('v_add_u32 v%d, 0x%x, v%d' % (v_a1, 144 * 1024, v_a0))
    make_srd(e, S_Y, 10, Y_SZ, Y_OFF)
    if MEGA:
        e('s_lshl_b32 s%d, s%d, 5' % (s_t0, s_rb))
        wait_flags(e, [(0, s_t0, 32)], vt=16)

    def aload(k):
        st = Stream()
        for rt in range(2):
            so = (s_a0, s_a1)[rt]
            if k >= 4 and k % 4 == 0:
                st('s_add_u32 s%d, s%d, 4096' % (so, so))
            st('buffer_load_dwordx4 %s, v%d, s[%d:%d], s%d offen offset:%d%s' % (vr(vA(rt, k), 4), v_l16, S_Y, S_Y + 3, so, (k % 4) * 1024, LD1))
        return st

    e.extend(aload(0))
    make_srd(e, S_W1, 12, W1_SZ)

    def dma_setup(st, p2):
        st('s_lshl_b32 s%d, s%d, 6' % (s_t0, s_wave))
        st('s_mov_b32 s%d, 0x%x' % (s_t1, 0x2aaab if p2 else 0x15556))
        if p2:
            st('s_lshl_b32 s%d, s%d, 5' % (s_so + 2, s_par))
            st('s_add_u32 s%d, s%d, 192' % (s_so + 2, s_so + 2))
            st('s_mul_i32 s%d, s%d, 288' % (s_so + 3, s_par))
        for q in range(3):
            d = v_dma[q]
            st('v_add_u32 v%d, s%d, v0' % (d, s_t0))
            if q:
                st('v_add_u32 v%d, %d, v%d' % (d, q * 512, d))
            st('v_mul_u32_u24 v%d, s%d, v%d' % (v_t0, s_t1, d))
            st('v_lshrrev_b32 v%d, 20, v%d' % (v_t0, v_t0))
            st('v_mul_u32_u24 v%d, %d, v%d' % (v_t1, 6 if p2 else 12, v_t0))
            st('v_sub_u32 v%d, v%d, v%d' % (d, d, v_t1))
            if not p2:
                st('v_bfe_u32 v%d, v%d, 2, 1' % (v_t1, v_t0))
                st('v_lshlrev_b32 v%d, 1, v%d' % (v_t1, v_t1))
                st('v_xor_b32 v%d, v%d, v%d' % (d, d, v_t1))
                st('v_lshlrev_b32 v%d, 4, v%d' % (d, d))
            else:
                st('v_lshrrev_b32 v%d, 2, v%d' % (v_t1, d))
                st('v_mul_u32_u24 v%d, s%d, v%d' % (v_t1, s_so + 3, v_t1))
                st('v_lshlrev_b32 v%d, 4, v%d' % (d, d))
                st('v_add_u32 v%d, s%d, v%d' % (d, s_so + 2, d))
                st('v_sub_u32 v%d, v%d, v%d' % (d, d, v_t1))
            st('v_mul_u32_u24 v%d, 9216, v%d' % (v_t0, v_t0))
            st('v_add_u32 v%d, v%d, v%d' % (d, d, v_t0))

    dma_setup(e, False)

    def bdma(q):
        st = Stream()
        if q == 14:
            dma_setup(st, True)
        lim = {13: 4, 20: 6}.get(q)
        if lim:
            st('s_cmp_ge_u32 s%d, %d' % (s_wave, lim))
            st('s_cbranch_scc1 .Lk1_dma%d' % q)
            st.cond_begin()
        so = s_so + (q % 2)
        if q < 14:
            st('s_add_u32 s%d, s%d, 0x%x' % (so, s_n1, (q // 3) * 128 * 9216))
            pat = q % 3
        else:
            st('s_add_u32 s%d, s%d, 0x%x' % (so, s_n0, ((q - 14) // 3) * 256 * 9216))
            pat = (q - 14) % 3
        st('s_add_u32 m0, s%d, 0x%x' % (s_m0b, (q % 20) * 8192))
        st('buffer_load_dwordx4 v%d, s[%d:%d], s%d offen lds' % (v_dma[pat], S_W1, S_W1 + 3, so), tok=('d', q))
        if lim:
            st.cond_end()
            st.label('.Lk1_dma%d' % q)
        return st

    nq = [0]
    na = [1]

    def issue_upto(st, ka, qlim):
        while True:
            did = False
            if nq[0] < min(qlim, 21):
                st.extend(bdma(nq[0]))
                nq[0] += 1
                did = True
            if na[0] < min(ka, 18):
                st.extend(aload(na[0]))
                na[0] += 1
                did = True
            if not did:
                break

    issue_upto(e, 2, 3)
    make_srd(e, S_B1, 14, 9216)
    e('v_lshrrev_b32 v%d, 4, v0' % v_t0)
    e('v_lshlrev_b32 v%d, 3, v%d' % (v_bz, v_t0))
    for t in range(6):
        e('buffer_load_dwordx2 %s, v%d, s[%d:%d], s%d offen offset:%d' % (vr(40 + 4 * t, 2), v_bz, S_B1, S_B1 + 3, s_n1, t * 32))
    LA, LQ = int(os.environ.get('K1LA', '6')), int(os.environ.get('K1LQ', '5'))
    issue_upto(e, LA, LQ)
    make_srd(e, S_H, 10, H_SZ, H_OFF)
    make_srd(e, S_W2, 4, W1_SZ)
    if STAMP:
        make_srd(e, S_ST, 10, 1 << 20, ST_OFF)
    stamp(e, 0)
    e('v_lshrrev_b32 v%d, 2, v0' % v_t0)
    e('v_mul_u32_u24 v%d, 192, v%d' % (v_be, v_t0))
    e('v_and_b32 v%d, 3, v0' % v_t1)
    e('v_lshl_add_u32 v%d, v%d, 3, v%d' % (v_be, v_t1, v_be))
    e('v_mul_u32_u24 v%d, 96, v%d' % (v_b2, v_t0))
    e('v_lshl_add_u32 v%d, v%d, 3, v%d' % (v_b2, v_t1, v_b2))
    e('v_bfe_u32 v%d, v0, 4, 1' % v_t1)
    e('v_lshlrev_b32 v%d, 5, v%d' % (v_t1, v_t1))
    e('v_sub_u32 v%d, v%d, v%d' % (v_bo, v_be, v_t1))
    e('v_add_u32 v%d, 32, v%d' % (v_bo, v_bo))
    e('v_add_u32 v%d, v%d, v%d' % (v_be, v_be, v_t1))
    e('v_mov_b32 v%d, %s' % (v_k1, fbits(k0 * 0.044715)))
    e('s_mul_i32 s%d, s%d, 9' % (s_t1, s_cb))
    e('s_add_u32 s%d, s%d, s%d' % (s_hp, s_t1, s_par))
    e('s_lshl_b32 s%d, s%d, 9' % (s_hp, s_hp))
    e('s_add_u32 s%d, s%d, 4096' % (s_hs, s_hp))
    e('s_sub_u32 s%d, s%d, 1016' % (s_t0, s_hp))
    e('s_cmp_eq_u32 s%d, 1' % s_par)
    e('s_cselect_b32 s%d, s%d, s%d' % (s_hs, s_t0, s_hs))
    for t in range(6):
        b = 40 + 4 * t
        e('v_and_b32 v%d, 0xffff0000, v%d' % (b + 3, b + 1))
        e('v_lshlrev_b32 v%d, 16, v%d' % (b + 2, b + 1))
        e('v_and_b32 v%d, 0xffff0000, v%d' % (b + 1, b))
        e('v_lshlrev_b32 v%d, 16, v%d' % (b, b))

    WIN = 55296
    ring1 = lambda k: k * 6144
    ring2 = lambda k: ((112 + 3 * k) % 160) * 1024
    wbase = {v_be: 0, v_bo: 0, v_b2: 0}

    def based(st, reg, ro, span):
        if not (0 <= ro - wbase[reg] and ro - wbase[reg] + span <= 65536):
            st('v_add_u32 v%d, 0x%x, v%d' % (reg, (ro - wbase[reg]) & 0xffffffff, reg))
            wbase[reg] = ro
        return ro - wbase[reg]

    def fread(st, p, al):
        f_ = p % 6
        if p < 108:
            k, t = divmod(p, 6)
            reg = (v_be, v_bo)[t & 1]
            off = based(st, reg, ring1(k), 6144) + al * 3072 + (t >> 1) * 64
        else:
            k, t = divmod(p - 108, 3)
            reg = v_b2
            off = based(st, reg, ring2(k), 3072) + al * 1536 + t * 32
        st('ds_read_b64_tr_b16 %s, v%d offset:%d' % (vr(vB(f_) + 2 * al, 2), reg, off))

    def slots_for(p):
        if p < 108:
            return min(-(-(p // 6 + 1) * 6 // 8), 14)
        return 14 + min(-(-((p - 108) // 3 + 1) * 3 // 8), 7)

    def mf(p, rt):
        if p < 108:
            k, t = divmod(p, 6)
            c = vC1(rt, t)
            cin = vr(c, 4) if k else vr(40 + 4 * t, 4)
        else:
            k, t = divmod(p - 108, 3)
            c = vC2(rt, t)
            cin = vr(c, 4)
        return 'v_mfma_f32_16x16x32_bf16 %s, %s, %s, %s' % (vr(c, 4), vr(vB(p % 6), 4), vr(vA(rt, k), 4), cin)

    def bias2():
        st = Stream()
        st('s_add_u32 s%d, s%d, 192' % (s_so + 2, s_n1))
        st('buffer_load_dwordx2 %s, v%d, s[%d:%d], s%d offen' % (vr(vC2(1, 0), 2), v_bz, S_B1, S_B1 + 3, s_so + 2))
        st('buffer_load_dwordx2 %s, v%d, s[%d:%d], s%d offen offset:32' % (vr(vC2(1, 1), 2), v_bz, S_B1, S_B1 + 3, s_so + 2))
        st('s_mul_i32 s%d, s%d, 256' % (s_so + 3, s_par))
        st('s_sub_u32 s%d, 256, s%d' % (s_so + 3, s_so + 3))
        st('s_add_u32 s%d, s%d, s%d' % (s_so + 3, s_so + 3, s_n0))
        st('buffer_load_dwordx2 %s, v%d, s[%d:%d], s%d offen' % (vr(vC2(1, 2), 2), v_bz, S_B1, S_B1 + 3, s_so + 3))
        un = Stream()
        for t in range(3):
            a, b = vC2(0, t), vC2(1, t)
            un('v_lshlrev_b32 v%d, 16, v%d' % (a, b))
            un('v_and_b32 v%d, 0xffff0000, v%d' % (a + 1, b))
            un('v_lshlrev_b32 v%d, 16, v%d' % (a + 2, b + 1))
            un('v_and_b32 v%d, 0xffff0000, v%d' % (a + 3, b + 1))
            for r in range(4):
                un('v_mov_b32 v%d, v%d' % (b + r, a + r))
        return st, un

    def epi(accf, tiles, T):
        st = Stream()
        n = len(tiles)
        for rt in range(2):
            w_ = T + 8 * rt
            A = accf(rt, tiles[0])
            E = range(4 * n)
            for r in E:
                st('v_mul_f32 v%d, v%d, v%d' % (w_ + r, A + r, A + r))
            for r in E:
                st('v_fmaak_f32 v%d, v%d, v%d, %s' % (w_ + r, v_k1, w_ + r, fbits(k0)))
            for r in E:
                st('v_mul_f32 v%d, v%d, v%d' % (w_ + r, w_ + r, A + r))
            for r in E:
                st('v_exp_f32 v%d, v%d' % (w_ + r, w_ + r))
            for r in E:
                st('v_add_f32 v%d, 1.0, v%d' % (w_ + r, w_ + r))
            for r in E:
                st('v_rcp_f32 v%d, v%d' % (w_ + r, w_ + r))
            for r in E:
                st('v_mul_f32 v%d, v%d, v%d' % (w_ + r, A + r, w_ + r))
            for j in range(2 * n):
                st('v_cvt_pk_bf16_f32 v%d, v%d, v%d' % (A + j, w_ + 2 * j, w_ + 2 * j + 1))
            if n == 2:
                st('buffer_store_dwordx4 %s, v%d, s[%d:%d], s%d offen offset:%d%s' % (vr(A, 4), (v_a0, v_a1)[rt], S_H, S_H + 3, s_hp, (tiles[0] >> 1) * 1024, SC))
            else:
                st('buffer_store_dwordx2 %s, v%d, s[%d:%d], s%d offen%s' % (vr(A, 2), (v_a0, v_a1)[rt], S_H, S_H + 3, s_hs, SC))
        return st

    def touch_w2():
        st = Stream()
        st('s_mul_i32 s%d, s%d, 41' % (s_t0, s_wave))
        st('v_add_u32 v%d, s%d, v0' % (v_t0, s_t0))
        st('v_cmp_gt_u32 vcc, 41, v0')
        st('v_lshlrev_b32 v%d, 7, v%d' % (v_t0, v_t0))
        st('v_mov_b32 v%d, 0x7ffffff0' % v_t1)
        st('v_cndmask_b32 v%d, v%d, v%d, vcc' % (v_t1, v_t1, v_t0))
        st('s_bfe_u32 s%d, s2, 0x20001' % s_t0)
        st('s_lshl_b32 s%d, s%d, 5' % (s_t0, s_t0))
        st('s_lshr_b32 s%d, s2, 3' % s_t1)
        st('s_add_u32 s%d, s%d, s%d' % (s_t0, s_t0, s_t1))
        st('s_mul_i32 s%d, s%d, 41472' % (s_t0, s_t0))
        st('buffer_load_dword v14, v%d, s[%d:%d], s%d offen' % (v_t1, S_W2, S_W2 + 3, s_t0))
        return st

    GRP, D = 12, 5
    stamp(e, 2)
    e('s_barrier', needs=[('d', q) for q in range(slots_for(GRP + D - 1))])
    stamp(e, 3)
    for p in range(D):
        fread(e, p, 0)
        fread(e, p, 1)
    epi_items = []
    for m in range(3):
        epi_items += epi(vC1, [2 * m, 2 * m + 1], vA(0, 0)).items
    ne = len(epi_items)
    b2l, b2u = bias2()
    TW2G = int(os.environ.get('K1TW2', '8'))
    for g in range(14):
        p0, p1 = g * GRP, min((g + 1) * GRP, 162)
        fill = Stream()
        stamp(e, 0, grp=g)
        if g == 9:
            stamp(e, 4)
        if g > 0:
            e('s_barrier', needs=[('d', q) for q in range(slots_for(min(p1 + D - 1, 161)))])
        want = slots_for(min(p1 + D - 1 + LQ * 8, 161))
        if g == 0:
            want = min(want, 20)
        issue_upto(fill, 2 * g + 2 + LA, want)
        if g == 5:
            fill.extend(b2l)
        if g == 8:
            fill.extend(b2u)
        if g == TW2G and PREF2 == 1:
            fill.extend(touch_w2())
        main = Stream()
        for p in range(p0, p1):
            main(mf(p, 0))
            if p + D < 162:
                fread(main, p + D, 0)
            main(mf(p, 1))
            if p + D < 162:
                fread(main, p + D, 1)
        if g == 9:
            h1 = Stream(); h1.items = main.items[:len(main.items) // 2 + 2]
            h2 = Stream(); h2.items = main.items[len(main.items) // 2 + 2:]
            e.extend(merge_keep(h1, fill))
            f2 = Stream(); f2.items = epi_items[:ne * 12 // 100]
            e.extend(merge_keep(h2, f2))
            continue
        if g >= 10:
            lo, hi = {10: (12, 37), 11: (37, 62), 12: (62, 87), 13: (87, 100)}[g]
            fill.items.extend(epi_items[ne * lo // 100: ne * hi // 100])
        e.extend(merge_keep(main, fill))
    stamp(e, 5)
    e.extend(epi(lambda rt, t: vC2(rt, t - 6), [6, 7], vA(0, 0)))
    e.extend(epi(lambda rt, t: vC2(rt, t - 6), [8], vA(0, 2)))
    stamp(e, 6)
    stamp_store(e, 8, S_ST, s_wave, 0)
    if MEGA:
        e('s_lshl_b32 s%d, s%d, 5' % (s_t0, s_rb))
        e('s_add_u32 s%d, s%d, s%d' % (s_t0, s_t0, s_cb))
        publish(e, 1, s_t0)
    phase_end(e, 'k1')
    return e


def get_nonce(e):
    e('s_cmp_lg_u32 s%d, 0' % s_pwave)
    e('s_cbranch_scc1 .Lnonce_done')
    e.cond_begin()
    e('s_load_dwordx2 s[4:5], s[0:1], 72')
    make_srd(e, 8, 4, 256)
    e('v_mov_b32 v1, 0')
    e('s_mov_b32 s87, 0')
    e.label('.Lnonce_loop')
    e('buffer_load_dwordx2 v[2:3], v1, s[8:11], 0 offen sc1')
    e('s_waitcnt vmcnt(0)')
    e('v_readfirstlane_b32 s%d, v2' % s_nonce)
    e('v_readfirstlane_b32 s%d, v3' % (s_nonce + 1))
    e('s_nop 1')
    e('s_cmp_lg_u32 s%d, 0' % s_nonce)
    e('s_cbranch_scc1 .Lnonce_ok')
    e('s_sleep 1')
    e('s_add_u32 s87, s87, 1')
    e('s_cmp_lt_u32 s87, 0x40000')
    e('s_cbranch_scc1 .Lnonce_loop')
    e.label('.Lnonce_ok')
    e.cond_end()
    e.label('.Lnonce_done')


def gen_mega():
    e = Stream()
    e.label('mega_kernel')
    e('s_cmp_ge_u32 s2, 256')
    e('s_cbranch_scc1 .Lmega_end')
    e('s_load_dwordx4 s[4:7], s[0:1], 72')
    e('v_lshrrev_b32 v1, 6, v0')
    e('s_nop 0')
    e('v_readfirstlane_b32 s%d, v1' % s_pwave)
    make_srd(e, S_FLG, 6, 8192, FLG_OFF)
    e('s_mov_b32 s%d, 0' % s_nonce)
    e('s_mov_b32 s%d, 0' % (s_nonce + 1))
    e('s_or_b32 s86, s2, s%d' % s_pwave)
    e('s_cmp_lg_u32 s86, 0')
    e('s_cbranch_scc1 .Lno_nonce')
    e.cond_begin()
    make_srd(e, 8, 4, 256)
    e('s_memrealtime s[12:13]')
    e('s_waitcnt lgkmcnt(0)')
    e('s_or_b32 s12, s12, 1')
    e('v_mov_b32 v2, s12')
    e('v_mov_b32 v3, s13')
    e('v_mov_b32 v1, 0')
    e('s_mov_b64 exec, 1')
    e('buffer_store_dwordx2 v[2:3], v1, s[8:11], 0 offen sc1')
    e('s_mov_b64 exec, -1')
    e.cond_end()
    e.label('.Lno_nonce')
    e.extend(gen_k0())
    e.extend(gen_k1p())
    e.extend(gen_k2())
    e.extend(gen_k3())
    e.label('.Lmega_end')
    e('s_endpgm')
    return e


if __name__ == '__main__':
    ks = [('mega_kernel', gen_mega(), 256, 512, 163840, 256, 102, 256)] if MEGA else [('k0_kernel', gen_k0(), 256, 512, 36864, 184, 102, 184),
          ('k1_kernel', gen_k1p(), 256, 512, 163840, 256, 102, 256),
          ('k2_kernel', gen_k2(), 256, 512, 163840, 256, 102, 256),
          ('k3_kernel', gen_k3(), 256, 512, 70144, 176, 102, 176)]
    dst = sys.argv[1] if len(sys.argv) > 1 else 'cdna_kernels/%s.s' % NAME
    open(dst, 'w').write(build(ks))
    print('wrote', dst)
```

```python
import os
import sys
import numpy as np
from asmgen import Stream
import tables as TB
from gen import (NAME, fbits, vr, make_srd, table_srd, allreduce_rows, allreduce_wave, radix8, bf16_round1, merge_keep, build,
                 T1_OFF, T2_OFF, T3_OFF, TW8_OFF, X_SZ, W_SZ, W1_SZ)
from gen23 import wscale, cmul_regs
from gen4 import ln_rows

ENV = lambda k, d: int(os.environ.get(k, str(d)))
STAMP = ENV('STAMP', 0)
FORCE_SLOW = ENV('FORCE_SLOW', 0)

H_OFF, P_OFF, XF_OFF, WT_OFF, YF_OFF, WM_OFF, ST_OFF, Y_OFF, FLG_OFF = 0, 0x1200000, 0x2400000, 0x2700000, 0x2A00000, 0x2D00000, 0x2E00000, 0x3000000, 0x3300000
WS_SZ = 0x3400000
YQ = 289 * 128
OOB = '0x7ffffff0'

S_WS, S_TAB = 92, 96
s_wave, s_fast, s_nlo, s_nhi = 88, 89, 90, 91
s_x, s_i = 84, 85
s_u0, s_u1 = 86, 87
WS = 's[92:95]'
TAB = 's[96:99]'

_uid = [0]
_nst = [0]


def stamp(e, name):
    if not STAMP:
        return
    if name != 'entry' and (name.startswith('G2') != (STAMP == 2) or name.startswith('G1') != (STAMP == 3)):
        return
    i = _nst[0]
    if i >= 13:
        return
    _nst[0] += 1
    sys.stderr.write('stamp %d %s\n' % (i, name))
    e('s_memtime s[100:101]')
    e('s_waitcnt lgkmcnt(0)')
    e('s_mov_b32 s%d, s100' % (3 + i))


def stamp_flush(e):
    if not STAMP:
        return
    e('s_lshl_b32 s100, s2, 3')
    e('s_add_u32 s100, s100, s%d' % s_wave)
    e('s_lshl_b32 s100, s100, 6')
    e('s_add_u32 s100, s100, 0x%x' % ST_OFF)
    e('v_mov_b32 v1, 0')
    for i in range(13):
        e('v_mov_b32 v2, s%d' % (3 + i))
        e('buffer_store_dword v2, v1, %s, s100 offen offset:%d' % (WS, 4 * i))


def flag_store(e, arr, s_idx, vt, local=False):
    _uid[0] += 1
    u = _uid[0]
    e('s_cmp_lg_u32 s%d, 0' % s_wave)
    e('s_cbranch_scc1 .Lpub%d' % u)
    e.cond_begin()
    e('s_lshl_b32 s%d, s%d, 3' % (s_u0, s_idx))
    e('s_add_u32 s%d, s%d, 0x%x' % (s_u0, s_u0, FLG_OFF + arr * 2048))
    e('v_mov_b32 v%d, s%d' % (vt, s_nlo))
    e('v_mov_b32 v%d, s%d' % (vt + 1, s_nhi))
    e('v_mov_b32 v%d, 0' % (vt + 2))
    e('s_mov_b64 exec, 1')
    if local:
        e('s_cmp_lg_u32 s%d, 0' % s_fast)
        e('s_cbranch_scc1 .Lpubf%d' % u)
        e('buffer_wbl2 sc1')
        e('s_waitcnt vmcnt(0)')
        e('buffer_store_dwordx2 v[%d:%d], v%d, %s, s%d offen sc1' % (vt, vt + 1, vt + 2, WS, s_u0))
        e('s_branch .Lpubd%d' % u)
        e.label('.Lpubf%d' % u)
        e('buffer_store_dwordx2 v[%d:%d], v%d, %s, s%d offen' % (vt, vt + 1, vt + 2, WS, s_u0))
        e.label('.Lpubd%d' % u)
    else:
        e('buffer_store_dwordx2 v[%d:%d], v%d, %s, s%d offen sc1' % (vt, vt + 1, vt + 2, WS, s_u0))
    e('s_mov_b64 exec, -1')
    e.cond_end()
    e.label('.Lpub%d' % u)


def wait_flags(e, specs, vt, setfast=False, fastlds=None):
    _uid[0] += 1
    u = _uid[0]
    e('s_cmp_lg_u32 s%d, 0' % s_wave)
    e('s_cbranch_scc1 .Lwf%d_done' % u)
    e.cond_begin()
    loads = []
    base = vt + 4
    for na, (arr, s_first, n) in enumerate(specs):
        va = vt + na
        e('v_and_b32 v%d, %d, v0' % (va, min(n, 64) - 1))
        if s_first is not None:
            e('v_add_u32 v%d, s%d, v%d' % (va, s_first, va))
        e('v_lshlrev_b32 v%d, 3, v%d' % (va, va))
        for j in range(max(n // 64, 1)):
            loads.append((va, FLG_OFF + arr * 2048 + j * 512))
    assert len(loads) <= 5 and len(specs) <= 2
    e('s_mov_b32 s%d, 0' % s_u1)
    e.label('.Lwf%d_loop' % u)
    for i, (va, off) in enumerate(loads):
        e('s_mov_b32 s%d, 0x%x' % (s_u0, off))
        e('buffer_load_dwordx2 v[%d:%d], v%d, %s, s%d offen sc1' % (base + 2 * i, base + 2 * i + 1, va, WS, s_u0))
    e('s_waitcnt vmcnt(0)')
    for i in range(len(loads)):
        lo, hi = base + 2 * i, base + 2 * i + 1
        e('v_xor_b32 v%d, s%d, v%d' % (lo, s_nlo, lo))
        e('v_xor_b32 v%d, s%d, v%d' % (hi, s_nhi, hi))
        e('v_lshrrev_b32 v%d, 4, v%d' % (vt + 3, hi))
        if i == 0:
            e('v_or_b32 v%d, v%d, v%d' % (vt + 2, lo, vt + 3))
        else:
            e('v_or3_b32 v%d, v%d, v%d, v%d' % (vt + 2, lo, vt + 3, vt + 2))
    e('v_cmp_ne_u32 vcc, 0, v%d' % (vt + 2))
    e('s_nop 4')
    e('s_cbranch_vccz .Lwf%d_ok' % u)
    e('s_sleep 1')
    e('s_add_u32 s%d, s%d, 1' % (s_u1, s_u1))
    e('s_cmp_lt_u32 s%d, 0x40000' % s_u1)
    e('s_cbranch_scc1 .Lwf%d_loop' % u)
    e.label('.Lwf%d_ok' % u)
    if setfast:
        e('v_cmp_ne_u32 vcc, 0, v%d' % (base + 1))
        e('s_nop 1')
        e('s_cmp_eq_u64 vcc, 0')
        e('s_cselect_b32 s%d, %d, 0' % (s_fast, 0 if FORCE_SLOW else 1))
    e.cond_end()
    e.label('.Lwf%d_done' % u)
    e('s_barrier')


def gen_mega():
    e = Stream()
    k0c = -2.0 * (2.0 / np.pi) ** 0.5 * np.log2(np.e)
    vA = lambda rt, k: 112 + (k * 2 + rt) * 4
    vB = lambda f: 16 + 4 * f
    v_dma = [3, 4, 5]
    v_l16 = 6
    GRP, D = 12, 5

    e.label('mega_kernel')
    e('s_cmp_ge_u32 s2, 256')
    e('s_cbranch_scc1 .Lmega_end')
    e('s_load_dwordx4 s[16:19], s[0:1], 72')
    e('s_load_dwordx4 s[20:23], s[0:1], 0')
    e('s_load_dwordx2 s[24:25], s[0:1], 16')
    e('s_load_dwordx4 s[28:31], s[0:1], 32')
    table_srd(e, S_TAB, 'm')
    e('v_lshrrev_b32 v1, 6, v0')
    e('v_and_b32 v0, 63, v0')
    e('v_readfirstlane_b32 s%d, v1' % s_wave)
    e('s_and_b32 s%d, s2, 7' % s_x)
    e('s_lshr_b32 s%d, s2, 3' % s_i)
    e('v_lshlrev_b32 v%d, 4, v0' % v_l16)
    e('s_mov_b32 s%d, 0' % s_fast)
    S_X, S_WR, S_WI, S_DBG = 32, 36, 40, 44
    p_t0, p_t1, p_n2, p_xo = 74, 75, 76, 77
    p_ex = 78
    p_tw = 48
    S_W1, S_B1 = 16, 20
    a_t0, a_t1, a_n0, a_par, a_hp, a_hs, a_n1, a_m0b, a_a0, a_a1 = 64, 65, 66, 67, 68, 69, 70, 71, 72, 73
    a_so = 80
    F = 40
    WREG = 16
    p_tid, p_v0, p_v1, p_so = 7, 8, 9, 10
    TL = 122880
    XL = TL + 16384
    YROW = 1168
    YL = XL + 9344
    WMX = YL + 8 * YROW + 1024
    assert WMX + 4 <= 163840

    e('s_lshl_b32 s%d, s%d, 5' % (p_n2, s_x))
    e('s_add_u32 s%d, s%d, s%d' % (p_n2, p_n2, s_i))
    e('s_lshl_b32 s%d, s%d, 10' % (a_m0b, s_wave))
    e('s_lshl_b32 s%d, s%d, 6' % (p_t0, s_wave))
    e('v_add_u32 v%d, s%d, v0' % (p_tid, p_t0))
    e('v_lshrrev_b32 v1, 4, v0')
    e('v_and_b32 v2, 15, v0')
    e('v_lshlrev_b32 v%d, 8, v1' % p_v0)
    e('v_lshl_add_u32 v%d, v2, 1, v%d' % (F + 20, p_v0))
    e('v_lshlrev_b32 v%d, 5, v1' % p_v0)
    e('v_lshl_add_u32 v%d, v2, 1, v%d' % (F + 21, p_v0))
    e('s_lshl_b32 s%d, s%d, 8' % (p_t0, s_wave))
    e('s_add_u32 s%d, s%d, s%d' % (p_t0, p_t0, p_n2))
    e('s_mul_i32 s%d, s%d, 1152' % (p_t0, p_t0))
    make_srd(e, S_X, 20, X_SZ)
    for j in range(8):
        e('buffer_load_ushort v%d, v%d, s[%d:%d], s%d offen offset:%d' % (F + j, F + 20, S_X, S_X + 3, p_t0, j * 32))
    e('buffer_load_ushort v%d, v%d, s[%d:%d], s%d offen offset:1024' % (F + 8, F + 21, S_X, S_X + 3, p_t0))
    make_srd(e, S_WS, 18, WS_SZ)
    make_srd(e, S_DBG, 16, 256)
    make_srd(e, S_WR, 22, W_SZ)
    make_srd(e, S_WI, 24, W_SZ)
    make_srd(e, S_B1, 30, 9216)
    make_srd(e, S_W1, 28, W1_SZ)
    stamp(e, 'entry')
    e('s_or_b32 s%d, s2, s%d' % (s_u0, s_wave))
    e('s_cmp_lg_u32 s%d, 0' % s_u0)
    e('s_cbranch_scc1 .Lno_nonce')
    e.cond_begin()
    e('s_memrealtime s[100:101]')
    e('s_waitcnt lgkmcnt(0)')
    e('s_or_b32 s100, s100, 1')
    e('v_mov_b32 v12, s100')
    e('v_mov_b32 v13, s101')
    e('v_mov_b32 v1, 0')
    e('s_mov_b64 exec, 1')
    e('buffer_store_dwordx2 v[12:13], v1, s[%d:%d], 0 offen sc1' % (S_DBG, S_DBG + 3))
    e('s_mov_b64 exec, -1')
    e.cond_end()
    e.label('.Lno_nonce')
    e('s_add_u32 m0, s%d, 0x%x' % (a_m0b, TL))
    e('buffer_load_dwordx4 v%d, %s, s%d offen lds' % (v_l16, TAB, a_m0b), tok=('tl', 0))
    e('s_add_u32 s%d, s%d, 8192' % (p_t0, a_m0b))
    e('s_add_u32 m0, s%d, 0x%x' % (a_m0b, TL + 8192))
    e('buffer_load_dwordx4 v%d, %s, s%d offen lds' % (v_l16, TAB, p_t0), tok=('tl', 1))
    e('s_lshl_b32 s%d, s%d, 6' % (p_t0, p_n2))
    e('s_add_u32 s%d, s%d, 0x%x' % (p_t0, p_t0, TW8_OFF))
    e('s_add_u32 s%d, s%d, s%d' % (p_ex, S_TAB, p_t0))
    e('s_addc_u32 s%d, s%d, 0' % (p_ex + 1, S_TAB + 1))
    e('s_load_dwordx16 s[%d:%d], s[%d:%d], 0' % (p_tw, p_tw + 15, p_ex, p_ex + 1))

    a_rb, a_cb = 26, 27
    e('s_and_b32 s%d, s%d, 1' % (a_rb, s_x))
    e('s_lshl_b32 s%d, s%d, 2' % (a_rb, a_rb))
    e('s_and_b32 s%d, s%d, 3' % (a_cb, s_i))
    e('s_add_u32 s%d, s%d, s%d' % (a_rb, a_rb, a_cb))
    e('s_lshr_b32 s%d, s%d, 1' % (a_cb, s_x))
    e('s_lshl_b32 s%d, s%d, 3' % (a_cb, a_cb))
    e('s_lshr_b32 s%d, s%d, 2' % (a_t0, s_i))
    e('s_add_u32 s%d, s%d, s%d' % (a_cb, a_cb, a_t0))
    e('s_mul_i32 s%d, s%d, 288' % (a_n0, a_cb))
    e('s_and_b32 s%d, s%d, 1' % (a_par, a_cb))
    e('s_lshl_b32 s%d, s%d, 5' % (a_n1, a_par))
    e('s_add_u32 s%d, s%d, s%d' % (a_n1, a_n1, a_n0))

    def k1_dma_setup(st, p2, t0, t1):
        st('s_lshl_b32 s%d, s%d, 6' % (a_t0, s_wave))
        st('s_mov_b32 s%d, 0x%x' % (a_t1, 0x2aaab if p2 else 0x15556))
        if p2:
            st('s_lshl_b32 s%d, s%d, 5' % (a_so + 2, a_par))
            st('s_add_u32 s%d, s%d, 192' % (a_so + 2, a_so + 2))
            st('s_mul_i32 s%d, s%d, 288' % (a_so + 3, a_par))
        for q in range(3):
            d = v_dma[q]
            st('v_add_u32 v%d, s%d, v0' % (d, a_t0))
            if q:
                st('v_add_u32 v%d, %d, v%d' % (d, q * 512, d))
            st('v_mul_u32_u24 v%d, s%d, v%d' % (t0, a_t1, d))
            st('v_lshrrev_b32 v%d, 20, v%d' % (t0, t0))
            st('v_mul_u32_u24 v%d, %d, v%d' % (t1, 6 if p2 else 12, t0))
            st('v_sub_u32 v%d, v%d, v%d' % (d, d, t1))
            if not p2:
                st('v_bfe_u32 v%d, v%d, 2, 1' % (t1, t0))
                st('v_lshlrev_b32 v%d, 1, v%d' % (t1, t1))
                st('v_xor_b32 v%d, v%d, v%d' % (d, d, t1))
                st('v_lshlrev_b32 v%d, 4, v%d' % (d, d))
            else:
                st('v_lshrrev_b32 v%d, 2, v%d' % (t1, d))
                st('v_mul_u32_u24 v%d, s%d, v%d' % (t1, a_so + 3, t1))
                st('v_lshlrev_b32 v%d, 4, v%d' % (d, d))
                st('v_add_u32 v%d, s%d, v%d' % (d, a_so + 2, d))
                st('v_sub_u32 v%d, v%d, v%d' % (d, d, t1))
            st('v_mul_u32_u24 v%d, 9216, v%d' % (t0, t0))
            st('v_add_u32 v%d, v%d, v%d' % (d, d, t0))

    k1_dma_setup(e, False, 1, 2)
    k_t0, k_t1 = 7, 8

    def k1_bdma(q):
        st = Stream()
        if q == 14:
            k1_dma_setup(st, True, k_t0, k_t1)
        lim = {13: 4, 20: 6}.get(q)
        if lim:
            st('s_cmp_ge_u32 s%d, %d' % (s_wave, lim))
            st('s_cbranch_scc1 .Lk1_dma%d' % q)
            st.cond_begin()
        so = a_so + (q % 2)
        if q < 14:
            st('s_add_u32 s%d, s%d, 0x%x' % (so, a_n1, (q // 3) * 128 * 9216))
            pat = q % 3
        else:
            st('s_add_u32 s%d, s%d, 0x%x' % (so, a_n0, ((q - 14) // 3) * 256 * 9216))
            pat = (q - 14) % 3
        st('s_add_u32 m0, s%d, 0x%x' % (a_m0b, (q % 20) * 8192))
        st('buffer_load_dwordx4 v%d, s[%d:%d], s%d offen lds' % (v_dma[pat], S_W1, S_W1 + 3, so), tok=('d', q))
        if lim:
            st.cond_end()
            st.label('.Lk1_dma%d' % q)
        return st

    NQ0 = ENV('NQ0', 6)
    for q in range(NQ0):
        e.extend(k1_bdma(q))
    e('v_mov_b32 v1, 0')
    e('v_mov_b32 v2, 0x%x' % WMX)
    e('ds_write_b32 v2, v1')

    X0, T0_, M_, V_, Q_ = F, F + 9, F + 18, F + 19, F + 22
    for j in range(9):
        e('v_lshlrev_b32 v%d, 16, v%d' % (X0 + j, X0 + j))
    ln_rows(e, X0, T0_, M_, V_, Q_)
    A4, A2 = F + 24, F + 28
    e('v_mov_b32 v%d, 0' % (A2 + 1))
    e('v_mov_b32 v%d, 0' % (A2 + 2))
    for p in range(4):
        e('v_cvt_pk_f16_f32 v%d, v%d, v%d' % (A4 + p, X0 + 2 * p, X0 + 1 + 2 * p))
    e('v_cvt_pk_f16_f32 v%d, v%d, v%d' % (A2, X0 + 8, A2 + 1))
    e('v_cvt_pk_f16_f32 v%d, v%d, v%d' % (A2 + 3, X0 + 8, A2 + 1))
    ln_rows(e, X0, T0_, M_, V_, Q_)
    e('s_mul_i32 s%d, s%d, %d' % (p_t0, s_wave, YROW))
    e('s_add_u32 s%d, s%d, 0x%x' % (p_t0, p_t0, YL))
    e('v_add_u32 v%d, s%d, v%d' % (F + 20, p_t0, F + 20))
    e('v_add_u32 v%d, s%d, v%d' % (F + 21, p_t0, F + 21))
    for j in range(8):
        e('ds_write_b16_d16_hi v%d, v%d offset:%d' % (F + 20, X0 + j, j * 32))
    e('ds_write_b16_d16_hi v%d, v%d offset:1024' % (F + 21, X0 + 8))
    e('v_and_b32 v1, 7, v%d' % p_tid)
    e('v_mul_u32_u24 v32, %d, v1' % YROW)
    e('v_lshrrev_b32 v2, 5, v%d' % p_tid)
    e('v_lshl_add_u32 v32, v2, 6, v32')
    e('v_bfe_u32 v2, v%d, 3, 2' % p_tid)
    e('v_lshl_add_u32 v32, v2, 3, v32')
    e('v_add_u32 v32, 0x%x, v32' % YL)
    e('v_lshrrev_b32 v33, 3, v%d' % p_tid)
    e('v_lshlrev_b32 v33, 8, v33')
    e('v_lshl_add_u32 v33, v1, 4, v33')
    e('s_lshr_b32 s%d, s%d, 1' % (p_t0, p_n2))
    e('s_mul_i32 s%d, s%d, 18432' % (p_t0, p_t0))
    e('s_and_b32 s%d, s%d, 1' % (p_t1, p_n2))
    e('s_lshl_b32 s%d, s%d, 7' % (p_t1, p_t1))
    e('s_add_u32 s%d, s%d, s%d' % (p_t0, p_t0, p_t1))
    e('s_add_u32 s%d, s%d, 0x%x' % (p_t0, p_t0, Y_OFF))
    e('s_waitcnt lgkmcnt(0)')
    e('s_barrier', needs=[('tl', 0), ('tl', 1)])
    e('ds_read_b64 v[36:37], v32')
    e('ds_read_b64 v[38:39], v32 offset:32')
    e('ds_read_b64 v[12:13], v32 offset:1024')
    e('ds_read_b64 v[14:15], v32 offset:1056')
    e('buffer_store_dwordx4 v[36:39], v33, %s, s%d offen sc1' % (WS, p_t0), tok=('ys', 0))
    e('s_cmp_lg_u32 s%d, 0' % s_wave)
    e('s_cbranch_scc1 .Lp0_now0')
    e.cond_begin()
    e('s_add_u32 s%d, s%d, 16384' % (p_t0, p_t0))
    e('buffer_store_dwordx4 v[12:15], v33, %s, s%d offen sc1' % (WS, p_t0), tok=('ys', 1))
    e('v_mov_b32 v1, 0')
    e('s_mov_b32 s%d, 0' % s_u1)
    e.label('.Lnonce_loop')
    e('buffer_load_dwordx2 v[34:35], v1, s[%d:%d], 0 offen sc1' % (S_DBG, S_DBG + 3))
    e('s_waitcnt vmcnt(0)')
    e('v_readfirstlane_b32 s%d, v34' % s_nlo)
    e('v_readfirstlane_b32 s%d, v35' % s_nhi)
    e('s_nop 1')
    e('s_cmp_lg_u32 s%d, 0' % s_nlo)
    e('s_cbranch_scc1 .Lnonce_ok')
    e('s_sleep 1')
    e('s_add_u32 s%d, s%d, 1' % (s_u1, s_u1))
    e('s_cmp_lt_u32 s%d, 0x40000' % s_u1)
    e('s_cbranch_scc1 .Lnonce_loop')
    e.label('.Lnonce_ok')
    e('s_getreg_b32 s%d, hwreg(HW_REG_XCC_ID)' % s_u0)
    e('s_and_b32 s%d, s%d, 15' % (s_u0, s_u0))
    e('s_lshl_b32 s%d, s%d, 4' % (s_nhi, s_nhi))
    e('s_or_b32 s%d, s%d, s%d' % (s_nhi, s_nhi, s_u0))
    e.cond_end()
    e.label('.Lp0_now0')
    TA = F + 23
    e('v_add_u32 v%d, 0x%x, v%d' % (TA, TL, v_l16))
    for q in range(5):
        e('ds_read_b128 %s, v%d offset:%d' % (vr(F + 32 + 4 * q, 4), TA, q * 1024))
    for q in range(2):
        e('ds_read_b128 %s, v%d offset:%d' % (vr(F + 56 + 4 * q, 4), TA, (11 + q) * 1024))
    for i in range(4):
        e('v_mfma_f32_16x16x32_f16 %s, %s, %s, 0' % (vr(F + 4 * i, 4), vr(A4, 4), vr(F + 32 + 4 * i, 4)))
    for i in range(4):
        e('v_mfma_f32_16x16x16_f16 %s, %s, %s, %s' % (vr(F + 4 * i, 4), vr(A2 + 2 * (i & 1), 2), vr(F + 48 + (i & 2), 2), vr(F + 4 * i, 4)))
    for q in range(6):
        e('ds_read_b128 %s, v%d offset:%d' % (vr(F + 32 + 4 * q, 4), TA, (5 + q) * 1024))
    e('s_barrier', needs=[('ys', 0), ('ys', 1)])
    flag_store(e, 0, p_n2, 12)
    stamp(e, 'y published')
    ld = Stream()
    ld('v_cmp_gt_u32 vcc, 289, v%d' % p_tid)
    ld('v_mov_b32 v%d, %s' % (p_v1, OOB))
    ld('v_lshlrev_b32 v%d, 1, v%d' % (p_v0, p_tid))
    ld('v_cndmask_b32 v%d, v%d, v%d, vcc' % (p_v0, p_v1, p_v0))
    ld('v_lshrrev_b32 v%d, 2, v%d' % (p_so, p_tid))
    ld('v_lshlrev_b32 v%d, 15, v%d' % (p_so, p_so))
    ld('v_and_b32 v1, 3, v%d' % p_tid)
    ld('v_lshl_add_u32 v%d, v1, 5, v%d' % (p_so, p_so))
    ld('v_cndmask_b32 v%d, v%d, v%d, vcc' % (p_so, p_v1, p_so))
    ld('s_lshl_b32 s%d, s%d, 7' % (p_xo, p_n2))
    ld('s_and_b32 s%d, s%d, 127' % (p_ex, p_n2))
    ld('s_lshr_b32 s%d, s%d, 7' % (p_ex + 1, p_n2))
    ld('s_lshl_b32 s%d, s%d, 10' % (p_ex + 1, p_ex + 1))
    ld('s_add_u32 s%d, s%d, s%d' % (p_ex, p_ex, p_ex + 1))
    ld('s_mul_i32 s%d, s%d, 578' % (p_ex, p_ex))
    for i in range(8):
        if i:
            ld('s_add_u32 s%d, s%d, %d' % (p_ex, p_ex, 128 * 578))
        ld('buffer_load_ushort v%d, v%d, s[%d:%d], s%d offen' % (WREG + i, p_v0, S_WR, S_WR + 3, p_ex))
        ld('buffer_load_ushort v%d, v%d, s[%d:%d], s%d offen' % (WREG + 8 + i, p_v0, S_WI, S_WI + 3, p_ex))
    NQ1 = ENV('NQ1', 14)
    for q in range(NQ0, NQ1):
        ld.extend(k1_bdma(q))
    f = Stream()
    f('s_mul_i32 s%d, s%d, %d' % (p_t0, s_wave, TB.XL_ROW))
    f('s_add_u32 s%d, s%d, 0x%x' % (p_t0, p_t0, XL))
    for i in range(8):
        f('v_add_u32 v%d, s%d, v%d' % (F + 56 + i, p_t0, F + 56 + i))
    for ct in range(2):
        dre, dim = F + ct * 8, F + ct * 8 + 4
        twr, twi = F + 32 + ct * 8, F + 32 + ct * 8 + 4
        for r in range(4):
            f('v_mul_f32 v%d, v%d, v%d' % (F + 16 + r, dre + r, twr + r))
            f('v_mul_f32 v%d, v%d, v%d' % (dre + r, dre + r, twi + r))
        for r in range(4):
            f('v_fma_f32 v%d, -v%d, v%d, v%d' % (F + 16 + r, dim + r, twi + r, F + 16 + r))
            f('v_fmac_f32 v%d, v%d, v%d' % (dre + r, dim + r, twr + r))
        for r in range(4):
            f('v_cvt_pk_f16_f32 v%d, v%d, v%d' % (F + 24 + 4 * ct + r, F + 16 + r, dre + r))
    for ct in range(2):
        for ri in range(2):
            f('v_mfma_f32_16x16x32_f16 %s, %s, %s, 0' % (vr(F + (ct * 2 + ri) * 4, 4), vr(F + 48 + ri * 4, 4), vr(F + 24 + 4 * ct, 4)))
    for ct in range(2):
        for r in range(4):
            f('v_cvt_pk_f16_f32 v%d, v%d, v%d' % (F + ct * 8 + r, F + ct * 8 + r, F + ct * 8 + 4 + r))
            f('ds_write_b32 v%d, v%d' % (F + 56 + ct * 4 + r, F + ct * 8 + r))
    e.extend(merge_keep(f, ld))
    e('s_waitcnt lgkmcnt(0)')
    e('s_lshl_b32 s%d, s%d, 5' % (p_t0, s_x))
    e('s_lshl_b32 s%d, s%d, 5' % (p_t1, a_rb))
    wait_flags(e, [(0, p_t0, 32), (0, p_t1, 32)], F + 32, setfast=True)
    stamp(e, 'y flags ok')

    e('s_lshl_b32 s%d, s%d, 4' % (a_t0, a_rb))
    e('s_lshl_b32 s%d, s%d, 1' % (a_t1, s_wave))
    e('s_add_u32 s%d, s%d, s%d' % (a_t0, a_t0, a_t1))
    e('s_mul_i32 s%d, s%d, 18432' % (a_a0, a_t0))
    e('s_add_u32 s%d, s%d, 0x%x' % (a_a0, a_a0, Y_OFF))
    e('s_add_u32 s%d, s%d, 18432' % (a_a1, a_a0))
    e('s_mul_i32 s%d, s%d, %d' % (a_hs, a_t0, 144 * 1024))

    def aload(k, a0, a1):
        st = Stream()
        for rt in range(2):
            so = (a0, a1)[rt]
            if k >= 4 and k % 4 == 0:
                st('s_add_u32 s%d, s%d, 4096' % (so, so))
            st('buffer_load_dwordx4 %s, v%d, %s, s%d offen offset:%d%s' % (vr(vA(rt, k), 4), v_l16, WS, so, (k % 4) * 1024, os.environ.get('ALD', ' sc1')))
        return st

    nq = [NQ1]
    na = [0]

    def k1_issue(st, ka, qlim):
        while True:
            did = False
            if na[0] < min(ka, 18):
                st.extend(aload(na[0], a_a0, a_a1))
                na[0] += 1
                did = True
            if nq[0] < min(qlim, 21):
                st.extend(k1_bdma(nq[0]))
                nq[0] += 1
                did = True
            if not did:
                break

    LA1 = ENV('K1LA', 8)
    ld = Stream()
    k1_issue(ld, LA1, NQ1)
    G_ = F
    f = Stream()
    f('v_lshlrev_b32 v1, 2, v%d' % p_tid)
    f('v_add_u32 v1, 0x%x, v1' % XL)
    for n in range(8):
        f('ds_read_b32 v%d, v1 offset:%d' % (G_ + 16 + n, n * TB.XL_ROW))
    for n in range(8):
        f('v_cvt_f32_f16 v%d, v%d' % (G_ + 2 * n, G_ + 16 + n))
        f('v_cvt_f32_f16_sdwa v%d, v%d dst_sel:DWORD dst_unused:UNUSED_PAD src0_sel:WORD_1' % (G_ + 2 * n + 1, G_ + 16 + n))
    X = radix8(f, G_, G_ + 16, None)
    for k1 in range(8):
        x = X[k1]
        c, s = p_tw + 2 * k1, p_tw + 2 * k1 + 1
        t_ = G_ + 2 * k1
        f('v_mul_f32 v%d, s%d, v%d' % (t_, c, x))
        f('v_mul_f32 v%d, s%d, v%d' % (t_ + 1, s, x))
        f('v_mul_f32 v%d, s%d, v%d' % (x, s, x + 1))
        f('v_mul_f32 v%d, s%d, v%d' % (x + 1, c, x + 1))
        f('v_sub_f32 v%d, v%d, v%d' % (t_, t_, x))
        f('v_add_f32 v%d, v%d, v%d' % (t_ + 1, t_ + 1, x + 1))
        f('v_cvt_pk_f16_f32 v%d, v%d, v%d' % (G_ + 56 + k1, t_, t_ + 1))
    for i in range(8):
        f('v_lshl_or_b32 v%d, v%d, 16, v%d' % (104 + i, WREG + 8 + i, WREG + i))
    M = WREG + 8
    for i in range(8):
        f('v_and_b32 v%d, 0x7fff7fff, v%d' % (M + i, 104 + i))
    for s_ in (4, 2, 1):
        for i in range(s_):
            f('v_pk_max_u16 v%d, v%d, v%d' % (M + i, M + i, M + i + s_))
    f('v_lshrrev_b32 v%d, 16, v%d' % (M + 1, M))
    f('v_and_b32 v%d, 0xffff, v%d' % (M, M))
    f('v_max_u32 v%d, v%d, v%d' % (M, M, M + 1))
    allreduce_wave(f, M, M + 1, 'v_max_u32')
    e.extend(ld)
    e('s_cmp_ge_u32 s%d, 5' % s_wave)
    e('s_cbranch_scc1 .Lp0_nor8')
    e.cond_begin()
    e.extend(f)
    e('v_mov_b32 v%d, 0x%x' % (M + 1, WMX))
    e('s_mov_b64 exec, 1')
    e('ds_max_u32 v%d, v%d' % (M + 1, M))
    e('s_mov_b64 exec, -1')
    e('s_lshl_b32 s%d, s%d, 11' % (p_t0, s_wave))
    e('v_lshlrev_b32 v1, 5, v0')
    e('v_add_u32 v1, s%d, v1' % p_t0)
    e('v_add_u32 v1, 0x%x, v1' % TL)
    e('v_add_u32 v2, s%d, v%d' % (p_t0, v_l16))
    e('v_add_u32 v2, 0x%x, v2' % TL)
    w0 = e('ds_write_b128 v1, v[96:99]')
    w1 = e('ds_write_b128 v1, v[100:103] offset:16')
    w2 = e('ds_write_b128 v1, v[104:107] offset:%d' % (YL - TL))
    w3 = e('ds_write_b128 v1, v[108:111] offset:%d' % (YL - TL + 16))
    e('ds_read_b128 v[96:99], v2', needs=[w0, w1, w2, w3])
    e('ds_read_b128 v[100:103], v2 offset:1024')
    e('ds_read_b128 v[104:107], v2 offset:%d' % (YL - TL))
    e('ds_read_b128 v[108:111], v2 offset:%d' % (YL - TL + 1024))
    e('v_lshrrev_b32 v1, 3, v0')
    e('s_lshl_b32 s%d, s%d, 4' % (p_t0, s_wave))
    e('v_add_u32 v1, s%d, v1' % p_t0)
    e('v_and_b32 v2, 0x70, v%d' % v_l16)
    e('v_mov_b32 v%d, %s' % (p_v1, OOB))
    e('v_cmp_gt_u32 vcc, 73, v1')
    e('v_lshl_add_u32 v%d, v1, 15, v2' % p_so)
    e('v_add_u32 v%d, 0x40000, v%d' % (p_v0, p_so))
    e('v_cndmask_b32 v%d, v%d, v%d, vcc' % (p_so, p_v1, p_so))
    e('v_cmp_gt_u32 vcc, 65, v1')
    e('v_cndmask_b32 v%d, v%d, v%d, vcc' % (p_v0, p_v1, p_v0))
    e('s_add_u32 s%d, s%d, 0x%x' % (p_t0, p_xo, XF_OFF))
    e('s_add_u32 s%d, s%d, 0x%x' % (p_t1, p_xo, WT_OFF))
    e('buffer_store_dwordx4 v[96:99], v%d, %s, s%d offen sc1' % (p_so, WS, p_t0), tok=('xs', 0))
    e('buffer_store_dwordx4 v[100:103], v%d, %s, s%d offen sc1' % (p_v0, WS, p_t0), tok=('xs', 0))
    e('buffer_store_dwordx4 v[104:107], v%d, %s, s%d offen sc1' % (p_so, WS, p_t1), tok=('xs', 0))
    e('buffer_store_dwordx4 v[108:111], v%d, %s, s%d offen sc1' % (p_v0, WS, p_t1), tok=('xs', 0))
    e.cond_end()
    e.label('.Lp0_nor8')
    stamp(e, 'p0 done')

    vC1 = lambda rt, t: 64 + ((t >> 1) * 2 + rt) * 8 + (t & 1) * 4
    vC2 = lambda rt, t: (40 + rt * 8 + t * 4) if t < 2 else (56 + rt * 4)
    v_be, v_bo, v_b2 = 1, 2, 9
    v_a0, v_a1, v_k1, v_bz = 10, 11, 12, 13
    e('v_lshrrev_b32 v%d, 4, v0' % k_t0)
    e('v_lshlrev_b32 v%d, 3, v%d' % (v_bz, k_t0))
    for t in range(6):
        e('buffer_load_dwordx2 %s, v%d, s[%d:%d], s%d offen offset:%d' % (vr(40 + 4 * t, 2), v_bz, S_B1, S_B1 + 3, a_n1, t * 32))
    e('v_add_u32 v%d, s%d, v%d' % (v_a0, a_hs, v_l16))
    e('v_add_u32 v%d, 0x%x, v%d' % (v_a1, 144 * 1024, v_a0))
    e('v_lshrrev_b32 v%d, 2, v0' % k_t0)
    e('v_mul_u32_u24 v%d, 192, v%d' % (v_be, k_t0))
    e('v_and_b32 v%d, 3, v0' % k_t1)
    e('v_lshl_add_u32 v%d, v%d, 3, v%d' % (v_be, k_t1, v_be))
    e('v_mul_u32_u24 v%d, 96, v%d' % (v_b2, k_t0))
    e('v_lshl_add_u32 v%d, v%d, 3, v%d' % (v_b2, k_t1, v_b2))
    e('v_bfe_u32 v%d, v0, 4, 1' % k_t1)
    e('v_lshlrev_b32 v%d, 5, v%d' % (k_t1, k_t1))
    e('v_sub_u32 v%d, v%d, v%d' % (v_bo, v_be, k_t1))
    e('v_add_u32 v%d, 32, v%d' % (v_bo, v_bo))
    e('v_add_u32 v%d, v%d, v%d' % (v_be, v_be, k_t1))
    e('v_mov_b32 v%d, %s' % (v_k1, fbits(k0c * 0.044715)))
    e('s_mul_i32 s%d, s%d, 9' % (a_t1, a_cb))
    e('s_add_u32 s%d, s%d, s%d' % (a_hp, a_t1, a_par))
    e('s_lshl_b32 s%d, s%d, 9' % (a_hp, a_hp))
    e('s_add_u32 s%d, s%d, 4096' % (a_hs, a_hp))
    e('s_sub_u32 s%d, s%d, 512' % (a_t0, a_hp))
    e('s_cmp_eq_u32 s%d, 1' % a_par)
    e('s_cselect_b32 s%d, s%d, s%d' % (a_hs, a_t0, a_hs))
    for t in range(6):
        b = 40 + 4 * t
        e('v_and_b32 v%d, 0xffff0000, v%d' % (b + 3, b + 1))
        e('v_lshlrev_b32 v%d, 16, v%d' % (b + 2, b + 1))
        e('v_and_b32 v%d, 0xffff0000, v%d' % (b + 1, b))
        e('v_lshlrev_b32 v%d, 16, v%d' % (b, b))

    wbase = {}

    def based(st, reg, ro, span):
        if not (0 <= ro - wbase[reg] and ro - wbase[reg] + span <= 65536):
            st('v_add_u32 v%d, 0x%x, v%d' % (reg, (ro - wbase[reg]) & 0xffffffff, reg))
            wbase[reg] = ro
        return ro - wbase[reg]

    def make_fread(ring1, ring2):
        def fread(st, p, al):
            f_ = p % 6
            if p < 108:
                k, t = divmod(p, 6)
                reg = (v_be, v_bo)[t & 1]
                off = based(st, reg, ring1(k), 6144) + al * 3072 + (t >> 1) * 64
            else:
                k, t = divmod(p - 108, 3)
                reg = v_b2
                off = based(st, reg, ring2(k), 3072) + al * 1536 + t * 32
            st('ds_read_b64_tr_b16 %s, v%d offset:%d' % (vr(vB(f_) + 2 * al, 2), reg, off))
        return fread

    wbase.update({v_be: 0, v_bo: 0, v_b2: 0})
    fread = make_fread(lambda k: k * 6144, lambda k: ((112 + 3 * k) % 160) * 1024)

    def slots_for(p):
        if p < 108:
            return min(-(-(p // 6 + 1) * 6 // 8), 14)
        return 14 + min(-(-((p - 108) // 3 + 1) * 3 // 8), 7)

    def mf1(p, rt):
        if p < 108:
            k, t = divmod(p, 6)
            c = vC1(rt, t)
            cin = vr(c, 4) if k else vr(40 + 4 * t, 4)
        else:
            k, t = divmod(p - 108, 3)
            c = vC2(rt, t)
            cin = vr(c, 4)
        return 'v_mfma_f32_16x16x32_bf16 %s, %s, %s, %s' % (vr(c, 4), vr(vB(p % 6), 4), vr(vA(rt, k), 4), cin)

    def bias2():
        st = Stream()
        st('s_add_u32 s%d, s%d, 192' % (a_so + 2, a_n1))
        st('buffer_load_dwordx2 %s, v%d, s[%d:%d], s%d offen' % (vr(vC2(1, 0), 2), v_bz, S_B1, S_B1 + 3, a_so + 2))
        st('buffer_load_dwordx2 %s, v%d, s[%d:%d], s%d offen offset:32' % (vr(vC2(1, 1), 2), v_bz, S_B1, S_B1 + 3, a_so + 2))
        st('s_mul_i32 s%d, s%d, 256' % (a_so + 3, a_par))
        st('s_sub_u32 s%d, 256, s%d' % (a_so + 3, a_so + 3))
        st('s_add_u32 s%d, s%d, s%d' % (a_so + 3, a_so + 3, a_n0))
        st('buffer_load_dwordx2 %s, v%d, s[%d:%d], s%d offen' % (vr(vC2(1, 2), 2), v_bz, S_B1, S_B1 + 3, a_so + 3))
        un = Stream()
        for t in range(3):
            a, b = vC2(0, t), vC2(1, t)
            un('v_lshlrev_b32 v%d, 16, v%d' % (a, b))
            un('v_and_b32 v%d, 0xffff0000, v%d' % (a + 1, b))
            un('v_lshlrev_b32 v%d, 16, v%d' % (a + 2, b + 1))
            un('v_and_b32 v%d, 0xffff0000, v%d' % (a + 3, b + 1))
            for r in range(4):
                un('v_mov_b32 v%d, v%d' % (b + r, a + r))
        return st, un

    def epi(accf, tiles, T):
        st = Stream()
        n = len(tiles)
        for rt in range(2):
            w_ = T + 8 * rt
            A = accf(rt, tiles[0])
            E = range(4 * n)
            for r in E:
                st('v_mul_f32 v%d, v%d, v%d' % (w_ + r, A + r, A + r))
            for r in E:
                st('v_fmaak_f32 v%d, v%d, v%d, %s' % (w_ + r, v_k1, w_ + r, fbits(k0c)))
            for r in E:
                st('v_mul_f32 v%d, v%d, v%d' % (w_ + r, w_ + r, A + r))
            for r in E:
                st('v_exp_f32 v%d, v%d' % (w_ + r, w_ + r))
            for r in E:
                st('v_add_f32 v%d, 1.0, v%d' % (w_ + r, w_ + r))
            for r in E:
                st('v_rcp_f32 v%d, v%d' % (w_ + r, w_ + r))
            for r in E:
                st('v_mul_f32 v%d, v%d, v%d' % (w_ + r, A + r, w_ + r))
            for j in range(2 * n):
                st('v_cvt_pk_bf16_f32 v%d, v%d, v%d' % (A + j, w_ + 2 * j, w_ + 2 * j + 1))
            if n == 2:
                st('buffer_store_dwordx4 %s, v%d, %s, s%d offen offset:%d' % (vr(A, 4), (v_a0, v_a1)[rt], WS, a_hp, (tiles[0] >> 1) * 1024) + ' sc1', tok=('hs', tiles[0] >> 1))
            else:
                st('v_lshlrev_b32 v%d, 3, v0' % (T + 4))
                st('v_sub_u32 v%d, v%d, v%d' % (T + 4 + 1 + rt, (v_a0, v_a1)[rt], T + 4))
                st('buffer_store_dwordx2 %s, v%d, %s, s%d offen' % (vr(A, 2), T + 5 + rt, WS, a_hs) + ' sc1', tok=('hs', 4))
        return st

    S_W2 = 32
    PERM = [0, 1, 5, 6, 9, 10, 14, 15, 2, 3, 7, 8, 11, 12, 16, 17, 4, 13]
    INV = [PERM.index(k) for k in range(18)]
    b_ks, b_rb, b_cb, b_t0, b_t1, b_b0, b_a0, b_a1, b_p0, b_kh, b_rg = 36, 37, 38, 39, 40, 41, 42, 43, 44, 45, 46
    b_col = 48
    b_so = 50
    b_msk = 54

    def k2_dma_setup(st, upr, swz, t0, t1):
        st('s_lshl_b32 s%d, s%d, 6' % (b_t0, s_wave))
        st('s_mov_b32 s%d, 0x%x' % (b_t1, 0x15556 if upr == 12 else 0x2aaab))
        for q in range(3):
            d = v_dma[q]
            st('v_add_u32 v%d, s%d, v0' % (d, b_t0))
            if q:
                st('v_add_u32 v%d, %d, v%d' % (d, q * 512, d))
            st('v_mul_u32_u24 v%d, s%d, v%d' % (t0, b_t1, d))
            st('v_lshrrev_b32 v%d, 20, v%d' % (t0, t0))
            st('v_mul_u32_u24 v%d, %d, v%d' % (t1, upr, t0))
            st('v_sub_u32 v%d, v%d, v%d' % (d, d, t1))
            if swz:
                st('v_bfe_u32 v%d, v%d, 2, 1' % (t1, t0))
                st('v_lshlrev_b32 v%d, 1, v%d' % (t1, t1))
                st('v_xor_b32 v%d, v%d, v%d' % (d, d, t1))
            st('v_lshlrev_b32 v%d, 4, v%d' % (d, d))
            st('v_bfe_u32 v%d, v%d, 5, 1' % (t1, t0))
            st('v_mul_u32_u24 v%d, %d, v%d' % (t1, 576 * 1152, t1))
            st('v_add_u32 v%d, v%d, v%d' % (d, d, t1))
            st('v_lshrrev_b32 v%d, 6, v%d' % (t1, t0))
            st('v_and_b32 v%d, 31, v%d' % (t0, t0))
            st('v_lshl_add_u32 v%d, v%d, 5, v%d' % (t0, t1, t0))
            st('v_mul_u32_u24 v%d, 1152, v%d' % (t0, t0))
            st('v_add_u32 v%d, v%d, v%d' % (d, d, t0))

    def k2_bdma(q):
        st = Stream()
        if q == 27:
            k2_dma_setup(st, 6, False, k_t0, k_t1)
        cond = (q == 40)
        if cond:
            st('s_cmp_ge_u32 s%d, 4' % s_wave)
            st('s_cbranch_scc1 .Lk2_dma40')
            st.cond_begin()
        so = b_so + (q % 2)
        if q < 27:
            j0 = (q // 3) * 2
            base = PERM[j0] * 32 * 1152
            dlt = (PERM[j0 + 1] - PERM[j0] - 1) * 32 * 1152
            if dlt and q % 3 == 1:
                st('s_lshr_b32 s%d, s%d, 2' % (so, s_wave))
                st('s_mul_i32 s%d, s%d, 0x%x' % (so, so, dlt))
                st('s_add_u32 s%d, s%d, 0x%x' % (so, so, base))
                st('s_add_u32 s%d, s%d, s%d' % (so, so, b_b0))
            else:
                st('s_add_u32 s%d, s%d, 0x%x' % (so, b_b0, base + (dlt if q % 3 == 2 else 0)))
        else:
            st('s_add_u32 s%d, s%d, 0x%x' % (so, b_b0, ((q - 27) // 3) * 128 * 1152 + 192))
        st('s_add_u32 m0, s%d, 0x%x' % (a_m0b, ((q + 3) % 15) * 8192))
        st('buffer_load_dwordx4 v%d, s[%d:%d], s%d offen lds' % (v_dma[q % 3], S_W2, S_W2 + 3, so), tok=('e', q))
        if cond:
            st.cond_end()
            st.label('.Lk2_dma40')
        return st

    k2pro = Stream()
    e('s_load_dwordx2 s[%d:%d], s[0:1], 48' % (S_W2, S_W2 + 1))
    e('s_mov_b32 s%d, 0x%x' % (S_W2 + 2, W1_SZ))
    e('s_mov_b32 s%d, 0x20000' % (S_W2 + 3))
    e('s_lshr_b32 s%d, s%d, 1' % (b_t0, s_x))
    e('s_lshl_b32 s%d, s%d, 5' % (b_t0, b_t0))
    e('s_add_u32 s%d, s%d, s%d' % (b_t0, b_t0, s_i))
    e('s_mul_i32 s%d, s%d, 41472' % (b_p0, b_t0))
    e('s_mul_i32 s%d, s%d, %d' % (b_t0, s_wave, 41 * 128))
    e('s_add_u32 s%d, s%d, s%d' % (b_p0, b_p0, b_t0))
    e('s_waitcnt lgkmcnt(0)')

    def touch_w2(g):
        st = Stream()
        st('s_cmp_lg_u32 s%d, %d' % (s_wave, g))
        st('s_cbranch_scc1 .Ltw2_%d' % g)
        st.cond_begin()
        st('v_cmp_gt_u32 vcc, 41, v0')
        st('v_lshlrev_b32 v14, 7, v0')
        st('v_mov_b32 v15, %s' % OOB)
        st('v_cndmask_b32 v14, v15, v14, vcc')
        st('buffer_load_dword v15, v14, s[%d:%d], s%d offen' % (S_W2, S_W2 + 3, b_p0))
        st.cond_end()
        st.label('.Ltw2_%d' % g)
        return st
    k2pro('s_lshr_b32 s%d, s%d, 1' % (b_ks, s_x))
    k2pro('s_and_b32 s%d, s%d, 1' % (b_rb, s_x))
    k2pro('s_lshl_b32 s%d, s%d, 3' % (b_rb, b_rb))
    k2pro('s_and_b32 s%d, s%d, 7' % (b_t0, s_i))
    k2pro('s_add_u32 s%d, s%d, s%d' % (b_rb, b_rb, b_t0))
    k2pro('s_lshr_b32 s%d, s%d, 3' % (b_cb, s_i))
    k2pro('s_mul_i32 s%d, s%d, %d' % (b_b0, b_ks, 1152 * 1152))
    k2pro('s_mul_i32 s%d, s%d, 288' % (b_t0, b_cb))
    k2pro('s_add_u32 s%d, s%d, s%d' % (b_b0, b_b0, b_t0))
    k2pro('v_mov_b32 v%d, v%d' % (k_t0, k_t0))
    k2_dma_setup(k2pro, 12, True, k_t0, k_t1)
    NE = ENV('NE', 11)

    e('s_barrier', needs=[('d', q) for q in range(slots_for(GRP + D - 1))])
    stamp(e, 'gemm1 start')
    for p in range(D):
        fread(e, p, 0)
        fread(e, p, 1)
    epi_items = []
    for m in range(3):
        epi_items += epi(vC1, [2 * m, 2 * m + 1], vA(0, 0)).items
    ne = len(epi_items)
    b2l, b2u = bias2()
    LQ1 = ENV('K1LQ', 6)
    for g in range(14):
        p0, p1 = g * GRP, min((g + 1) * GRP, 162)
        fill = Stream()
        stamp(e, 'G1 g%d' % g)
        if g == 9:
            stamp(e, 'gemm1 pass2')
        if g > 0:
            extra = [('xs', 0), ('wm', 0)] if g == 4 else []
            e('s_barrier', needs=[('d', q) for q in range(slots_for(min(p1 + D - 1, 161)))] + extra)
        if g == 1:
            fill('s_cmp_lg_u32 s%d, 0' % s_wave)
            fill('s_cbranch_scc1 .Lp0_nowm')
            fill.cond_begin()
            fill('v_mov_b32 v14, 0x%x' % WMX)
            fill('ds_read_b32 v15, v14')
            fill('s_lshl_b32 s%d, s2, 2' % p_t0)
            fill('s_add_u32 s%d, s%d, 0x%x' % (p_t0, p_t0, WM_OFF))
            fill('v_mov_b32 v14, 0')
            fill('buffer_store_dword v15, v14, %s, s%d offen sc1' % (WS, p_t0), tok=('wm', 0))
            fill.cond_end()
            fill.label('.Lp0_nowm')
        if g == 4:
            flag_store(fill, 3, p_n2, 56 + 4)
        want = slots_for(min(p1 + D - 1 + LQ1 * 8, 161))
        if g < 2:
            want = min(want, 15)
        k1_issue(fill, 2 * g + 2 + LA1, want)
        if g == 5:
            fill.extend(b2l)
        if g == 8:
            fill.extend(b2u)
        TW0 = ENV('TW0', 6)
        if TW0 <= g < TW0 + 4:
            fill.extend(touch_w2(2 * (g - TW0)))
            fill.extend(touch_w2(2 * (g - TW0) + 1))
        main = Stream()
        for p in range(p0, p1):
            main(mf1(p, 0))
            if p + D < 162:
                fread(main, p + D, 0)
            main(mf1(p, 1))
            if p + D < 162:
                fread(main, p + D, 1)
        if g == 9:
            assert nq[0] == 21
            fill.extend(k2pro)
            h1 = Stream(); h1.items = main.items[:len(main.items) // 2 + 2]
            h2 = Stream(); h2.items = main.items[len(main.items) // 2 + 2:]
            e.extend(merge_keep(h1, fill))
            f2 = Stream(); f2.items = epi_items[:ne * 12 // 100]
            e.extend(merge_keep(h2, f2))
            continue
        if g >= 10:
            lo, hi = {10: (12, 37), 11: (37, 62), 12: (62, 87), 13: (87, 100)}[g]
            f2 = Stream(); f2.items = epi_items[ne * lo // 100: ne * hi // 100]
            pre = Stream()
            for q in range(NE):
                if 10 + q * 4 // NE == g:
                    pre.extend(k2_bdma(q))
            fill.extend(merge_keep(f2, pre))
        e.extend(merge_keep(main, fill))
    stamp(e, 'gemm1 mfma done')
    e.extend(epi(lambda rt, t: vC2(rt, t - 6), [6, 7], vA(0, 0)))
    e.extend(epi(lambda rt, t: vC2(rt, t - 6), [8], vA(0, 2)))
    a_fi = 25
    e('s_and_b32 s%d, s%d, 3' % (a_t0, s_i))
    e('s_lshl_b32 s%d, s%d, 3' % (a_t0, a_t0))
    e('s_lshr_b32 s%d, s%d, 2' % (a_t1, s_i))
    e('s_add_u32 s%d, s%d, s%d' % (a_t0, a_t0, a_t1))
    e('s_lshl_b32 s%d, s%d, 5' % (a_t1, s_x))
    e('s_add_u32 s%d, s%d, s%d' % (a_fi, a_t0, a_t1))
    e('s_barrier', needs=[('hs', 0), ('hs', 1)])
    flag_store(e, 1, a_fi, 16)
    stamp(e, 'h published')

    EX = 122880
    FX, FW = 147456, 147456 + 8192
    v_exw, v_exr = 10, 11
    v_ya, v_wa, v_sc, v_xl, v_yl = 12, 13, 14, 15, 9
    v_l8k = 12
    cC1 = lambda rt, t: 64 + (t * 2 + rt) * 4
    cC2 = lambda rt, t: 40 + (t * 2 + rt) * 4
    e('s_lshl_b32 s%d, s%d, 2' % (b_col + 1, s_x))
    e('s_add_u32 s%d, s%d, s%d' % (b_col + 1, b_col + 1, s_i))
    e('s_cmp_eq_u32 s2, 32')
    e('s_cselect_b32 s%d, 32, s%d' % (b_col + 1, b_col + 1))
    e('s_add_u32 s%d, s%d, 256' % (b_col + 1, b_col + 1))
    e('s_mov_b32 s%d, s%d' % (b_col, p_n2))
    e('s_and_b32 s%d, s%d, 3' % (b_rg, s_wave))
    e('s_lshr_b32 s%d, s%d, 2' % (b_kh, s_wave))
    e('s_lshl_b32 s%d, s%d, 3' % (b_t0, b_rb))
    e('s_lshl_b32 s%d, s%d, 1' % (b_t1, b_rg))
    e('s_add_u32 s%d, s%d, s%d' % (b_t0, b_t0, b_t1))
    e('s_mul_i32 s%d, s%d, 144' % (b_a0, b_t0))
    e('s_mul_i32 s%d, s%d, 36' % (b_t1, b_ks))
    e('s_add_u32 s%d, s%d, s%d' % (b_a0, b_a0, b_t1))
    e('s_mul_i32 s%d, s%d, 18' % (b_t1, b_kh))
    e('s_add_u32 s%d, s%d, s%d' % (b_a0, b_a0, b_t1))
    e('s_lshl_b32 s%d, s%d, 10' % (b_a0, b_a0))
    e('s_add_u32 s%d, s%d, %d' % (b_a1, b_a0, 144 * 1024))
    e('s_add_u32 s%d, s%d, s%d' % (b_t0, b_t0, b_kh))
    e('s_lshl_b32 s%d, s%d, 7' % (b_t1, b_ks))
    e('s_add_u32 s%d, s%d, s%d' % (b_t0, b_t0, b_t1))
    e('s_mul_i32 s%d, s%d, 36' % (b_p0, b_t0))
    e('s_mul_i32 s%d, s%d, 9' % (b_t1, b_cb))
    e('s_add_u32 s%d, s%d, s%d' % (b_p0, b_p0, b_t1))
    e('s_lshl_b32 s%d, s%d, 10' % (b_p0, b_p0))
    e('s_add_u32 s%d, s%d, 0x%x' % (b_p0, b_p0, P_OFF))
    TB2 = 96
    for q in range(4):
        e('s_movk_i32 s%d, 0x%x' % (b_t1, T2_OFF + q * 1024))
        e('buffer_load_dwordx4 %s, v%d, %s, s%d offen' % (vr(TB2 + 4 * q, 4), v_l16, TAB, b_t1))
    for q in range(NE, 15):
        e.extend(k2_bdma(q))
    b_fi = 24
    e('s_lshl_b32 s%d, s%d, 5' % (b_t0, s_x))
    e('s_bfe_u32 s%d, s%d, 0x20001' % (b_t1, s_i))
    e('s_lshl_b32 s%d, s%d, 3' % (b_t1, b_t1))
    e('s_add_u32 s%d, s%d, s%d' % (b_fi, b_t0, b_t1))
    wait_flags(e, [(3, None, 256), (1, b_fi, 8)], 16)
    stamp(e, 'h flags ok')
    e('v_lshrrev_b32 v%d, 1, v0' % k_t0)
    e('v_lshlrev_b32 v%d, 7, v%d' % (k_t0, k_t0))
    e('v_and_b32 v%d, 1, v0' % k_t1)
    e('v_lshl_add_u32 v%d, v%d, 4, v%d' % (v_ya, k_t1, k_t0))

    def fft_dma(st, scol, tag, fx, fw):
        st('s_lshr_b32 s%d, s%d, 2' % (b_so + 2, scol))
        st('s_lshl_b32 s%d, s%d, 15' % (b_so + 2, b_so + 2))
        st('s_and_b32 s%d, s%d, 3' % (b_so + 3, scol))
        st('s_lshl_b32 s%d, s%d, 5' % (b_so + 3, b_so + 3))
        st('s_add_u32 s%d, s%d, s%d' % (b_so + 2, b_so + 2, b_so + 3))
        st('s_lshl_b32 s%d, s%d, 12' % (b_so + 3, s_wave))
        st('s_add_u32 s%d, s%d, s%d' % (b_so + 2, b_so + 2, b_so + 3))
        st('s_add_u32 s%d, s%d, 0x%x' % (b_so + 3, b_so + 2, XF_OFF))
        st('s_add_u32 m0, s%d, 0x%x' % (a_m0b, fx))
        st('buffer_load_dwordx4 v%d, %s, s%d offen sc1 lds' % (v_ya, WS, b_so + 3), tok=(tag, 0))
        st('s_add_u32 s%d, s%d, 0x%x' % (b_so + 3, b_so + 2, WT_OFF))
        st('s_add_u32 m0, s%d, 0x%x' % (a_m0b, fw))
        st('buffer_load_dwordx4 v%d, %s, s%d offen sc1 lds' % (v_ya, WS, b_so + 3), tok=(tag, 1))

    fft_dma(e, b_col, 'f1', FX, FW)
    e('s_cmp_gt_u32 s2, 32')
    e('s_cbranch_scc1 .Lk2_nod2')
    e.cond_begin()
    fft_dma(e, b_col + 1, 'f2', EX, EX + 8192)
    e.cond_end()
    e.label('.Lk2_nod2')
    e('s_mov_b32 s%d, 0x%x' % (b_t1, WM_OFF))
    e('buffer_load_dwordx4 v[92:95], v%d, %s, s%d offen sc1' % (v_l16, WS, b_t1))
    e('v_lshrrev_b32 v%d, 4, v0' % k_t0)
    e('v_and_b32 v%d, 15, v0' % k_t1)
    e('v_lshl_add_u32 v%d, v%d, 6, v%d' % (v_xl, k_t0, k_t1))
    e('s_lshl_b32 s%d, s%d, 2' % (b_t0, s_wave))
    e('v_lshlrev_b32 v%d, 5, v%d' % (v_xl, v_xl))
    e('v_add_u32 v%d, s%d, v%d' % (v_xl, b_t0, v_xl))
    e('v_add_u32 v%d, 0x%x, v%d' % (v_xl, FX, v_xl))
    e('v_lshrrev_b32 v%d, 5, v0' % v_wa)
    e('v_lshlrev_b32 v%d, 4, v%d' % (v_wa, v_wa))
    e('v_add_u32 v%d, v%d, v%d' % (v_wa, v_wa, k_t1))
    e('v_lshlrev_b32 v%d, 3, v%d' % (v_wa, v_wa))
    e('v_add_u32 v%d, s%d, v%d' % (v_wa, s_wave, v_wa))
    e('v_lshlrev_b32 v%d, 5, v%d' % (v_wa, v_wa))
    e('v_and_b32 v%d, 1, v%d' % (k_t0, k_t0))
    e('v_lshl_add_u32 v%d, v%d, 4, v%d' % (v_wa, k_t0, v_wa))
    e('v_add_u32 v%d, 0x%x, v%d' % (v_wa, FW, v_wa))
    e('v_add_u32 v%d, s%d, v%d' % (v_yl, a_m0b, v_l16))
    e('v_lshrrev_b32 v%d, 7, v%d' % (v_ya, v_yl))
    e('v_mul_u32_u24 v%d, %d, v%d' % (v_ya, YQ, v_ya))
    e('v_and_b32 v%d, 0x70, v%d' % (k_t0, v_l16))
    e('v_add_u32 v%d, v%d, v%d' % (v_ya, v_ya, k_t0))
    e('v_add_u32 v%d, 0x%x, v%d' % (v_yl, FX, v_yl))

    def fft_col(st):
        F_re, F_im, twr, twi = TB2, TB2 + 4, TB2 + 8, TB2 + 12
        A, Dre, Dim, Tre, Tim, Wp, Wr, Wi = 40, 44, 48, 52, 56, 60, 64, 68
        for r in range(4):
            st('ds_read_b32 v%d, v%d offset:%d' % (A + r, v_xl, r * 512))
        st('ds_read_b128 %s, v%d' % (vr(Wp, 4), v_wa))
        for half in range(2):
            st('v_mfma_f32_16x16x32_f16 %s, %s, %s, 0' % (vr(Dre, 4), vr(A, 4), vr(F_re, 4)))
            st('v_mfma_f32_16x16x32_f16 %s, %s, %s, 0' % (vr(Dim, 4), vr(A, 4), vr(F_im, 4)))
            if half == 0:
                for r in range(4):
                    st('v_lshlrev_b32 v%d, 16, v%d' % (Wr + r, Wp + r))
                    st('v_and_b32 v%d, 0xffff0000, v%d' % (Wi + r, Wp + r))
            cmul_regs(st, Tre, Tim, Dre, Dim, twr, twi)
            for r in range(4):
                st('v_cvt_pk_f16_f32 v%d, v%d, v%d' % (A + r, Tre + r, Tim + r))
            st('v_mfma_f32_16x16x32_f16 %s, %s, %s, 0' % (vr(Dre, 4), vr(F_re, 4), vr(A, 4)))
            st('v_mfma_f32_16x16x32_f16 %s, %s, %s, 0' % (vr(Dim, 4), vr(F_im, 4), vr(A, 4)))
            if half == 0:
                for r in range(4):
                    st('v_mul_f32 v%d, v%d, v%d' % (Wr + r, v_sc, Wr + r))
                    st('v_mul_f32 v%d, v%d, v%d' % (Wi + r, v_sc, Wi + r))
                cmul_regs(st, Tre, Tim, Dre, Dim, Wr, Wi)
                for r in range(4):
                    st('v_cvt_pk_f16_f32 v%d, v%d, v%d' % (A + r, Tim + r, Tre + r))
            else:
                for r in range(4):
                    st('v_cvt_pk_f16_f32 v%d, v%d, v%d' % (A + r, Dim + r, Dre + r))
        for r in range(4):
            st('ds_write_b32 v%d, v%d offset:%d' % (v_xl, A + r, r * 512))

    def fft_out(st, scol, reg):
        st('ds_read_b128 %s, v%d' % (vr(reg, 4), v_yl))
        st('s_lshl_b32 s%d, s%d, 7' % (b_t0, scol))
        st('s_add_u32 s%d, s%d, 0x%x' % (b_t0, b_t0, YF_OFF))
        st('buffer_store_dwordx4 %s, v%d, %s, s%d offen sc1' % (vr(reg, 4), v_ya, WS, b_t0), tok=('yfs', 0))

    nq2 = [15]
    na[0] = 0

    def k2_issue(st, ka, unit_lim):
        while True:
            did = False
            if na[0] < min(ka, 18):
                j = na[0]
                for rt in range(2):
                    st('s_add_u32 s%d, s%d, %d' % (b_so + 2, (b_a0, b_a1)[rt], (PERM[j] & ~3) * 1024))
                    if PERM[j] % 9 == 4:
                        st('buffer_load_dwordx2 %s, v%d, %s, s%d offen offset:%d sc1' % (vr(vA(rt, j), 2), v_l8k, WS, b_so + 2, (PERM[j] & 3) * 1024))
                        st('buffer_load_dwordx2 %s, v%d, %s, s%d offen offset:%d sc1' % (vr(vA(rt, j) + 2, 2), v_l8k, WS, b_so + 2, (PERM[j] & 3) * 1024 + 512))
                    else:
                        st('buffer_load_dwordx4 %s, v%d, %s, s%d offen offset:%d sc1' % (vr(vA(rt, j), 4), v_l16, WS, b_so + 2, (PERM[j] & 3) * 1024))
                na[0] += 1
                did = True
            for _ in range(2 if nq2[0] % 3 == 0 else 1):
                if nq2[0] < 41 and (nq2[0] + 1) * 8 <= unit_lim:
                    st.extend(k2_bdma(nq2[0]))
                    nq2[0] += 1
                    did = True
            if not did:
                break

    LA2 = ENV('K2LA', 8)
    ld = Stream()
    k2_issue(ld, ENV('K2LA0', 4), 0)
    e.extend(ld)
    wscale(e, None, 92, v_sc, True)
    e('v_mov_b32 v%d, v92' % v_sc)
    e('s_barrier', needs=[('f1', 0), ('f1', 1), ('f2', 0), ('f2', 1)] + [('hs', i) for i in range(5)])
    flag_store(e, 5, a_fi, 16)
    f1 = Stream()
    fft_col(f1)
    ld = Stream()
    k2_issue(ld, 8, 0)
    e.extend(merge_keep(f1, ld))
    e('s_waitcnt lgkmcnt(0)')
    e('s_barrier')
    fft_out(e, b_col, 72)
    e('s_cmp_gt_u32 s2, 32')
    e('s_cbranch_scc1 .Lk2_noc2')
    e.cond_begin()
    for r_ in (v_xl, v_wa, v_yl):
        e('v_subrev_u32 v%d, %d, v%d' % (r_, FX - EX, r_))
    fft_col(e)
    e('s_waitcnt lgkmcnt(0)')
    e('s_barrier')
    fft_out(e, b_col + 1, 76)
    e.cond_end()
    e.label('.Lk2_noc2')
    e('v_lshlrev_b32 v%d, 3, v0' % v_l8k)
    e('v_lshrrev_b32 v%d, 2, v0' % k_t0)
    e('v_mul_u32_u24 v%d, 192, v%d' % (v_be, k_t0))
    e('v_and_b32 v%d, 3, v0' % k_t1)
    e('v_lshl_add_u32 v%d, v%d, 3, v%d' % (v_be, k_t1, v_be))
    e('s_mul_i32 s%d, s%d, 6144' % (b_t0, b_kh))
    e('v_add_u32 v%d, s%d, v%d' % (v_be, b_t0, v_be))
    e('v_mul_u32_u24 v%d, 96, v%d' % (v_b2, k_t0))
    e('v_lshl_add_u32 v%d, v%d, 3, v%d' % (v_b2, k_t1, v_b2))
    e('s_mul_i32 s%d, s%d, 3072' % (b_t0, b_kh))
    e('v_add_u32 v%d, s%d, v%d' % (v_b2, b_t0, v_b2))
    e('v_bfe_u32 v%d, v0, 4, 1' % k_t1)
    e('v_lshlrev_b32 v%d, 5, v%d' % (k_t1, k_t1))
    e('v_sub_u32 v%d, v%d, v%d' % (v_bo, v_be, k_t1))
    e('v_add_u32 v%d, 32, v%d' % (v_bo, v_bo))
    e('v_add_u32 v%d, v%d, v%d' % (v_be, v_be, k_t1))
    e('s_mul_i32 s%d, s%d, 3072' % (b_t0, s_wave))
    e('s_add_u32 s%d, s%d, 0x%x' % (b_t0, b_t0, EX))
    e('v_add_u32 v%d, s%d, v%d' % (v_exw, b_t0, v_l16))
    e('s_xor_b32 s%d, s%d, 4' % (b_t1, s_wave))
    e('s_mul_i32 s%d, s%d, 3072' % (b_t0, b_t1))
    e('s_add_u32 s%d, s%d, 0x%x' % (b_t0, b_t0, EX))
    e('v_add_u32 v%d, s%d, v%d' % (v_exr, b_t0, v_l16))
    e('s_cmp_eq_u32 s%d, 1' % b_kh)
    e('s_cselect_b64 s[%d:%d], -1, 0' % (b_msk, b_msk + 1))
    wbase.update({v_be: 0, v_bo: 0, v_b2: 0})
    fread = make_fread(lambda k: ((k + 2) % 10) * 12288, lambda k: ((96 + 24 + 6 * k) % 120) * 1024)

    def units_needed(p):
        if p < 108:
            return (p // 6 + 1) * 12
        return 216 + ((p - 108) // 3 + 1) * 6

    def etoks(units):
        return [('e', q) for q in range(min(-(-units // 8), 41))]

    def mf2(p, rt):
        if p < 108:
            k, t = divmod(p, 6)
            c = cC1(rt, t)
        else:
            k, t = divmod(p - 108, 3)
            c = cC2(rt, t)
            return 'v_mfma_f32_16x16x32_bf16 %s, %s, %s, %s' % (vr(c, 4), vr(vB(p % 6), 4), vr(vA(rt, INV[k]), 4), vr(c, 4) if k else '0')
        return 'v_mfma_f32_16x16x32_bf16 %s, %s, %s, %s' % (vr(c, 4), vr(vB(p % 6), 4), vr(vA(rt, k), 4), vr(c, 4) if k else '0')

    MSK = 's[%d:%d]' % (b_msk, b_msk + 1)

    def ex_send(accf, tiles, T):
        st = Stream()
        for i, t in enumerate(tiles):
            for r in range(4):
                st('v_cndmask_b32 v%d, v%d, v%d, %s' % (T + 4 * i + r, accf(1, t) + r, accf(0, t) + r, MSK))
            for r in range(4):
                st('v_cndmask_b32 v%d, v%d, v%d, %s' % (accf(0, t) + r, accf(0, t) + r, accf(1, t) + r, MSK))
            st('ds_write_b128 v%d, %s offset:%d' % (v_exw, vr(T + 4 * i, 4), i * 1024), tok=('exw', t))
        return st

    def ex_recv(accf, tiles, T, tbase):
        st = Stream()
        for i, t in enumerate(tiles):
            st('ds_read_b128 %s, v%d offset:%d' % (vr(T + 4 * i, 4), v_exr, i * 1024), tok=('exr', t + tbase))
        for i, t in enumerate(tiles):
            for r in range(4):
                st('v_add_f32 v%d, v%d, v%d' % (accf(0, t) + r, accf(0, t) + r, T + 4 * i + r))
            gt = tbase + t
            st('s_add_u32 s%d, s%d, %d' % (b_so + 3, b_p0, (gt // 4) * 4096))
            st('buffer_store_dwordx4 %s, v%d, %s, s%d offen offset:%d' % (vr(accf(0, t), 4), v_l16, WS, b_so + 3, (gt % 4) * 1024) + ' sc1', tok=('ps', 0))
        return st

    e('s_barrier', needs=etoks(units_needed(GRP + D - 1)))
    stamp(e, 'gemm2 start')
    for p in range(D):
        fread(e, p, 0)
        fread(e, p, 1)
    T1, T2 = vA(0, 0), vA(0, 2)
    YR = vA(0, 4)
    fills = {10: ex_send(cC1, [0, 1, 2], T1), 11: ex_recv(cC1, [0, 1, 2], T2, 0), 12: ex_send(cC1, [3, 4, 5], T1), 13: ex_recv(cC1, [3, 4, 5], T2, 0)}
    for g in range(14):
        p0, p1 = g * GRP, min((g + 1) * GRP, 162)
        fill = Stream()
        stamp(e, 'G2 g%d' % g)
        free = 0
        if g > 0:
            extra = []
            if g in (11, 13):
                extra = [('exw', t) for t in range(6)]
            if g == 12:
                extra = [('exr', t) for t in range(6)]
            if g == 3:
                extra = [('yfs', 0)]
            GW = ENV('GW', 2)
            if g == GW:
                e('s_nop 0', needs=etoks(units_needed(min(p1 + D - 1, 161))) + extra)
                wait_flags(e, [(5, b_fi, 8)], 40)
            elif g == 10:
                e('s_nop 0', needs=etoks(units_needed(min(p1 + D - 1, 161))) + extra)
                wait_flags(e, [(4, None, 256)], T1)
            else:
                e('s_barrier', needs=etoks(units_needed(min(p1 + D - 1, 161))) + extra)
            free = (p0 // 6) * 12 if p0 <= 108 else 216 + ((p0 - 108) // 3) * 6
        if g == 3:
            flag_store(fill, 4, p_n2, 60)
        k2_issue(fill, min(2 * g + 2 + LA2, 8) if g < ENV('GW', 2) else 2 * g + 2 + LA2, free + 120)
        if g == 12:
            fill('s_lshl_b32 s%d, s%d, 6' % (b_t0, s_wave))
            fill('v_add_u32 v13, s%d, v0' % b_t0)
            fill('v_cmp_gt_u32 vcc, 289, v13')
            fill('v_lshlrev_b32 v13, 7, v13')
            fill('v_mov_b32 v14, %s' % OOB)
            fill('v_cndmask_b32 v13, v14, v13, vcc')
            fill('s_lshr_b32 s%d, s%d, 2' % (b_t0, p_n2))
            fill('s_mul_i32 s%d, s%d, %d' % (b_t0, b_t0, YQ))
            fill('s_and_b32 s%d, s%d, 3' % (b_t1, p_n2))
            fill('s_lshl_b32 s%d, s%d, 5' % (b_t1, b_t1))
            fill('s_add_u32 s%d, s%d, s%d' % (b_t0, b_t0, b_t1))
            fill('s_add_u32 s%d, s%d, 0x%x' % (b_t0, b_t0, YF_OFF))
            fill('buffer_load_dwordx4 %s, v13, %s, s%d offen sc1' % (vr(YR, 4), WS, b_t0))
            fill('buffer_load_dwordx4 %s, v13, %s, s%d offen offset:16 sc1' % (vr(YR + 4, 4), WS, b_t0))
        if g in fills:
            fill.extend(fills[g])
        main = Stream()
        for p in range(p0, p1):
            main(mf2(p, 0))
            if p + D < 162:
                fread(main, p + D, 0)
            main(mf2(p, 1))
            if p + D < 162:
                fread(main, p + D, 1)
        e.extend(merge_keep(main, fill))
    e('s_barrier', needs=[('exr', t) for t in range(6)])
    e.extend(ex_send(cC2, [0, 1, 2], T1))
    e('s_waitcnt lgkmcnt(0)')
    e('s_barrier')
    e.extend(ex_recv(cC2, [0, 1, 2], T2, 6))
    e('s_lshl_b32 s%d, s%d, 4' % (b_t0, b_rb))
    e('s_lshl_b32 s%d, s%d, 2' % (b_t1, b_ks))
    e('s_add_u32 s%d, s%d, s%d' % (b_t0, b_t0, b_t1))
    e('s_add_u32 s%d, s%d, s%d' % (p_xo, b_t0, b_cb))
    e('s_barrier')

    YLs = 0
    OL = 9600
    OS = OL + 8 * 3072
    TL3 = 53760
    S_X3, S_B2, S_O = 16, 20, 24
    c_t0, c_t1, c_row, c_pb, c_po, c_l2e = 28, 29, 30, 31, 36, 37
    c_ex = 38
    c_tw = 48
    c_tid, c_v0, c_v1, c_l8, c_tl, c_pa, c_pa2, c_l82 = 1, 3, 4, 5, 168, 169, 170, 7
    TB3 = 8
    e('s_load_dwordx2 s[40:41], s[0:1], 0')
    e('s_load_dwordx4 s[44:47], s[0:1], 56')
    e('s_lshl_b32 s%d, s%d, 6' % (c_t0, s_wave))
    e('v_add_u32 v%d, s%d, v0' % (c_tid, c_t0))
    e('v_lshlrev_b32 v%d, 3, v0' % c_l8)
    e('v_add_u32 v%d, %d, v%d' % (c_tl, TL3, v_l16))
    e('s_mov_b32 s%d, %s' % (c_l2e, fbits(-np.log2(np.e))))
    e('s_lshl_b32 s%d, s%d, 6' % (c_t0, p_n2))
    e('s_add_u32 s%d, s%d, 0x%x' % (c_t0, c_t0, TW8_OFF))
    e('s_add_u32 s%d, s%d, s%d' % (c_ex, S_TAB, c_t0))
    e('s_addc_u32 s%d, s%d, 0' % (c_ex + 1, S_TAB + 1))
    e('s_load_dwordx16 s[%d:%d], s[%d:%d], 0' % (c_tw, c_tw + 15, c_ex, c_ex + 1))
    e('s_add_u32 m0, s%d, 0x%x' % (a_m0b, TL3))
    e('s_add_u32 s%d, s%d, 0x%x' % (c_t1, a_m0b, T3_OFF))
    e('buffer_load_dwordx4 v%d, %s, s%d offen lds' % (v_l16, TAB, c_t1), tok=('t3', 0))
    e('s_add_u32 m0, s%d, 0x%x' % (a_m0b, TL3 + 8192))
    e('s_add_u32 s%d, s%d, 0x%x' % (c_t1, a_m0b, T3_OFF + 8192))
    e('buffer_load_dwordx4 v%d, %s, s%d offen lds' % (v_l16, TAB, c_t1), tok=('t3', 1))
    e('s_mov_b32 s%d, 0x%x' % (c_t1, WM_OFF))
    e('buffer_load_dwordx4 v[104:107], v%d, %s, s%d offen sc1' % (v_l16, WS, c_t1))
    make_srd(e, S_X3, 40, X_SZ)
    make_srd(e, S_B2, 44, 1152)
    make_srd(e, S_O, 46, X_SZ)
    e('s_lshl_b32 s%d, s%d, 8' % (c_row, s_wave))
    e('s_add_u32 s%d, s%d, s%d' % (c_row, c_row, p_n2))
    e('s_mul_i32 s%d, s%d, 1152' % (c_row, c_row))
    e('v_cmp_gt_u32 vcc, 16, v0')
    e('v_mov_b32 v%d, %s' % (c_v1, OOB))
    e('v_cndmask_b32 v%d, v%d, v%d, vcc' % (c_l82, c_v1, c_l8))
    XR, BR2, PR = 156, 162, 108
    for j in range(3):
        e('buffer_load_dwordx2 %s, v%d, s[%d:%d], s%d offen offset:%d' % (vr(XR + 2 * j, 2), c_l8 if j < 2 else c_l82, S_X3, S_X3 + 3, c_row, j * 512))
        e('buffer_load_dwordx2 %s, v%d, s[%d:%d], 0 offen offset:%d' % (vr(BR2 + 2 * j, 2), c_l8 if j < 2 else c_l82, S_B2, S_B2 + 3, j * 512))
    e('v_lshrrev_b32 v%d, 3, v%d' % (c_pa, c_tid))
    e('v_lshlrev_b32 v%d, 8, v%d' % (c_pa, c_pa))
    e('v_and_b32 v%d, 7, v%d' % (c_v0, c_tid))
    e('v_lshl_add_u32 v%d, v%d, 4, v%d' % (c_pa, c_v0, c_pa))
    e('v_cmp_gt_u32 vcc, 128, v%d' % c_tid)
    e('v_cndmask_b32 v%d, v%d, v%d, vcc' % (c_pa2, c_v1, c_pa))
    e('s_lshr_b32 s%d, s%d, 1' % (c_pb, p_n2))
    e('s_mul_i32 s%d, s%d, 36864' % (c_pb, c_pb))
    e('s_and_b32 s%d, s%d, 1' % (c_t1, p_n2))
    e('s_lshl_b32 s%d, s%d, 7' % (c_t1, c_t1))
    e('s_add_u32 s%d, s%d, s%d' % (c_pb, c_pb, c_t1))
    e('s_add_u32 s%d, s%d, 0x%x' % (c_pb, c_pb, P_OFF))
    e('s_cmp_ge_u32 s%d, 5' % s_wave)
    e('s_cbranch_scc1 .Lk3_nor8')
    e.cond_begin()
    for k1 in range(8):
        c, s = c_tw + 2 * k1, c_tw + 2 * k1 + 1
        e('v_cvt_f32_f16 v%d, v%d' % (c_v0, YR + k1))
        e('v_cvt_f32_f16_sdwa v%d, v%d dst_sel:DWORD dst_unused:UNUSED_PAD src0_sel:WORD_1' % (c_v1, YR + k1))
        d = 72 + 2 * k1
        e('v_mul_f32 v%d, s%d, v%d' % (d, c, c_v0))
        e('v_mul_f32 v%d, s%d, v%d' % (d + 1, c, c_v1))
        e('v_mul_f32 v%d, s%d, v%d' % (c_v1, s, c_v1))
        e('v_mul_f32 v%d, s%d, v%d' % (c_v0, s, c_v0))
        e('v_add_f32 v%d, v%d, v%d' % (d, d, c_v1))
        e('v_sub_f32 v%d, v%d, v%d' % (d + 1, d + 1, c_v0))
    X = radix8(e, 72, 88, None, inverse=True)
    e('v_cmp_ne_u32 vcc, 0, v%d' % c_tid)
    e('v_mov_b32 v%d, 0x120' % c_v0)
    e('v_cmp_ne_u32 s[%d:%d], v%d, v%d' % (100, 101, c_v0, c_tid))
    e('s_and_b64 vcc, vcc, s[100:101]')
    e('v_lshlrev_b32 v%d, 2, v%d' % (c_v0, c_tid))
    e('v_min_u32 v%d, %d, v%d' % (c_v0, 295 * 4, c_v0))
    for n in range(8):
        e('v_cndmask_b32 v%d, 0, v%d, vcc' % (X[n] + 1, X[n] + 1))
        e('v_cvt_pk_f16_f32 v%d, v%d, v%d' % (64 + n, X[n], X[n] + 1))
        e('ds_write_b32 v%d, v%d offset:%d' % (c_v0, 64 + n, YLs + n * TB.YL_ROW))
    e.cond_end()
    e.label('.Lk3_nor8')
    e('s_waitcnt lgkmcnt(0)')
    e('s_barrier', needs=[('t3', 0), ('t3', 1), ('ps', 0)])
    flag_store(e, 2, p_xo, 120)
    stamp(e, 'P published')
    for q in (12, 13, 0, 1, 2, 3, 4, 5, 6, 7, 8, 9, 10, 11):
        e('ds_read_b128 %s, v%d offset:%d' % (vr(TB3 + 4 * q, 4), c_tl, q * 1024))
    e('s_mul_i32 s%d, s%d, %d' % (c_t0, s_wave, TB.YL_ROW))
    for i in range(8):
        e('v_add_u32 v%d, s%d, v%d' % (TB3 + 48 + i, c_t0, TB3 + 48 + i))
    for i in range(8):
        e('ds_read_b32 v%d, v%d offset:%d' % (64 + i, TB3 + 48 + i, YLs))
    wscale(e, None, 104, c_v0, False)
    for ct in range(2):
        e('v_mfma_f32_16x16x32_f16 %s, %s, %s, 0' % (vr(72 + ct * 8, 4), vr(64 + 4 * ct, 4), vr(TB3, 4)))
        e('v_mfma_f32_16x16x32_f16 %s, %s, %s, 0' % (vr(76 + ct * 8, 4), vr(64 + 4 * ct, 4), vr(TB3 + 4, 4)))
    for ct in range(2):
        cmul_regs(e, 88, 92, 72 + ct * 8, 76 + ct * 8, TB3 + 8 + ct * 8, TB3 + 12 + ct * 8)
        for r in range(4):
            e('v_cvt_pk_f16_f32 v%d, v%d, v%d' % (64 + 4 * ct + r, 88 + r, 92 + r))
    for ta in range(3):
        e('v_mfma_f32_16x16x32_f16 %s, v[64:67], %s, 0' % (vr(72 + 4 * ta, 4), vr(TB3 + 24 + ta * 8, 4)))
    for ta in range(3):
        e('v_mfma_f32_16x16x32_f16 %s, v[68:71], %s, %s' % (vr(72 + 4 * ta, 4), vr(TB3 + 28 + ta * 8, 4), vr(72 + 4 * ta, 4)))
    e('s_lshr_b32 s%d, s%d, 4' % (c_t0, p_n2))
    e('s_lshl_b32 s%d, s%d, 4' % (c_t0, c_t0))
    wait_flags(e, [(2, c_t0, 16)], 120)
    stamp(e, 'P flags ok')
    for ks in range(4):
        for j in range(3):
            e('s_add_u32 s%d, s%d, 0x%x' % (c_po, c_pb, ks * 128 * 36864 + j * 16384))
            e('buffer_load_dwordx4 %s, v%d, %s, s%d offen sc1' % (vr(PR + (ks * 3 + j) * 4, 4), c_pa if j < 2 else c_pa2, WS, c_po))
    e('v_and_b32 v%d, 15, v0' % c_v0)
    e('v_lshrrev_b32 v%d, 4, v0' % c_v1)
    e('v_lshl_add_u32 v%d, v%d, 2, v%d' % (c_v0, c_v0, c_v1))
    e('v_lshlrev_b32 v%d, 4, v%d' % (c_v0, c_v0))
    e('s_mul_i32 s%d, s%d, 3072' % (c_t0, s_wave))
    e('s_add_u32 s%d, s%d, %d' % (c_t0, c_t0, OL))
    e('v_add_u32 v%d, s%d, v%d' % (c_v0, c_t0, c_v0))
    e('v_add_u32 v%d, s%d, v%d' % (c_v1, c_t0, v_l16))
    wr = []
    for ta in range(3):
        wr.append(e('ds_write_b128 v%d, %s offset:%d' % (c_v0, vr(72 + 4 * ta, 4), ta * 1024)))
    for ta in range(3):
        e('ds_read_b128 %s, v%d offset:%d' % (vr(84 + 4 * ta, 4), c_v1, ta * 1024), needs=wr)
    U = 8
    O = [PR + i for i in range(12)]
    Bv = [U + i for i in range(12)]
    Xv = [U + 12 + i for i in range(12)]
    Tv = [U + 24 + i for i in range(12)]
    Sv = [84 + i for i in range(12)]

    def round_pairs(regs):
        for i in range(0, len(regs), 2):
            e('v_cvt_pk_bf16_f32 v%d, v%d, v%d' % (regs[i + 1], regs[i], regs[i + 1]))
        for i in range(0, len(regs), 2):
            e('v_lshlrev_b32 v%d, 16, v%d' % (regs[i], regs[i + 1]))
            e('v_and_b32 v%d, 0xffff0000, v%d' % (regs[i + 1], regs[i + 1]))
    for i in range(6):
        e('v_lshlrev_b32 v%d, 16, v%d' % (Bv[2 * i], BR2 + i))
        e('v_and_b32 v%d, 0xffff0000, v%d' % (Bv[2 * i + 1], BR2 + i))
        e('v_lshlrev_b32 v%d, 16, v%d' % (Xv[2 * i], XR + i))
        e('v_and_b32 v%d, 0xffff0000, v%d' % (Xv[2 * i + 1], XR + i))
    for i in range(12):
        e('v_mul_f32 v%d, v104, v%d' % (Sv[i], Sv[i]))
    round_pairs(Sv)
    for j in range(3):
        for r in range(4):
            i0 = PR + j * 4 + r
            e('v_add_f32 v%d, v%d, v%d' % (i0, i0, i0 + 12))
            e('v_add_f32 v%d, v%d, v%d' % (i0 + 24, i0 + 24, i0 + 36))
    for j in range(3):
        for r in range(4):
            i0 = PR + j * 4 + r
            e('v_add_f32 v%d, v%d, v%d' % (i0, i0, i0 + 24))
    e('v_and_b32 v%d, 7, v%d' % (c_v0, c_tid))
    e('v_mul_u32_u24 v%d, 2320, v%d' % (c_v0, c_v0))
    e('v_lshrrev_b32 v%d, 3, v%d' % (c_v1, c_tid))
    e('v_lshl_add_u32 v%d, v%d, 4, v%d' % (c_v0, c_v1, c_v0))
    e('ds_write_b128 v%d, %s offset:%d' % (c_v0, vr(PR, 4), OS))
    e('ds_write_b128 v%d, %s offset:%d' % (c_v0, vr(PR + 4, 4), OS + 1024))
    e('s_cmp_ge_u32 s%d, 2' % s_wave)
    e('s_cbranch_scc1 .Lk3_now2')
    e.cond_begin()
    e('ds_write_b128 v%d, %s offset:%d' % (c_v0, vr(PR + 8, 4), OS + 2048))
    e.cond_end()
    e.label('.Lk3_now2')
    e('s_mul_i32 s%d, s%d, 2320' % (c_t0, s_wave))
    e('v_add_u32 v%d, s%d, v%d' % (c_v1, c_t0, v_l16))
    e('s_waitcnt lgkmcnt(0)')
    e('s_barrier')
    for j in range(3):
        e('ds_read_b128 %s, v%d offset:%d' % (vr(PR + 4 * j, 4), c_v1, OS + j * 1024))
    round_pairs(O)
    for i in range(12):
        e('v_add_f32 v%d, v%d, v%d' % (O[i], O[i], Bv[i]))
    round_pairs(O)
    for i in range(12):
        e('v_mul_f32 v%d, s%d, v%d' % (Tv[i], c_l2e, O[i]))
    for i in range(12):
        e('v_exp_f32 v%d, v%d' % (Tv[i], Tv[i]))
    for i in range(12):
        e('v_add_f32 v%d, 1.0, v%d' % (Tv[i], Tv[i]))
    for i in range(12):
        e('v_rcp_f32 v%d, v%d' % (Tv[i], Tv[i]))
    for i in range(12):
        e('v_mul_f32 v%d, v%d, v%d' % (O[i], O[i], Tv[i]))
    round_pairs(O)
    for i in range(12):
        e('v_mul_f32 v%d, v%d, v%d' % (O[i], O[i], Sv[i]))
    round_pairs(O)
    for i in range(12):
        e('v_add_f32 v%d, v%d, v%d' % (O[i], O[i], Xv[i]))
    for i in range(6):
        e('v_cvt_pk_bf16_f32 v%d, v%d, v%d' % (Tv[i], O[2 * i], O[2 * i + 1]))
    for j in range(3):
        e('buffer_store_dwordx2 %s, v%d, s[%d:%d], s%d offen offset:%d' % (vr(Tv[2 * j], 2), c_l8 if j < 2 else c_l82, S_O, S_O + 3, c_row, j * 512))
    stamp(e, 'end')
    stamp_flush(e)
    e.label('.Lmega_end')
    e('s_endpgm')
    return e


if __name__ == '__main__':
    ks = [('mega_kernel', gen_mega(), 256, 512, 163840, 256, 102, 256)]
    dst = sys.argv[1] if len(sys.argv) > 1 else 'cdna_kernels/%s.s' % NAME
    open(dst, 'w').write(build(ks))
    print('wrote', dst)
```

```python
import os
import sys
import numpy as np
from asmgen import Stream
import tables as TB
from gen import (NAME, fbits, vr, make_srd, table_srd, allreduce_rows, allreduce_wave, radix8, bf16_round1, merge_keep, build,
                 T1_OFF, T2_OFF, T3_OFF, TW8_OFF, X_SZ, W_SZ, W1_SZ)
from gen23 import wscale, cmul_regs
from gen4 import ln_rows

ENV = lambda k, d: int(os.environ.get(k, str(d)))
STAMP = ENV('STAMP', 0)
FORCE_SLOW = ENV('FORCE_SLOW', 0)

H_OFF, P_OFF, XF_OFF, WT_OFF, YF_OFF, WM_OFF, ST_OFF, Y_OFF, FLG_OFF = 0, 0x1200000, 0x2400000, 0x2700000, 0x2A00000, 0x2D00000, 0x2E00000, 0x3000000, 0x3300000
WS_SZ = 0x3400000
YQ = 289 * 128
OOB = '0x7ffffff0'

S_WS, S_TAB = 92, 96
s_wave, s_fast, s_nlo, s_nhi = 88, 89, 90, 91
s_x, s_i = 84, 85
s_u0, s_u1 = 86, 87
WS = 's[92:95]'
TAB = 's[96:99]'

_uid = [0]
_nst = [0]


def stamp(e, name):
    if not STAMP:
        return
    if name != 'entry' and (name.startswith('G2') != (STAMP == 2) or name.startswith('G1') != (STAMP == 3)):
        return
    i = _nst[0]
    if i >= 13:
        return
    _nst[0] += 1
    sys.stderr.write('stamp %d %s\n' % (i, name))
    e('s_memtime s[100:101]')
    e('s_waitcnt lgkmcnt(0)')
    e('s_mov_b32 s%d, s100' % (3 + i))


def stamp_flush(e):
    if not STAMP:
        return
    e('s_lshl_b32 s100, s2, 3')
    e('s_add_u32 s100, s100, s%d' % s_wave)
    e('s_lshl_b32 s100, s100, 6')
    e('s_add_u32 s100, s100, 0x%x' % ST_OFF)
    e('v_mov_b32 v1, 0')
    for i in range(13):
        e('v_mov_b32 v2, s%d' % (3 + i))
        e('buffer_store_dword v2, v1, %s, s100 offen offset:%d' % (WS, 4 * i))


def flag_store(e, arr, s_idx, vt, local=False):
    _uid[0] += 1
    u = _uid[0]
    e('s_cmp_lg_u32 s%d, 0' % s_wave)
    e('s_cbranch_scc1 .Lpub%d' % u)
    e.cond_begin()
    e('s_lshl_b32 s%d, s%d, 3' % (s_u0, s_idx))
    e('s_add_u32 s%d, s%d, 0x%x' % (s_u0, s_u0, FLG_OFF + arr * 2048))
    e('v_mov_b32 v%d, s%d' % (vt, s_nlo))
    e('v_mov_b32 v%d, s%d' % (vt + 1, s_nhi))
    e('v_mov_b32 v%d, 0' % (vt + 2))
    e('s_mov_b64 exec, 1')
    if local:
        e('s_cmp_lg_u32 s%d, 0' % s_fast)
        e('s_cbranch_scc1 .Lpubf%d' % u)
        e('buffer_wbl2 sc1')
        e('s_waitcnt vmcnt(0)')
        e('buffer_store_dwordx2 v[%d:%d], v%d, %s, s%d offen sc1' % (vt, vt + 1, vt + 2, WS, s_u0))
        e('s_branch .Lpubd%d' % u)
        e.label('.Lpubf%d' % u)
        e('buffer_store_dwordx2 v[%d:%d], v%d, %s, s%d offen' % (vt, vt + 1, vt + 2, WS, s_u0))
        e.label('.Lpubd%d' % u)
    else:
        e('buffer_store_dwordx2 v[%d:%d], v%d, %s, s%d offen sc1' % (vt, vt + 1, vt + 2, WS, s_u0))
    e('s_mov_b64 exec, -1')
    e.cond_end()
    e.label('.Lpub%d' % u)


def wait_flags(e, specs, vt, setfast=False, fastlds=None):
    _uid[0] += 1
    u = _uid[0]
    e('s_cmp_lg_u32 s%d, 0' % s_wave)
    e('s_cbranch_scc1 .Lwf%d_done' % u)
    e.cond_begin()
    loads = []
    base = vt + 4
    for na, (arr, s_first, n) in enumerate(specs):
        va = vt + na
        e('v_and_b32 v%d, %d, v0' % (va, min(n, 64) - 1))
        if s_first is not None:
            e('v_add_u32 v%d, s%d, v%d' % (va, s_first, va))
        e('v_lshlrev_b32 v%d, 3, v%d' % (va, va))
        for j in range(max(n // 64, 1)):
            loads.append((va, FLG_OFF + arr * 2048 + j * 512))
    assert len(loads) <= 5 and len(specs) <= 2
    e('s_mov_b32 s%d, 0' % s_u1)
    e.label('.Lwf%d_loop' % u)
    for i, (va, off) in enumerate(loads):
        e('s_mov_b32 s%d, 0x%x' % (s_u0, off))
        e('buffer_load_dwordx2 v[%d:%d], v%d, %s, s%d offen sc1' % (base + 2 * i, base + 2 * i + 1, va, WS, s_u0))
    e('s_waitcnt vmcnt(0)')
    for i in range(len(loads)):
        lo, hi = base + 2 * i, base + 2 * i + 1
        e('v_xor_b32 v%d, s%d, v%d' % (lo, s_nlo, lo))
        e('v_xor_b32 v%d, s%d, v%d' % (hi, s_nhi, hi))
        e('v_lshrrev_b32 v%d, 4, v%d' % (vt + 3, hi))
        if i == 0:
            e('v_or_b32 v%d, v%d, v%d' % (vt + 2, lo, vt + 3))
        else:
            e('v_or3_b32 v%d, v%d, v%d, v%d' % (vt + 2, lo, vt + 3, vt + 2))
    e('v_cmp_ne_u32 vcc, 0, v%d' % (vt + 2))
    e('s_nop 4')
    e('s_cbranch_vccz .Lwf%d_ok' % u)
    e('s_sleep 1')
    e('s_add_u32 s%d, s%d, 1' % (s_u1, s_u1))
    e('s_cmp_lt_u32 s%d, 0x40000' % s_u1)
    e('s_cbranch_scc1 .Lwf%d_loop' % u)
    e.label('.Lwf%d_ok' % u)
    if setfast:
        e('v_cmp_ne_u32 vcc, 0, v%d' % (base + 1))
        e('s_nop 1')
        e('s_cmp_eq_u64 vcc, 0')
        e('s_cselect_b32 s%d, %d, 0' % (s_fast, 0 if FORCE_SLOW else 1))
    e.cond_end()
    e.label('.Lwf%d_done' % u)
    e('s_barrier')


def gen_mega():
    e = Stream()
    k0c = -2.0 * (2.0 / np.pi) ** 0.5 * np.log2(np.e)
    vA = lambda rt, k: 112 + (k * 2 + rt) * 4
    vB = lambda f: 16 + 4 * f
    v_dma = [3, 4, 5]
    v_l16 = 6
    GRP, D = 12, 5

    e.label('mega_kernel')
    e('s_cmp_ge_u32 s2, 256')
    e('s_cbranch_scc1 .Lmega_end')
    e('s_load_dwordx4 s[16:19], s[0:1], 72')
    e('s_load_dwordx4 s[20:23], s[0:1], 0')
    e('s_load_dwordx2 s[24:25], s[0:1], 16')
    e('s_load_dwordx4 s[28:31], s[0:1], 32')
    table_srd(e, S_TAB, 'm')
    e('v_lshrrev_b32 v1, 6, v0')
    e('v_and_b32 v0, 63, v0')
    e('v_readfirstlane_b32 s%d, v1' % s_wave)
    e('s_and_b32 s%d, s2, 7' % s_x)
    e('s_lshr_b32 s%d, s2, 3' % s_i)
    e('v_lshlrev_b32 v%d, 4, v0' % v_l16)
    e('s_mov_b32 s%d, 0' % s_fast)
    S_X, S_WR, S_WI, S_DBG = 32, 36, 40, 44
    p_t0, p_t1, p_n2, p_xo = 74, 75, 76, 77
    p_ex = 78
    p_tw = 48
    S_W1, S_B1 = 16, 20
    a_t0, a_t1, a_n0, a_par, a_hp, a_hs, a_n1, a_m0b, a_a0, a_a1 = 64, 65, 66, 67, 68, 69, 70, 71, 72, 73
    a_so = 80
    F = 40
    WREG = 16
    p_tid, p_v0, p_v1, p_so = 7, 8, 9, 10
    TL = 122880
    XL = TL + 16384
    YROW = 1168
    YL = XL + 9344
    WMX = YL + 8 * YROW + 1024
    assert WMX + 4 <= 163840

    e('s_lshl_b32 s%d, s%d, 5' % (p_n2, s_x))
    e('s_add_u32 s%d, s%d, s%d' % (p_n2, p_n2, s_i))
    e('s_lshl_b32 s%d, s%d, 10' % (a_m0b, s_wave))
    e('s_lshl_b32 s%d, s%d, 6' % (p_t0, s_wave))
    e('v_add_u32 v%d, s%d, v0' % (p_tid, p_t0))
    e('v_lshrrev_b32 v1, 4, v0')
    e('v_and_b32 v2, 15, v0')
    e('v_lshlrev_b32 v%d, 8, v1' % p_v0)
    e('v_lshl_add_u32 v%d, v2, 1, v%d' % (F + 20, p_v0))
    e('v_lshlrev_b32 v%d, 5, v1' % p_v0)
    e('v_lshl_add_u32 v%d, v2, 1, v%d' % (F + 21, p_v0))
    e('s_lshl_b32 s%d, s%d, 8' % (p_t0, s_wave))
    e('s_add_u32 s%d, s%d, s%d' % (p_t0, p_t0, p_n2))
    e('s_mul_i32 s%d, s%d, 1152' % (p_t0, p_t0))
    make_srd(e, S_X, 20, X_SZ)
    for j in range(8):
        e('buffer_load_ushort v%d, v%d, s[%d:%d], s%d offen offset:%d' % (F + j, F + 20, S_X, S_X + 3, p_t0, j * 32))
    e('buffer_load_ushort v%d, v%d, s[%d:%d], s%d offen offset:1024' % (F + 8, F + 21, S_X, S_X + 3, p_t0))
    make_srd(e, S_WS, 18, WS_SZ)
    make_srd(e, S_DBG, 16, 256)
    make_srd(e, S_WR, 22, W_SZ)
    make_srd(e, S_WI, 24, W_SZ)
    make_srd(e, S_B1, 30, 9216)
    make_srd(e, S_W1, 28, W1_SZ)
    stamp(e, 'entry')
    if ENV('CODEPF', 0):
        e('s_cmp_lg_u32 s%d, 7' % s_wave)
        e('s_cbranch_scc1 .Lnocpf')
        e.cond_begin()
        e('s_getpc_b64 s[100:101]')
        e('s_mov_b32 s48, s100')
        e('s_mov_b32 s49, s101')
        e('s_mov_b32 s50, const_tab-mega_kernel-1024')
        e('s_mov_b32 s51, 0x20000')
        e('s_lshl_b32 s%d, s%d, 12' % (s_u0, s_i))
        e('v_and_b32 v1, 31, v0')
        e('v_lshlrev_b32 v1, 7, v1')
        e('buffer_load_dword v11, v1, s[48:51], s%d offen' % s_u0)
        e.cond_end()
        e.label('.Lnocpf')
    e('s_or_b32 s%d, s2, s%d' % (s_u0, s_wave))
    e('s_cmp_lg_u32 s%d, 0' % s_u0)
    e('s_cbranch_scc1 .Lno_nonce')
    e.cond_begin()
    e('s_memrealtime s[100:101]')
    e('s_waitcnt lgkmcnt(0)')
    e('s_or_b32 s100, s100, 1')
    e('v_mov_b32 v12, s100')
    e('v_mov_b32 v13, s101')
    e('v_mov_b32 v1, 0')
    e('s_mov_b64 exec, 1')
    e('buffer_store_dwordx2 v[12:13], v1, s[%d:%d], 0 offen sc1' % (S_DBG, S_DBG + 3))
    e('s_mov_b64 exec, -1')
    e.cond_end()
    e.label('.Lno_nonce')
    e('s_add_u32 m0, s%d, 0x%x' % (a_m0b, TL))
    e('buffer_load_dwordx4 v%d, %s, s%d offen lds' % (v_l16, TAB, a_m0b), tok=('tl', 0))
    e('s_add_u32 s%d, s%d, 8192' % (p_t0, a_m0b))
    e('s_add_u32 m0, s%d, 0x%x' % (a_m0b, TL + 8192))
    e('buffer_load_dwordx4 v%d, %s, s%d offen lds' % (v_l16, TAB, p_t0), tok=('tl', 1))
    e('s_lshl_b32 s%d, s%d, 6' % (p_t0, p_n2))
    e('s_add_u32 s%d, s%d, 0x%x' % (p_t0, p_t0, TW8_OFF))
    e('s_add_u32 s%d, s%d, s%d' % (p_ex, S_TAB, p_t0))
    e('s_addc_u32 s%d, s%d, 0' % (p_ex + 1, S_TAB + 1))
    e('s_load_dwordx16 s[%d:%d], s[%d:%d], 0' % (p_tw, p_tw + 15, p_ex, p_ex + 1))

    a_rb, a_cb = 26, 27
    e('s_and_b32 s%d, s%d, 1' % (a_rb, s_x))
    e('s_lshl_b32 s%d, s%d, 2' % (a_rb, a_rb))
    e('s_and_b32 s%d, s%d, 3' % (a_cb, s_i))
    e('s_add_u32 s%d, s%d, s%d' % (a_rb, a_rb, a_cb))
    e('s_lshr_b32 s%d, s%d, 1' % (a_cb, s_x))
    e('s_lshl_b32 s%d, s%d, 3' % (a_cb, a_cb))
    e('s_lshr_b32 s%d, s%d, 2' % (a_t0, s_i))
    e('s_add_u32 s%d, s%d, s%d' % (a_cb, a_cb, a_t0))
    e('s_mul_i32 s%d, s%d, 288' % (a_n0, a_cb))
    e('s_and_b32 s%d, s%d, 1' % (a_par, a_cb))
    e('s_lshl_b32 s%d, s%d, 5' % (a_n1, a_par))
    e('s_add_u32 s%d, s%d, s%d' % (a_n1, a_n1, a_n0))

    def k1_dma_setup(st, p2, t0, t1):
        st('s_lshl_b32 s%d, s%d, 6' % (a_t0, s_wave))
        st('s_mov_b32 s%d, 0x%x' % (a_t1, 0x2aaab if p2 else 0x15556))
        if p2:
            st('s_lshl_b32 s%d, s%d, 5' % (a_so + 2, a_par))
            st('s_add_u32 s%d, s%d, 192' % (a_so + 2, a_so + 2))
            st('s_mul_i32 s%d, s%d, 288' % (a_so + 3, a_par))
        for q in range(3):
            d = v_dma[q]
            st('v_add_u32 v%d, s%d, v0' % (d, a_t0))
            if q:
                st('v_add_u32 v%d, %d, v%d' % (d, q * 512, d))
            st('v_mul_u32_u24 v%d, s%d, v%d' % (t0, a_t1, d))
            st('v_lshrrev_b32 v%d, 20, v%d' % (t0, t0))
            st('v_mul_u32_u24 v%d, %d, v%d' % (t1, 6 if p2 else 12, t0))
            st('v_sub_u32 v%d, v%d, v%d' % (d, d, t1))
            if not p2:
                st('v_bfe_u32 v%d, v%d, 2, 1' % (t1, t0))
                st('v_lshlrev_b32 v%d, 1, v%d' % (t1, t1))
                st('v_xor_b32 v%d, v%d, v%d' % (d, d, t1))
                st('v_lshlrev_b32 v%d, 4, v%d' % (d, d))
            else:
                st('v_lshrrev_b32 v%d, 2, v%d' % (t1, d))
                st('v_mul_u32_u24 v%d, s%d, v%d' % (t1, a_so + 3, t1))
                st('v_lshlrev_b32 v%d, 4, v%d' % (d, d))
                st('v_add_u32 v%d, s%d, v%d' % (d, a_so + 2, d))
                st('v_sub_u32 v%d, v%d, v%d' % (d, d, t1))
            st('v_mul_u32_u24 v%d, 9216, v%d' % (t0, t0))
            st('v_add_u32 v%d, v%d, v%d' % (d, d, t0))

    k1_dma_setup(e, False, 1, 2)
    k_t0, k_t1 = 7, 8

    def k1_bdma(q):
        st = Stream()
        if q == 14:
            k1_dma_setup(st, True, k_t0, k_t1)
        lim = {13: 4, 20: 6}.get(q)
        if lim:
            st('s_cmp_ge_u32 s%d, %d' % (s_wave, lim))
            st('s_cbranch_scc1 .Lk1_dma%d' % q)
            st.cond_begin()
        so = a_so + (q % 2)
        if q < 14:
            st('s_add_u32 s%d, s%d, 0x%x' % (so, a_n1, (q // 3) * 128 * 9216))
            pat = q % 3
        else:
            st('s_add_u32 s%d, s%d, 0x%x' % (so, a_n0, ((q - 14) // 3) * 256 * 9216))
            pat = (q - 14) % 3
        st('s_add_u32 m0, s%d, 0x%x' % (a_m0b, (q % 20) * 8192))
        st('buffer_load_dwordx4 v%d, s[%d:%d], s%d offen lds' % (v_dma[pat], S_W1, S_W1 + 3, so), tok=('d', q))
        if lim:
            st.cond_end()
            st.label('.Lk1_dma%d' % q)
        return st

    NQ0 = ENV('NQ0', 6)
    for q in range(NQ0):
        e.extend(k1_bdma(q))
    e('v_mov_b32 v1, 0')
    e('v_mov_b32 v2, 0x%x' % WMX)
    e('ds_write_b32 v2, v1')

    X0, T0_, M_, V_, Q_ = F, F + 9, F + 18, F + 19, F + 22
    for j in range(9):
        e('v_lshlrev_b32 v%d, 16, v%d' % (X0 + j, X0 + j))
    ln_rows(e, X0, T0_, M_, V_, Q_)
    A4, A2 = F + 24, F + 28
    e('v_mov_b32 v%d, 0' % (A2 + 1))
    e('v_mov_b32 v%d, 0' % (A2 + 2))
    for p in range(4):
        e('v_cvt_pk_f16_f32 v%d, v%d, v%d' % (A4 + p, X0 + 2 * p, X0 + 1 + 2 * p))
    e('v_cvt_pk_f16_f32 v%d, v%d, v%d' % (A2, X0 + 8, A2 + 1))
    e('v_cvt_pk_f16_f32 v%d, v%d, v%d' % (A2 + 3, X0 + 8, A2 + 1))
    ln_rows(e, X0, T0_, M_, V_, Q_)
    e('s_mul_i32 s%d, s%d, %d' % (p_t0, s_wave, YROW))
    e('s_add_u32 s%d, s%d, 0x%x' % (p_t0, p_t0, YL))
    e('v_add_u32 v%d, s%d, v%d' % (F + 20, p_t0, F + 20))
    e('v_add_u32 v%d, s%d, v%d' % (F + 21, p_t0, F + 21))
    for j in range(8):
        e('ds_write_b16_d16_hi v%d, v%d offset:%d' % (F + 20, X0 + j, j * 32))
    e('ds_write_b16_d16_hi v%d, v%d offset:1024' % (F + 21, X0 + 8))
    e('v_and_b32 v1, 7, v%d' % p_tid)
    e('v_mul_u32_u24 v32, %d, v1' % YROW)
    e('v_lshrrev_b32 v2, 5, v%d' % p_tid)
    e('v_lshl_add_u32 v32, v2, 6, v32')
    e('v_bfe_u32 v2, v%d, 3, 2' % p_tid)
    e('v_lshl_add_u32 v32, v2, 3, v32')
    e('v_add_u32 v32, 0x%x, v32' % YL)
    e('v_lshrrev_b32 v33, 3, v%d' % p_tid)
    e('v_lshlrev_b32 v33, 8, v33')
    e('v_lshl_add_u32 v33, v1, 4, v33')
    e('s_lshr_b32 s%d, s%d, 1' % (p_t0, p_n2))
    e('s_mul_i32 s%d, s%d, 18432' % (p_t0, p_t0))
    e('s_and_b32 s%d, s%d, 1' % (p_t1, p_n2))
    e('s_lshl_b32 s%d, s%d, 7' % (p_t1, p_t1))
    e('s_add_u32 s%d, s%d, s%d' % (p_t0, p_t0, p_t1))
    e('s_add_u32 s%d, s%d, 0x%x' % (p_t0, p_t0, Y_OFF))
    e('s_waitcnt lgkmcnt(0)')
    e('s_barrier', needs=[('tl', 0), ('tl', 1)])
    e('ds_read_b64 v[36:37], v32')
    e('ds_read_b64 v[38:39], v32 offset:32')
    e('ds_read_b64 v[12:13], v32 offset:1024')
    e('ds_read_b64 v[14:15], v32 offset:1056')
    e('buffer_store_dwordx4 v[36:39], v33, %s, s%d offen sc1' % (WS, p_t0), tok=('ys', 0))
    e('s_cmp_lg_u32 s%d, 0' % s_wave)
    e('s_cbranch_scc1 .Lp0_now0')
    e.cond_begin()
    e('s_add_u32 s%d, s%d, 16384' % (p_t0, p_t0))
    e('buffer_store_dwordx4 v[12:15], v33, %s, s%d offen sc1' % (WS, p_t0), tok=('ys', 1))
    e('v_mov_b32 v1, 0')
    e('s_mov_b32 s%d, 0' % s_u1)
    e.label('.Lnonce_loop')
    e('buffer_load_dwordx2 v[34:35], v1, s[%d:%d], 0 offen sc1' % (S_DBG, S_DBG + 3))
    e('s_waitcnt vmcnt(0)')
    e('v_readfirstlane_b32 s%d, v34' % s_nlo)
    e('v_readfirstlane_b32 s%d, v35' % s_nhi)
    e('s_nop 1')
    e('s_cmp_lg_u32 s%d, 0' % s_nlo)
    e('s_cbranch_scc1 .Lnonce_ok')
    e('s_sleep 1')
    e('s_add_u32 s%d, s%d, 1' % (s_u1, s_u1))
    e('s_cmp_lt_u32 s%d, 0x40000' % s_u1)
    e('s_cbranch_scc1 .Lnonce_loop')
    e.label('.Lnonce_ok')
    e('s_getreg_b32 s%d, hwreg(HW_REG_XCC_ID)' % s_u0)
    e('s_and_b32 s%d, s%d, 15' % (s_u0, s_u0))
    e('s_lshl_b32 s%d, s%d, 4' % (s_nhi, s_nhi))
    e('s_or_b32 s%d, s%d, s%d' % (s_nhi, s_nhi, s_u0))
    e.cond_end()
    e.label('.Lp0_now0')
    TA = F + 23
    e('v_add_u32 v%d, 0x%x, v%d' % (TA, TL, v_l16))
    for q in range(5):
        e('ds_read_b128 %s, v%d offset:%d' % (vr(F + 32 + 4 * q, 4), TA, q * 1024))
    for q in range(2):
        e('ds_read_b128 %s, v%d offset:%d' % (vr(F + 56 + 4 * q, 4), TA, (11 + q) * 1024))
    for i in range(4):
        e('v_mfma_f32_16x16x32_f16 %s, %s, %s, 0' % (vr(F + 4 * i, 4), vr(A4, 4), vr(F + 32 + 4 * i, 4)))
    for i in range(4):
        e('v_mfma_f32_16x16x16_f16 %s, %s, %s, %s' % (vr(F + 4 * i, 4), vr(A2 + 2 * (i & 1), 2), vr(F + 48 + (i & 2), 2), vr(F + 4 * i, 4)))
    for q in range(6):
        e('ds_read_b128 %s, v%d offset:%d' % (vr(F + 32 + 4 * q, 4), TA, (5 + q) * 1024))
    e('s_barrier', needs=[('ys', 0), ('ys', 1)])
    flag_store(e, 0, p_n2, 12)
    stamp(e, 'y published')
    ld = Stream()
    ld('v_cmp_gt_u32 vcc, 289, v%d' % p_tid)
    ld('v_mov_b32 v%d, %s' % (p_v1, OOB))
    ld('v_lshlrev_b32 v%d, 1, v%d' % (p_v0, p_tid))
    ld('v_cndmask_b32 v%d, v%d, v%d, vcc' % (p_v0, p_v1, p_v0))
    ld('v_lshrrev_b32 v%d, 2, v%d' % (p_so, p_tid))
    ld('v_lshlrev_b32 v%d, 15, v%d' % (p_so, p_so))
    ld('v_and_b32 v1, 3, v%d' % p_tid)
    ld('v_lshl_add_u32 v%d, v1, 5, v%d' % (p_so, p_so))
    ld('v_cndmask_b32 v%d, v%d, v%d, vcc' % (p_so, p_v1, p_so))
    ld('s_lshl_b32 s%d, s%d, 7' % (p_xo, p_n2))
    ld('s_and_b32 s%d, s%d, 127' % (p_ex, p_n2))
    ld('s_lshr_b32 s%d, s%d, 7' % (p_ex + 1, p_n2))
    ld('s_lshl_b32 s%d, s%d, 10' % (p_ex + 1, p_ex + 1))
    ld('s_add_u32 s%d, s%d, s%d' % (p_ex, p_ex, p_ex + 1))
    ld('s_mul_i32 s%d, s%d, 578' % (p_ex, p_ex))
    for i in range(8):
        if i:
            ld('s_add_u32 s%d, s%d, %d' % (p_ex, p_ex, 128 * 578))
        ld('buffer_load_ushort v%d, v%d, s[%d:%d], s%d offen' % (WREG + i, p_v0, S_WR, S_WR + 3, p_ex))
        ld('buffer_load_ushort v%d, v%d, s[%d:%d], s%d offen' % (WREG + 8 + i, p_v0, S_WI, S_WI + 3, p_ex))
    NQ1 = ENV('NQ1', 14)
    for q in range(NQ0, NQ1):
        ld.extend(k1_bdma(q))
    f = Stream()
    f('s_mul_i32 s%d, s%d, %d' % (p_t0, s_wave, TB.XL_ROW))
    f('s_add_u32 s%d, s%d, 0x%x' % (p_t0, p_t0, XL))
    for i in range(8):
        f('v_add_u32 v%d, s%d, v%d' % (F + 56 + i, p_t0, F + 56 + i))
    for ct in range(2):
        dre, dim = F + ct * 8, F + ct * 8 + 4
        twr, twi = F + 32 + ct * 8, F + 32 + ct * 8 + 4
        for r in range(4):
            f('v_mul_f32 v%d, v%d, v%d' % (F + 16 + r, dre + r, twr + r))
            f('v_mul_f32 v%d, v%d, v%d' % (dre + r, dre + r, twi + r))
        for r in range(4):
            f('v_fma_f32 v%d, -v%d, v%d, v%d' % (F + 16 + r, dim + r, twi + r, F + 16 + r))
            f('v_fmac_f32 v%d, v%d, v%d' % (dre + r, dim + r, twr + r))
        for r in range(4):
            f('v_cvt_pk_f16_f32 v%d, v%d, v%d' % (F + 24 + 4 * ct + r, F + 16 + r, dre + r))
    for ct in range(2):
        for ri in range(2):
            f('v_mfma_f32_16x16x32_f16 %s, %s, %s, 0' % (vr(F + (ct * 2 + ri) * 4, 4), vr(F + 48 + ri * 4, 4), vr(F + 24 + 4 * ct, 4)))
    for ct in range(2):
        for r in range(4):
            f('v_cvt_pk_f16_f32 v%d, v%d, v%d' % (F + ct * 8 + r, F + ct * 8 + r, F + ct * 8 + 4 + r))
            f('ds_write_b32 v%d, v%d' % (F + 56 + ct * 4 + r, F + ct * 8 + r))
    e.extend(merge_keep(f, ld))
    e('s_waitcnt lgkmcnt(0)')
    e('s_lshl_b32 s%d, s%d, 5' % (p_t0, s_x))
    e('s_lshl_b32 s%d, s%d, 5' % (p_t1, a_rb))
    wait_flags(e, [(0, p_t0, 32), (0, p_t1, 32)], F + 32, setfast=True)
    stamp(e, 'y flags ok')

    e('s_lshl_b32 s%d, s%d, 4' % (a_t0, a_rb))
    e('s_lshl_b32 s%d, s%d, 1' % (a_t1, s_wave))
    e('s_add_u32 s%d, s%d, s%d' % (a_t0, a_t0, a_t1))
    e('s_mul_i32 s%d, s%d, 18432' % (a_a0, a_t0))
    e('s_add_u32 s%d, s%d, 0x%x' % (a_a0, a_a0, Y_OFF))
    e('s_add_u32 s%d, s%d, 18432' % (a_a1, a_a0))
    e('s_mul_i32 s%d, s%d, %d' % (a_hs, a_t0, 144 * 1024))

    def aload(k, a0, a1):
        st = Stream()
        for rt in range(2):
            so = (a0, a1)[rt]
            if k >= 4 and k % 4 == 0:
                st('s_add_u32 s%d, s%d, 4096' % (so, so))
            st('buffer_load_dwordx4 %s, v%d, %s, s%d offen offset:%d%s' % (vr(vA(rt, k), 4), v_l16, WS, so, (k % 4) * 1024, os.environ.get('ALD', ' sc1')))
        return st

    nq = [NQ1]
    na = [0]

    def k1_issue(st, ka, qlim):
        while True:
            did = False
            if na[0] < min(ka, 18):
                st.extend(aload(na[0], a_a0, a_a1))
                na[0] += 1
                did = True
            if nq[0] < min(qlim, 21):
                st.extend(k1_bdma(nq[0]))
                nq[0] += 1
                did = True
            if not did:
                break

    LA1 = ENV('K1LA', 8)
    ld = Stream()
    k1_issue(ld, LA1, NQ1)
    G_ = F
    f = Stream()
    f('v_lshlrev_b32 v1, 2, v%d' % p_tid)
    f('v_add_u32 v1, 0x%x, v1' % XL)
    for n in range(8):
        f('ds_read_b32 v%d, v1 offset:%d' % (G_ + 16 + n, n * TB.XL_ROW))
    for n in range(8):
        f('v_cvt_f32_f16 v%d, v%d' % (G_ + 2 * n, G_ + 16 + n))
        f('v_cvt_f32_f16_sdwa v%d, v%d dst_sel:DWORD dst_unused:UNUSED_PAD src0_sel:WORD_1' % (G_ + 2 * n + 1, G_ + 16 + n))
    X = radix8(f, G_, G_ + 16, None)
    for k1 in range(8):
        x = X[k1]
        c, s = p_tw + 2 * k1, p_tw + 2 * k1 + 1
        t_ = G_ + 2 * k1
        f('v_mul_f32 v%d, s%d, v%d' % (t_, c, x))
        f('v_mul_f32 v%d, s%d, v%d' % (t_ + 1, s, x))
        f('v_mul_f32 v%d, s%d, v%d' % (x, s, x + 1))
        f('v_mul_f32 v%d, s%d, v%d' % (x + 1, c, x + 1))
        f('v_sub_f32 v%d, v%d, v%d' % (t_, t_, x))
        f('v_add_f32 v%d, v%d, v%d' % (t_ + 1, t_ + 1, x + 1))
        f('v_cvt_pk_f16_f32 v%d, v%d, v%d' % (G_ + 56 + k1, t_, t_ + 1))
    for i in range(8):
        f('v_lshl_or_b32 v%d, v%d, 16, v%d' % (104 + i, WREG + 8 + i, WREG + i))
    M = WREG + 8
    for i in range(8):
        f('v_and_b32 v%d, 0x7fff7fff, v%d' % (M + i, 104 + i))
    for s_ in (4, 2, 1):
        for i in range(s_):
            f('v_pk_max_u16 v%d, v%d, v%d' % (M + i, M + i, M + i + s_))
    f('v_lshrrev_b32 v%d, 16, v%d' % (M + 1, M))
    f('v_and_b32 v%d, 0xffff, v%d' % (M, M))
    f('v_max_u32 v%d, v%d, v%d' % (M, M, M + 1))
    allreduce_wave(f, M, M + 1, 'v_max_u32')
    e.extend(ld)
    e('s_cmp_ge_u32 s%d, 5' % s_wave)
    e('s_cbranch_scc1 .Lp0_nor8')
    e.cond_begin()
    e.extend(f)
    e('v_mov_b32 v%d, 0x%x' % (M + 1, WMX))
    e('s_mov_b64 exec, 1')
    e('ds_max_u32 v%d, v%d' % (M + 1, M))
    e('s_mov_b64 exec, -1')
    e('s_lshl_b32 s%d, s%d, 11' % (p_t0, s_wave))
    e('v_lshlrev_b32 v1, 5, v0')
    e('v_add_u32 v1, s%d, v1' % p_t0)
    e('v_add_u32 v1, 0x%x, v1' % TL)
    e('v_add_u32 v2, s%d, v%d' % (p_t0, v_l16))
    e('v_add_u32 v2, 0x%x, v2' % TL)
    w0 = e('ds_write_b128 v1, v[96:99]')
    w1 = e('ds_write_b128 v1, v[100:103] offset:16')
    w2 = e('ds_write_b128 v1, v[104:107] offset:%d' % (YL - TL))
    w3 = e('ds_write_b128 v1, v[108:111] offset:%d' % (YL - TL + 16))
    e('ds_read_b128 v[96:99], v2', needs=[w0, w1, w2, w3])
    e('ds_read_b128 v[100:103], v2 offset:1024')
    e('ds_read_b128 v[104:107], v2 offset:%d' % (YL - TL))
    e('ds_read_b128 v[108:111], v2 offset:%d' % (YL - TL + 1024))
    e('v_lshrrev_b32 v1, 3, v0')
    e('s_lshl_b32 s%d, s%d, 4' % (p_t0, s_wave))
    e('v_add_u32 v1, s%d, v1' % p_t0)
    e('v_and_b32 v2, 0x70, v%d' % v_l16)
    e('v_mov_b32 v%d, %s' % (p_v1, OOB))
    e('v_cmp_gt_u32 vcc, 73, v1')
    e('v_lshl_add_u32 v%d, v1, 15, v2' % p_so)
    e('v_add_u32 v%d, 0x40000, v%d' % (p_v0, p_so))
    e('v_cndmask_b32 v%d, v%d, v%d, vcc' % (p_so, p_v1, p_so))
    e('v_cmp_gt_u32 vcc, 65, v1')
    e('v_cndmask_b32 v%d, v%d, v%d, vcc' % (p_v0, p_v1, p_v0))
    e('s_add_u32 s%d, s%d, 0x%x' % (p_t0, p_xo, XF_OFF))
    e('s_add_u32 s%d, s%d, 0x%x' % (p_t1, p_xo, WT_OFF))
    e('buffer_store_dwordx4 v[96:99], v%d, %s, s%d offen sc1' % (p_so, WS, p_t0), tok=('xs', 0))
    e('buffer_store_dwordx4 v[100:103], v%d, %s, s%d offen sc1' % (p_v0, WS, p_t0), tok=('xs', 0))
    e('buffer_store_dwordx4 v[104:107], v%d, %s, s%d offen sc1' % (p_so, WS, p_t1), tok=('xs', 0))
    e('buffer_store_dwordx4 v[108:111], v%d, %s, s%d offen sc1' % (p_v0, WS, p_t1), tok=('xs', 0))
    e.cond_end()
    e.label('.Lp0_nor8')
    stamp(e, 'p0 done')

    vC1 = lambda rt, t: 64 + ((t >> 1) * 2 + rt) * 8 + (t & 1) * 4
    vC2 = lambda rt, t: (40 + rt * 8 + t * 4) if t < 2 else (56 + rt * 4)
    v_be, v_bo, v_b2 = 1, 2, 9
    v_a0, v_a1, v_k1, v_bz = 10, 11, 12, 13
    e('v_lshrrev_b32 v%d, 4, v0' % k_t0)
    e('v_lshlrev_b32 v%d, 3, v%d' % (v_bz, k_t0))
    for t in range(6):
        e('buffer_load_dwordx2 %s, v%d, s[%d:%d], s%d offen offset:%d' % (vr(40 + 4 * t, 2), v_bz, S_B1, S_B1 + 3, a_n1, t * 32))
    e('v_add_u32 v%d, s%d, v%d' % (v_a0, a_hs, v_l16))
    e('v_add_u32 v%d, 0x%x, v%d' % (v_a1, 144 * 1024, v_a0))
    e('v_lshrrev_b32 v%d, 2, v0' % k_t0)
    e('v_mul_u32_u24 v%d, 192, v%d' % (v_be, k_t0))
    e('v_and_b32 v%d, 3, v0' % k_t1)
    e('v_lshl_add_u32 v%d, v%d, 3, v%d' % (v_be, k_t1, v_be))
    e('v_mul_u32_u24 v%d, 96, v%d' % (v_b2, k_t0))
    e('v_lshl_add_u32 v%d, v%d, 3, v%d' % (v_b2, k_t1, v_b2))
    e('v_bfe_u32 v%d, v0, 4, 1' % k_t1)
    e('v_lshlrev_b32 v%d, 5, v%d' % (k_t1, k_t1))
    e('v_sub_u32 v%d, v%d, v%d' % (v_bo, v_be, k_t1))
    e('v_add_u32 v%d, 32, v%d' % (v_bo, v_bo))
    e('v_add_u32 v%d, v%d, v%d' % (v_be, v_be, k_t1))
    e('v_mov_b32 v%d, %s' % (v_k1, fbits(k0c * 0.044715)))
    e('s_mul_i32 s%d, s%d, 9' % (a_t1, a_cb))
    e('s_add_u32 s%d, s%d, s%d' % (a_hp, a_t1, a_par))
    e('s_lshl_b32 s%d, s%d, 9' % (a_hp, a_hp))
    e('s_add_u32 s%d, s%d, 4096' % (a_hs, a_hp))
    e('s_sub_u32 s%d, s%d, 512' % (a_t0, a_hp))
    e('s_cmp_eq_u32 s%d, 1' % a_par)
    e('s_cselect_b32 s%d, s%d, s%d' % (a_hs, a_t0, a_hs))
    for t in range(6):
        b = 40 + 4 * t
        e('v_and_b32 v%d, 0xffff0000, v%d' % (b + 3, b + 1))
        e('v_lshlrev_b32 v%d, 16, v%d' % (b + 2, b + 1))
        e('v_and_b32 v%d, 0xffff0000, v%d' % (b + 1, b))
        e('v_lshlrev_b32 v%d, 16, v%d' % (b, b))

    wbase = {}

    def based(st, reg, ro, span):
        if not (0 <= ro - wbase[reg] and ro - wbase[reg] + span <= 65536):
            st('v_add_u32 v%d, 0x%x, v%d' % (reg, (ro - wbase[reg]) & 0xffffffff, reg))
            wbase[reg] = ro
        return ro - wbase[reg]

    def make_fread(ring1, ring2):
        def fread(st, p, al):
            f_ = p % 6
            if p < 108:
                k, t = divmod(p, 6)
                reg = (v_be, v_bo)[t & 1]
                off = based(st, reg, ring1(k), 6144) + al * 3072 + (t >> 1) * 64
            else:
                k, t = divmod(p - 108, 3)
                reg = v_b2
                off = based(st, reg, ring2(k), 3072) + al * 1536 + t * 32
            st('ds_read_b64_tr_b16 %s, v%d offset:%d' % (vr(vB(f_) + 2 * al, 2), reg, off))
        return fread

    wbase.update({v_be: 0, v_bo: 0, v_b2: 0})
    fread = make_fread(lambda k: k * 6144, lambda k: ((112 + 3 * k) % 160) * 1024)

    def slots_for(p):
        if p < 108:
            return min(-(-(p // 6 + 1) * 6 // 8), 14)
        return 14 + min(-(-((p - 108) // 3 + 1) * 3 // 8), 7)

    def mf1(p, rt):
        if p < 108:
            k, t = divmod(p, 6)
            c = vC1(rt, t)
            cin = vr(c, 4) if k else vr(40 + 4 * t, 4)
        else:
            k, t = divmod(p - 108, 3)
            c = vC2(rt, t)
            cin = vr(c, 4)
        return 'v_mfma_f32_16x16x32_bf16 %s, %s, %s, %s' % (vr(c, 4), vr(vB(p % 6), 4), vr(vA(rt, k), 4), cin)

    def bias2():
        st = Stream()
        st('s_add_u32 s%d, s%d, 192' % (a_so + 2, a_n1))
        st('buffer_load_dwordx2 %s, v%d, s[%d:%d], s%d offen' % (vr(vC2(1, 0), 2), v_bz, S_B1, S_B1 + 3, a_so + 2))
        st('buffer_load_dwordx2 %s, v%d, s[%d:%d], s%d offen offset:32' % (vr(vC2(1, 1), 2), v_bz, S_B1, S_B1 + 3, a_so + 2))
        st('s_mul_i32 s%d, s%d, 256' % (a_so + 3, a_par))
        st('s_sub_u32 s%d, 256, s%d' % (a_so + 3, a_so + 3))
        st('s_add_u32 s%d, s%d, s%d' % (a_so + 3, a_so + 3, a_n0))
        st('buffer_load_dwordx2 %s, v%d, s[%d:%d], s%d offen' % (vr(vC2(1, 2), 2), v_bz, S_B1, S_B1 + 3, a_so + 3))
        un = Stream()
        for t in range(3):
            a, b = vC2(0, t), vC2(1, t)
            un('v_lshlrev_b32 v%d, 16, v%d' % (a, b))
            un('v_and_b32 v%d, 0xffff0000, v%d' % (a + 1, b))
            un('v_lshlrev_b32 v%d, 16, v%d' % (a + 2, b + 1))
            un('v_and_b32 v%d, 0xffff0000, v%d' % (a + 3, b + 1))
            for r in range(4):
                un('v_mov_b32 v%d, v%d' % (b + r, a + r))
        return st, un

    def epi(accf, tiles, T):
        st = Stream()
        n = len(tiles)
        for rt in range(2):
            w_ = T + 8 * rt
            A = accf(rt, tiles[0])
            E = range(4 * n)
            for r in E:
                st('v_mul_f32 v%d, v%d, v%d' % (w_ + r, A + r, A + r))
            for r in E:
                st('v_fmaak_f32 v%d, v%d, v%d, %s' % (w_ + r, v_k1, w_ + r, fbits(k0c)))
            for r in E:
                st('v_mul_f32 v%d, v%d, v%d' % (w_ + r, w_ + r, A + r))
            for r in E:
                st('v_exp_f32 v%d, v%d' % (w_ + r, w_ + r))
            for r in E:
                st('v_add_f32 v%d, 1.0, v%d' % (w_ + r, w_ + r))
            for r in E:
                st('v_rcp_f32 v%d, v%d' % (w_ + r, w_ + r))
            for r in E:
                st('v_mul_f32 v%d, v%d, v%d' % (w_ + r, A + r, w_ + r))
            for j in range(2 * n):
                st('v_cvt_pk_bf16_f32 v%d, v%d, v%d' % (A + j, w_ + 2 * j, w_ + 2 * j + 1))
            if n == 2:
                st('buffer_store_dwordx4 %s, v%d, %s, s%d offen offset:%d' % (vr(A, 4), (v_a0, v_a1)[rt], WS, a_hp, (tiles[0] >> 1) * 1024) + ' sc1', tok=('hs', tiles[0] >> 1))
            else:
                st('v_lshlrev_b32 v%d, 3, v0' % (T + 4))
                st('v_sub_u32 v%d, v%d, v%d' % (T + 4 + 1 + rt, (v_a0, v_a1)[rt], T + 4))
                st('buffer_store_dwordx2 %s, v%d, %s, s%d offen' % (vr(A, 2), T + 5 + rt, WS, a_hs) + ' sc1', tok=('hs', 4))
        return st

    S_W2 = 32
    PERM = [0, 1, 5, 6, 9, 10, 14, 15, 2, 3, 7, 8, 11, 12, 16, 17, 4, 13]
    INV = [PERM.index(k) for k in range(18)]
    b_ks, b_rb, b_cb, b_t0, b_t1, b_b0, b_a0, b_a1, b_p0, b_kh, b_rg = 36, 37, 38, 39, 40, 41, 42, 43, 44, 45, 46
    b_col = 48
    b_so = 50
    b_msk = 54

    def k2_dma_setup(st, upr, swz, t0, t1):
        st('s_lshl_b32 s%d, s%d, 6' % (b_t0, s_wave))
        st('s_mov_b32 s%d, 0x%x' % (b_t1, 0x15556 if upr == 12 else 0x2aaab))
        for q in range(3):
            d = v_dma[q]
            st('v_add_u32 v%d, s%d, v0' % (d, b_t0))
            if q:
                st('v_add_u32 v%d, %d, v%d' % (d, q * 512, d))
            st('v_mul_u32_u24 v%d, s%d, v%d' % (t0, b_t1, d))
            st('v_lshrrev_b32 v%d, 20, v%d' % (t0, t0))
            st('v_mul_u32_u24 v%d, %d, v%d' % (t1, upr, t0))
            st('v_sub_u32 v%d, v%d, v%d' % (d, d, t1))
            if swz:
                st('v_bfe_u32 v%d, v%d, 2, 1' % (t1, t0))
                st('v_lshlrev_b32 v%d, 1, v%d' % (t1, t1))
                st('v_xor_b32 v%d, v%d, v%d' % (d, d, t1))
            st('v_lshlrev_b32 v%d, 4, v%d' % (d, d))
            st('v_bfe_u32 v%d, v%d, 5, 1' % (t1, t0))
            st('v_mul_u32_u24 v%d, %d, v%d' % (t1, 576 * 1152, t1))
            st('v_add_u32 v%d, v%d, v%d' % (d, d, t1))
            st('v_lshrrev_b32 v%d, 6, v%d' % (t1, t0))
            st('v_and_b32 v%d, 31, v%d' % (t0, t0))
            st('v_lshl_add_u32 v%d, v%d, 5, v%d' % (t0, t1, t0))
            st('v_mul_u32_u24 v%d, 1152, v%d' % (t0, t0))
            st('v_add_u32 v%d, v%d, v%d' % (d, d, t0))

    def k2_bdma(q):
        st = Stream()
        if q == 27:
            k2_dma_setup(st, 6, False, k_t0, k_t1)
        cond = (q == 40)
        if cond:
            st('s_cmp_ge_u32 s%d, 4' % s_wave)
            st('s_cbranch_scc1 .Lk2_dma40')
            st.cond_begin()
        so = b_so + (q % 2)
        if q < 27:
            j0 = (q // 3) * 2
            base = PERM[j0] * 32 * 1152
            dlt = (PERM[j0 + 1] - PERM[j0] - 1) * 32 * 1152
            if dlt and q % 3 == 1:
                st('s_lshr_b32 s%d, s%d, 2' % (so, s_wave))
                st('s_mul_i32 s%d, s%d, 0x%x' % (so, so, dlt))
                st('s_add_u32 s%d, s%d, 0x%x' % (so, so, base))
                st('s_add_u32 s%d, s%d, s%d' % (so, so, b_b0))
            else:
                st('s_add_u32 s%d, s%d, 0x%x' % (so, b_b0, base + (dlt if q % 3 == 2 else 0)))
        else:
            st('s_add_u32 s%d, s%d, 0x%x' % (so, b_b0, ((q - 27) // 3) * 128 * 1152 + 192))
        st('s_add_u32 m0, s%d, 0x%x' % (a_m0b, ((q + 3) % 15) * 8192))
        st('buffer_load_dwordx4 v%d, s[%d:%d], s%d offen lds' % (v_dma[q % 3], S_W2, S_W2 + 3, so), tok=('e', q))
        if cond:
            st.cond_end()
            st.label('.Lk2_dma40')
        return st

    k2pro = Stream()
    e('s_load_dwordx2 s[%d:%d], s[0:1], 48' % (S_W2, S_W2 + 1))
    e('s_mov_b32 s%d, 0x%x' % (S_W2 + 2, W1_SZ))
    e('s_mov_b32 s%d, 0x20000' % (S_W2 + 3))
    e('s_lshr_b32 s%d, s%d, 1' % (b_t0, s_x))
    e('s_lshl_b32 s%d, s%d, 5' % (b_t0, b_t0))
    e('s_add_u32 s%d, s%d, s%d' % (b_t0, b_t0, s_i))
    e('s_mul_i32 s%d, s%d, 41472' % (b_p0, b_t0))
    e('s_mul_i32 s%d, s%d, %d' % (b_t0, s_wave, 41 * 128))
    e('s_add_u32 s%d, s%d, s%d' % (b_p0, b_p0, b_t0))
    e('s_waitcnt lgkmcnt(0)')

    def touch_w2(g):
        st = Stream()
        st('s_cmp_lg_u32 s%d, %d' % (s_wave, g))
        st('s_cbranch_scc1 .Ltw2_%d' % g)
        st.cond_begin()
        st('v_cmp_gt_u32 vcc, 41, v0')
        st('v_lshlrev_b32 v14, 7, v0')
        st('v_mov_b32 v15, %s' % OOB)
        st('v_cndmask_b32 v14, v15, v14, vcc')
        st('buffer_load_dword v15, v14, s[%d:%d], s%d offen' % (S_W2, S_W2 + 3, b_p0))
        st.cond_end()
        st.label('.Ltw2_%d' % g)
        return st
    k2pro('s_lshr_b32 s%d, s%d, 1' % (b_ks, s_x))
    k2pro('s_and_b32 s%d, s%d, 1' % (b_rb, s_x))
    k2pro('s_lshl_b32 s%d, s%d, 3' % (b_rb, b_rb))
    k2pro('s_and_b32 s%d, s%d, 7' % (b_t0, s_i))
    k2pro('s_add_u32 s%d, s%d, s%d' % (b_rb, b_rb, b_t0))
    k2pro('s_lshr_b32 s%d, s%d, 3' % (b_cb, s_i))
    k2pro('s_mul_i32 s%d, s%d, %d' % (b_b0, b_ks, 1152 * 1152))
    k2pro('s_mul_i32 s%d, s%d, 288' % (b_t0, b_cb))
    k2pro('s_add_u32 s%d, s%d, s%d' % (b_b0, b_b0, b_t0))
    k2pro('v_mov_b32 v%d, v%d' % (k_t0, k_t0))
    k2_dma_setup(k2pro, 12, True, k_t0, k_t1)
    NE = ENV('NE', 11)

    e('s_barrier', needs=[('d', q) for q in range(slots_for(GRP + D - 1))])
    stamp(e, 'gemm1 start')
    for p in range(D):
        fread(e, p, 0)
        fread(e, p, 1)
    epi_items = []
    for m in range(3):
        epi_items += epi(vC1, [2 * m, 2 * m + 1], vA(0, 0)).items
    ne = len(epi_items)
    b2l, b2u = bias2()
    LQ1 = ENV('K1LQ', 6)
    for g in range(14):
        p0, p1 = g * GRP, min((g + 1) * GRP, 162)
        fill = Stream()
        stamp(e, 'G1 g%d' % g)
        if g == 9:
            stamp(e, 'gemm1 pass2')
        if g > 0:
            extra = [('xs', 0), ('wm', 0)] if g == 4 else []
            e('s_barrier', needs=[('d', q) for q in range(slots_for(min(p1 + D - 1, 161)))] + extra)
        if g == 1:
            fill('s_cmp_lg_u32 s%d, 0' % s_wave)
            fill('s_cbranch_scc1 .Lp0_nowm')
            fill.cond_begin()
            fill('v_mov_b32 v14, 0x%x' % WMX)
            fill('ds_read_b32 v15, v14')
            fill('s_lshl_b32 s%d, s2, 2' % p_t0)
            fill('s_add_u32 s%d, s%d, 0x%x' % (p_t0, p_t0, WM_OFF))
            fill('v_mov_b32 v14, 0')
            fill('buffer_store_dword v15, v14, %s, s%d offen sc1' % (WS, p_t0), tok=('wm', 0))
            fill.cond_end()
            fill.label('.Lp0_nowm')
        if g == 4:
            flag_store(fill, 3, p_n2, 56 + 4)
        want = slots_for(min(p1 + D - 1 + LQ1 * 8, 161))
        if g < 2:
            want = min(want, 15)
        k1_issue(fill, 2 * g + 2 + LA1, want)
        if g == 5:
            fill.extend(b2l)
        if g == 8:
            fill.extend(b2u)
        TW0 = ENV('TW0', 6)
        if TW0 <= g < TW0 + 4:
            fill.extend(touch_w2(2 * (g - TW0)))
            fill.extend(touch_w2(2 * (g - TW0) + 1))
        main = Stream()
        for p in range(p0, p1):
            main(mf1(p, 0))
            if p + D < 162:
                fread(main, p + D, 0)
            main(mf1(p, 1))
            if p + D < 162:
                fread(main, p + D, 1)
        if g == 9:
            assert nq[0] == 21
            fill.extend(k2pro)
            h1 = Stream(); h1.items = main.items[:len(main.items) // 2 + 2]
            h2 = Stream(); h2.items = main.items[len(main.items) // 2 + 2:]
            e.extend(merge_keep(h1, fill))
            f2 = Stream(); f2.items = epi_items[:ne * 12 // 100]
            e.extend(merge_keep(h2, f2))
            continue
        if g >= 10:
            lo, hi = {10: (12, 37), 11: (37, 62), 12: (62, 87), 13: (87, 100)}[g]
            f2 = Stream(); f2.items = epi_items[ne * lo // 100: ne * hi // 100]
            pre = Stream()
            for q in range(NE):
                if 10 + q * 4 // NE == g:
                    pre.extend(k2_bdma(q))
            fill.extend(merge_keep(f2, pre))
        e.extend(merge_keep(main, fill))
    stamp(e, 'gemm1 mfma done')
    e.extend(epi(lambda rt, t: vC2(rt, t - 6), [6, 7], vA(0, 0)))
    e.extend(epi(lambda rt, t: vC2(rt, t - 6), [8], vA(0, 2)))
    a_fi = 25
    e('s_and_b32 s%d, s%d, 3' % (a_t0, s_i))
    e('s_lshl_b32 s%d, s%d, 3' % (a_t0, a_t0))
    e('s_lshr_b32 s%d, s%d, 2' % (a_t1, s_i))
    e('s_add_u32 s%d, s%d, s%d' % (a_t0, a_t0, a_t1))
    e('s_lshl_b32 s%d, s%d, 5' % (a_t1, s_x))
    e('s_add_u32 s%d, s%d, s%d' % (a_fi, a_t0, a_t1))
    e('s_barrier', needs=[('hs', 0), ('hs', 1)])
    flag_store(e, 1, a_fi, 16)
    stamp(e, 'h published')

    EX = 122880
    FX, FW = 147456, 147456 + 8192
    v_exw, v_exr = 10, 11
    v_ya, v_wa, v_sc, v_xl, v_yl = 12, 13, 14, 15, 9
    v_l8k = 12
    cC1 = lambda rt, t: 64 + (t * 2 + rt) * 4
    cC2 = lambda rt, t: 40 + (t * 2 + rt) * 4
    e('s_lshl_b32 s%d, s%d, 2' % (b_col + 1, s_x))
    e('s_add_u32 s%d, s%d, s%d' % (b_col + 1, b_col + 1, s_i))
    e('s_cmp_eq_u32 s2, 32')
    e('s_cselect_b32 s%d, 32, s%d' % (b_col + 1, b_col + 1))
    e('s_add_u32 s%d, s%d, 256' % (b_col + 1, b_col + 1))
    e('s_mov_b32 s%d, s%d' % (b_col, p_n2))
    e('s_and_b32 s%d, s%d, 3' % (b_rg, s_wave))
    e('s_lshr_b32 s%d, s%d, 2' % (b_kh, s_wave))
    e('s_lshl_b32 s%d, s%d, 3' % (b_t0, b_rb))
    e('s_lshl_b32 s%d, s%d, 1' % (b_t1, b_rg))
    e('s_add_u32 s%d, s%d, s%d' % (b_t0, b_t0, b_t1))
    e('s_mul_i32 s%d, s%d, 144' % (b_a0, b_t0))
    e('s_mul_i32 s%d, s%d, 36' % (b_t1, b_ks))
    e('s_add_u32 s%d, s%d, s%d' % (b_a0, b_a0, b_t1))
    e('s_mul_i32 s%d, s%d, 18' % (b_t1, b_kh))
    e('s_add_u32 s%d, s%d, s%d' % (b_a0, b_a0, b_t1))
    e('s_lshl_b32 s%d, s%d, 10' % (b_a0, b_a0))
    e('s_add_u32 s%d, s%d, %d' % (b_a1, b_a0, 144 * 1024))
    e('s_add_u32 s%d, s%d, s%d' % (b_t0, b_t0, b_kh))
    e('s_lshl_b32 s%d, s%d, 7' % (b_t1, b_ks))
    e('s_add_u32 s%d, s%d, s%d' % (b_t0, b_t0, b_t1))
    e('s_mul_i32 s%d, s%d, 36' % (b_p0, b_t0))
    e('s_mul_i32 s%d, s%d, 9' % (b_t1, b_cb))
    e('s_add_u32 s%d, s%d, s%d' % (b_p0, b_p0, b_t1))
    e('s_lshl_b32 s%d, s%d, 10' % (b_p0, b_p0))
    e('s_add_u32 s%d, s%d, 0x%x' % (b_p0, b_p0, P_OFF))
    TB2 = 96
    for q in range(4):
        e('s_movk_i32 s%d, 0x%x' % (b_t1, T2_OFF + q * 1024))
        e('buffer_load_dwordx4 %s, v%d, %s, s%d offen' % (vr(TB2 + 4 * q, 4), v_l16, TAB, b_t1))
    for q in range(NE, 15):
        e.extend(k2_bdma(q))
    b_fi = 24
    e('s_lshl_b32 s%d, s%d, 5' % (b_t0, s_x))
    e('s_bfe_u32 s%d, s%d, 0x20001' % (b_t1, s_i))
    e('s_lshl_b32 s%d, s%d, 3' % (b_t1, b_t1))
    e('s_add_u32 s%d, s%d, s%d' % (b_fi, b_t0, b_t1))
    wait_flags(e, [(3, None, 256), (1, b_fi, 8)], 16)
    stamp(e, 'h flags ok')
    e('v_lshrrev_b32 v%d, 1, v0' % k_t0)
    e('v_lshlrev_b32 v%d, 7, v%d' % (k_t0, k_t0))
    e('v_and_b32 v%d, 1, v0' % k_t1)
    e('v_lshl_add_u32 v%d, v%d, 4, v%d' % (v_ya, k_t1, k_t0))

    def fft_dma(st, scol, tag, fx, fw):
        st('s_lshr_b32 s%d, s%d, 2' % (b_so + 2, scol))
        st('s_lshl_b32 s%d, s%d, 15' % (b_so + 2, b_so + 2))
        st('s_and_b32 s%d, s%d, 3' % (b_so + 3, scol))
        st('s_lshl_b32 s%d, s%d, 5' % (b_so + 3, b_so + 3))
        st('s_add_u32 s%d, s%d, s%d' % (b_so + 2, b_so + 2, b_so + 3))
        st('s_lshl_b32 s%d, s%d, 12' % (b_so + 3, s_wave))
        st('s_add_u32 s%d, s%d, s%d' % (b_so + 2, b_so + 2, b_so + 3))
        st('s_add_u32 s%d, s%d, 0x%x' % (b_so + 3, b_so + 2, XF_OFF))
        st('s_add_u32 m0, s%d, 0x%x' % (a_m0b, fx))
        st('buffer_load_dwordx4 v%d, %s, s%d offen sc1 lds' % (v_ya, WS, b_so + 3), tok=(tag, 0))
        st('s_add_u32 s%d, s%d, 0x%x' % (b_so + 3, b_so + 2, WT_OFF))
        st('s_add_u32 m0, s%d, 0x%x' % (a_m0b, fw))
        st('buffer_load_dwordx4 v%d, %s, s%d offen sc1 lds' % (v_ya, WS, b_so + 3), tok=(tag, 1))

    fft_dma(e, b_col, 'f1', FX, FW)
    e('s_cmp_gt_u32 s2, 32')
    e('s_cbranch_scc1 .Lk2_nod2')
    e.cond_begin()
    fft_dma(e, b_col + 1, 'f2', EX, EX + 8192)
    e.cond_end()
    e.label('.Lk2_nod2')
    e('s_mov_b32 s%d, 0x%x' % (b_t1, WM_OFF))
    e('buffer_load_dwordx4 v[92:95], v%d, %s, s%d offen sc1' % (v_l16, WS, b_t1))
    e('v_lshrrev_b32 v%d, 4, v0' % k_t0)
    e('v_and_b32 v%d, 15, v0' % k_t1)
    e('v_lshl_add_u32 v%d, v%d, 6, v%d' % (v_xl, k_t0, k_t1))
    e('s_lshl_b32 s%d, s%d, 2' % (b_t0, s_wave))
    e('v_lshlrev_b32 v%d, 5, v%d' % (v_xl, v_xl))
    e('v_add_u32 v%d, s%d, v%d' % (v_xl, b_t0, v_xl))
    e('v_add_u32 v%d, 0x%x, v%d' % (v_xl, FX, v_xl))
    e('v_lshrrev_b32 v%d, 5, v0' % v_wa)
    e('v_lshlrev_b32 v%d, 4, v%d' % (v_wa, v_wa))
    e('v_add_u32 v%d, v%d, v%d' % (v_wa, v_wa, k_t1))
    e('v_lshlrev_b32 v%d, 3, v%d' % (v_wa, v_wa))
    e('v_add_u32 v%d, s%d, v%d' % (v_wa, s_wave, v_wa))
    e('v_lshlrev_b32 v%d, 5, v%d' % (v_wa, v_wa))
    e('v_and_b32 v%d, 1, v%d' % (k_t0, k_t0))
    e('v_lshl_add_u32 v%d, v%d, 4, v%d' % (v_wa, k_t0, v_wa))
    e('v_add_u32 v%d, 0x%x, v%d' % (v_wa, FW, v_wa))
    e('v_add_u32 v%d, s%d, v%d' % (v_yl, a_m0b, v_l16))
    e('v_lshrrev_b32 v%d, 7, v%d' % (v_ya, v_yl))
    e('v_mul_u32_u24 v%d, %d, v%d' % (v_ya, YQ, v_ya))
    e('v_and_b32 v%d, 0x70, v%d' % (k_t0, v_l16))
    e('v_add_u32 v%d, v%d, v%d' % (v_ya, v_ya, k_t0))
    e('v_add_u32 v%d, 0x%x, v%d' % (v_yl, FX, v_yl))

    def fft_col(st):
        F_re, F_im, twr, twi = TB2, TB2 + 4, TB2 + 8, TB2 + 12
        A, Dre, Dim, Tre, Tim, Wp, Wr, Wi = 40, 44, 48, 52, 56, 60, 64, 68
        for r in range(4):
            st('ds_read_b32 v%d, v%d offset:%d' % (A + r, v_xl, r * 512))
        st('ds_read_b128 %s, v%d' % (vr(Wp, 4), v_wa))
        for half in range(2):
            st('v_mfma_f32_16x16x32_f16 %s, %s, %s, 0' % (vr(Dre, 4), vr(A, 4), vr(F_re, 4)))
            st('v_mfma_f32_16x16x32_f16 %s, %s, %s, 0' % (vr(Dim, 4), vr(A, 4), vr(F_im, 4)))
            if half == 0:
                for r in range(4):
                    st('v_lshlrev_b32 v%d, 16, v%d' % (Wr + r, Wp + r))
                    st('v_and_b32 v%d, 0xffff0000, v%d' % (Wi + r, Wp + r))
            cmul_regs(st, Tre, Tim, Dre, Dim, twr, twi)
            for r in range(4):
                st('v_cvt_pk_f16_f32 v%d, v%d, v%d' % (A + r, Tre + r, Tim + r))
            st('v_mfma_f32_16x16x32_f16 %s, %s, %s, 0' % (vr(Dre, 4), vr(F_re, 4), vr(A, 4)))
            st('v_mfma_f32_16x16x32_f16 %s, %s, %s, 0' % (vr(Dim, 4), vr(F_im, 4), vr(A, 4)))
            if half == 0:
                for r in range(4):
                    st('v_mul_f32 v%d, v%d, v%d' % (Wr + r, v_sc, Wr + r))
                    st('v_mul_f32 v%d, v%d, v%d' % (Wi + r, v_sc, Wi + r))
                cmul_regs(st, Tre, Tim, Dre, Dim, Wr, Wi)
                for r in range(4):
                    st('v_cvt_pk_f16_f32 v%d, v%d, v%d' % (A + r, Tim + r, Tre + r))
            else:
                for r in range(4):
                    st('v_cvt_pk_f16_f32 v%d, v%d, v%d' % (A + r, Dim + r, Dre + r))
        for r in range(4):
            st('ds_write_b32 v%d, v%d offset:%d' % (v_xl, A + r, r * 512))

    def fft_out(st, scol, reg):
        st('ds_read_b128 %s, v%d' % (vr(reg, 4), v_yl))
        st('s_lshl_b32 s%d, s%d, 7' % (b_t0, scol))
        st('s_add_u32 s%d, s%d, 0x%x' % (b_t0, b_t0, YF_OFF))
        st('buffer_store_dwordx4 %s, v%d, %s, s%d offen sc1' % (vr(reg, 4), v_ya, WS, b_t0), tok=('yfs', 0))

    nq2 = [15]
    na[0] = 0

    def k2_issue(st, ka, unit_lim):
        while True:
            did = False
            if na[0] < min(ka, 18):
                j = na[0]
                for rt in range(2):
                    st('s_add_u32 s%d, s%d, %d' % (b_so + 2, (b_a0, b_a1)[rt], (PERM[j] & ~3) * 1024))
                    if PERM[j] % 9 == 4:
                        st('buffer_load_dwordx2 %s, v%d, %s, s%d offen offset:%d sc1' % (vr(vA(rt, j), 2), v_l8k, WS, b_so + 2, (PERM[j] & 3) * 1024))
                        st('buffer_load_dwordx2 %s, v%d, %s, s%d offen offset:%d sc1' % (vr(vA(rt, j) + 2, 2), v_l8k, WS, b_so + 2, (PERM[j] & 3) * 1024 + 512))
                    else:
                        st('buffer_load_dwordx4 %s, v%d, %s, s%d offen offset:%d sc1' % (vr(vA(rt, j), 4), v_l16, WS, b_so + 2, (PERM[j] & 3) * 1024))
                na[0] += 1
                did = True
            for _ in range(2 if nq2[0] % 3 == 0 else 1):
                if nq2[0] < 41 and (nq2[0] + 1) * 8 <= unit_lim:
                    st.extend(k2_bdma(nq2[0]))
                    nq2[0] += 1
                    did = True
            if not did:
                break

    LA2 = ENV('K2LA', 8)
    ld = Stream()
    k2_issue(ld, ENV('K2LA0', 4), 0)
    e.extend(ld)
    wscale(e, None, 92, v_sc, True)
    e('v_mov_b32 v%d, v92' % v_sc)
    e('s_barrier', needs=[('f1', 0), ('f1', 1), ('f2', 0), ('f2', 1)] + [('hs', i) for i in range(5)])
    flag_store(e, 5, a_fi, 16)
    f1 = Stream()
    fft_col(f1)
    ld = Stream()
    k2_issue(ld, 8, 0)
    e.extend(merge_keep(f1, ld))
    e('s_waitcnt lgkmcnt(0)')
    e('s_barrier')
    fft_out(e, b_col, 72)
    e('s_cmp_gt_u32 s2, 32')
    e('s_cbranch_scc1 .Lk2_noc2')
    e.cond_begin()
    for r_ in (v_xl, v_wa, v_yl):
        e('v_subrev_u32 v%d, %d, v%d' % (r_, FX - EX, r_))
    fft_col(e)
    e('s_waitcnt lgkmcnt(0)')
    e('s_barrier')
    fft_out(e, b_col + 1, 76)
    e.cond_end()
    e.label('.Lk2_noc2')
    e('v_lshlrev_b32 v%d, 3, v0' % v_l8k)
    e('v_lshrrev_b32 v%d, 2, v0' % k_t0)
    e('v_mul_u32_u24 v%d, 192, v%d' % (v_be, k_t0))
    e('v_and_b32 v%d, 3, v0' % k_t1)
    e('v_lshl_add_u32 v%d, v%d, 3, v%d' % (v_be, k_t1, v_be))
    e('s_mul_i32 s%d, s%d, 6144' % (b_t0, b_kh))
    e('v_add_u32 v%d, s%d, v%d' % (v_be, b_t0, v_be))
    e('v_mul_u32_u24 v%d, 96, v%d' % (v_b2, k_t0))
    e('v_lshl_add_u32 v%d, v%d, 3, v%d' % (v_b2, k_t1, v_b2))
    e('s_mul_i32 s%d, s%d, 3072' % (b_t0, b_kh))
    e('v_add_u32 v%d, s%d, v%d' % (v_b2, b_t0, v_b2))
    e('v_bfe_u32 v%d, v0, 4, 1' % k_t1)
    e('v_lshlrev_b32 v%d, 5, v%d' % (k_t1, k_t1))
    e('v_sub_u32 v%d, v%d, v%d' % (v_bo, v_be, k_t1))
    e('v_add_u32 v%d, 32, v%d' % (v_bo, v_bo))
    e('v_add_u32 v%d, v%d, v%d' % (v_be, v_be, k_t1))
    e('s_mul_i32 s%d, s%d, 3072' % (b_t0, s_wave))
    e('s_add_u32 s%d, s%d, 0x%x' % (b_t0, b_t0, EX))
    e('v_add_u32 v%d, s%d, v%d' % (v_exw, b_t0, v_l16))
    e('s_xor_b32 s%d, s%d, 4' % (b_t1, s_wave))
    e('s_mul_i32 s%d, s%d, 3072' % (b_t0, b_t1))
    e('s_add_u32 s%d, s%d, 0x%x' % (b_t0, b_t0, EX))
    e('v_add_u32 v%d, s%d, v%d' % (v_exr, b_t0, v_l16))
    e('s_cmp_eq_u32 s%d, 1' % b_kh)
    e('s_cselect_b64 s[%d:%d], -1, 0' % (b_msk, b_msk + 1))
    wbase.update({v_be: 0, v_bo: 0, v_b2: 0})
    fread = make_fread(lambda k: ((k + 2) % 10) * 12288, lambda k: ((96 + 24 + 6 * k) % 120) * 1024)

    def units_needed(p):
        if p < 108:
            return (p // 6 + 1) * 12
        return 216 + ((p - 108) // 3 + 1) * 6

    def etoks(units):
        return [('e', q) for q in range(min(-(-units // 8), 41))]

    def mf2(p, rt):
        if p < 108:
            k, t = divmod(p, 6)
            c = cC1(rt, t)
        else:
            k, t = divmod(p - 108, 3)
            c = cC2(rt, t)
            return 'v_mfma_f32_16x16x32_bf16 %s, %s, %s, %s' % (vr(c, 4), vr(vB(p % 6), 4), vr(vA(rt, INV[k]), 4), vr(c, 4) if k else '0')
        return 'v_mfma_f32_16x16x32_bf16 %s, %s, %s, %s' % (vr(c, 4), vr(vB(p % 6), 4), vr(vA(rt, k), 4), vr(c, 4) if k else '0')

    MSK = 's[%d:%d]' % (b_msk, b_msk + 1)

    def ex_send(accf, tiles, T):
        st = Stream()
        for i, t in enumerate(tiles):
            for r in range(4):
                st('v_cndmask_b32 v%d, v%d, v%d, %s' % (T + 4 * i + r, accf(1, t) + r, accf(0, t) + r, MSK))
            for r in range(4):
                st('v_cndmask_b32 v%d, v%d, v%d, %s' % (accf(0, t) + r, accf(0, t) + r, accf(1, t) + r, MSK))
            st('ds_write_b128 v%d, %s offset:%d' % (v_exw, vr(T + 4 * i, 4), i * 1024), tok=('exw', t))
        return st

    def ex_recv(accf, tiles, T, tbase):
        st = Stream()
        for i, t in enumerate(tiles):
            st('ds_read_b128 %s, v%d offset:%d' % (vr(T + 4 * i, 4), v_exr, i * 1024), tok=('exr', t + tbase))
        for i, t in enumerate(tiles):
            for r in range(4):
                st('v_add_f32 v%d, v%d, v%d' % (accf(0, t) + r, accf(0, t) + r, T + 4 * i + r))
            gt = tbase + t
            st('s_add_u32 s%d, s%d, %d' % (b_so + 3, b_p0, (gt // 4) * 4096))
            st('buffer_store_dwordx4 %s, v%d, %s, s%d offen offset:%d' % (vr(accf(0, t), 4), v_l16, WS, b_so + 3, (gt % 4) * 1024) + ' sc1', tok=('ps', 0))
        return st

    e('s_barrier', needs=etoks(units_needed(GRP + D - 1)))
    stamp(e, 'gemm2 start')
    for p in range(D):
        fread(e, p, 0)
        fread(e, p, 1)
    T1, T2 = vA(0, 0), vA(0, 2)
    YR = vA(0, 4)
    fills = {10: ex_send(cC1, [0, 1, 2], T1), 11: ex_recv(cC1, [0, 1, 2], T2, 0), 12: ex_send(cC1, [3, 4, 5], T1), 13: ex_recv(cC1, [3, 4, 5], T2, 0)}
    for g in range(14):
        p0, p1 = g * GRP, min((g + 1) * GRP, 162)
        fill = Stream()
        stamp(e, 'G2 g%d' % g)
        free = 0
        if g > 0:
            extra = []
            if g in (11, 13):
                extra = [('exw', t) for t in range(6)]
            if g == 12:
                extra = [('exr', t) for t in range(6)]
            if g == 3:
                extra = [('yfs', 0)]
            GW = ENV('GW', 2)
            if g == GW:
                e('s_nop 0', needs=etoks(units_needed(min(p1 + D - 1, 161))) + extra)
                wait_flags(e, [(5, b_fi, 8)], 40)
            elif g == 10:
                e('s_nop 0', needs=etoks(units_needed(min(p1 + D - 1, 161))) + extra)
                wait_flags(e, [(4, None, 256)], T1)
            else:
                e('s_barrier', needs=etoks(units_needed(min(p1 + D - 1, 161))) + extra)
            free = (p0 // 6) * 12 if p0 <= 108 else 216 + ((p0 - 108) // 3) * 6
        if g == 3:
            flag_store(fill, 4, p_n2, 60)
        k2_issue(fill, min(2 * g + 2 + LA2, 8) if g < ENV('GW', 2) else 2 * g + 2 + LA2, free + 120)
        if g == 12:
            fill('s_lshl_b32 s%d, s%d, 6' % (b_t0, s_wave))
            fill('v_add_u32 v13, s%d, v0' % b_t0)
            fill('v_cmp_gt_u32 vcc, 289, v13')
            fill('v_lshlrev_b32 v13, 7, v13')
            fill('v_mov_b32 v14, %s' % OOB)
            fill('v_cndmask_b32 v13, v14, v13, vcc')
            fill('s_lshr_b32 s%d, s%d, 2' % (b_t0, p_n2))
            fill('s_mul_i32 s%d, s%d, %d' % (b_t0, b_t0, YQ))
            fill('s_and_b32 s%d, s%d, 3' % (b_t1, p_n2))
            fill('s_lshl_b32 s%d, s%d, 5' % (b_t1, b_t1))
            fill('s_add_u32 s%d, s%d, s%d' % (b_t0, b_t0, b_t1))
            fill('s_add_u32 s%d, s%d, 0x%x' % (b_t0, b_t0, YF_OFF))
            fill('buffer_load_dwordx4 %s, v13, %s, s%d offen sc1' % (vr(YR, 4), WS, b_t0))
            fill('buffer_load_dwordx4 %s, v13, %s, s%d offen offset:16 sc1' % (vr(YR + 4, 4), WS, b_t0))
        if g in fills:
            fill.extend(fills[g])
        main = Stream()
        for p in range(p0, p1):
            main(mf2(p, 0))
            if p + D < 162:
                fread(main, p + D, 0)
            main(mf2(p, 1))
            if p + D < 162:
                fread(main, p + D, 1)
        e.extend(merge_keep(main, fill))
    e('s_barrier', needs=[('exr', t) for t in range(6)])
    e.extend(ex_send(cC2, [0, 1, 2], T1))
    e('s_waitcnt lgkmcnt(0)')
    e('s_barrier')
    e.extend(ex_recv(cC2, [0, 1, 2], T2, 6))
    e('s_lshl_b32 s%d, s%d, 4' % (b_t0, b_rb))
    e('s_lshl_b32 s%d, s%d, 2' % (b_t1, b_ks))
    e('s_add_u32 s%d, s%d, s%d' % (b_t0, b_t0, b_t1))
    e('s_add_u32 s%d, s%d, s%d' % (p_xo, b_t0, b_cb))
    e('s_barrier')

    YLs = 0
    OL = 9600
    OS = OL + 8 * 3072
    TL3 = 53760
    S_X3, S_B2, S_O = 16, 20, 24
    c_t0, c_t1, c_row, c_pb, c_po, c_l2e = 28, 29, 30, 31, 36, 37
    c_ex = 38
    c_tw = 48
    c_tid, c_v0, c_v1, c_l8, c_tl, c_pa, c_pa2, c_l82 = 1, 3, 4, 5, 168, 169, 170, 7
    TB3 = 8
    e('s_load_dwordx2 s[40:41], s[0:1], 0')
    e('s_load_dwordx4 s[44:47], s[0:1], 56')
    e('s_lshl_b32 s%d, s%d, 6' % (c_t0, s_wave))
    e('v_add_u32 v%d, s%d, v0' % (c_tid, c_t0))
    e('v_lshlrev_b32 v%d, 3, v0' % c_l8)
    e('v_add_u32 v%d, %d, v%d' % (c_tl, TL3, v_l16))
    e('s_mov_b32 s%d, %s' % (c_l2e, fbits(-np.log2(np.e))))
    e('s_lshl_b32 s%d, s%d, 6' % (c_t0, p_n2))
    e('s_add_u32 s%d, s%d, 0x%x' % (c_t0, c_t0, TW8_OFF))
    e('s_add_u32 s%d, s%d, s%d' % (c_ex, S_TAB, c_t0))
    e('s_addc_u32 s%d, s%d, 0' % (c_ex + 1, S_TAB + 1))
    e('s_load_dwordx16 s[%d:%d], s[%d:%d], 0' % (c_tw, c_tw + 15, c_ex, c_ex + 1))
    e('s_add_u32 m0, s%d, 0x%x' % (a_m0b, TL3))
    e('s_add_u32 s%d, s%d, 0x%x' % (c_t1, a_m0b, T3_OFF))
    e('buffer_load_dwordx4 v%d, %s, s%d offen lds' % (v_l16, TAB, c_t1), tok=('t3', 0))
    e('s_add_u32 m0, s%d, 0x%x' % (a_m0b, TL3 + 8192))
    e('s_add_u32 s%d, s%d, 0x%x' % (c_t1, a_m0b, T3_OFF + 8192))
    e('buffer_load_dwordx4 v%d, %s, s%d offen lds' % (v_l16, TAB, c_t1), tok=('t3', 1))
    e('s_mov_b32 s%d, 0x%x' % (c_t1, WM_OFF))
    e('buffer_load_dwordx4 v[104:107], v%d, %s, s%d offen sc1' % (v_l16, WS, c_t1))
    make_srd(e, S_X3, 40, X_SZ)
    make_srd(e, S_B2, 44, 1152)
    make_srd(e, S_O, 46, X_SZ)
    e('s_lshl_b32 s%d, s%d, 8' % (c_row, s_wave))
    e('s_add_u32 s%d, s%d, s%d' % (c_row, c_row, p_n2))
    e('s_mul_i32 s%d, s%d, 1152' % (c_row, c_row))
    e('v_cmp_gt_u32 vcc, 16, v0')
    e('v_mov_b32 v%d, %s' % (c_v1, OOB))
    e('v_cndmask_b32 v%d, v%d, v%d, vcc' % (c_l82, c_v1, c_l8))
    XR, BR2, PR = 156, 162, 108
    for j in range(3):
        e('buffer_load_dwordx2 %s, v%d, s[%d:%d], s%d offen offset:%d' % (vr(XR + 2 * j, 2), c_l8 if j < 2 else c_l82, S_X3, S_X3 + 3, c_row, j * 512))
        e('buffer_load_dwordx2 %s, v%d, s[%d:%d], 0 offen offset:%d' % (vr(BR2 + 2 * j, 2), c_l8 if j < 2 else c_l82, S_B2, S_B2 + 3, j * 512))
    e('v_lshrrev_b32 v%d, 3, v%d' % (c_pa, c_tid))
    e('v_lshlrev_b32 v%d, 8, v%d' % (c_pa, c_pa))
    e('v_and_b32 v%d, 7, v%d' % (c_v0, c_tid))
    e('v_lshl_add_u32 v%d, v%d, 4, v%d' % (c_pa, c_v0, c_pa))
    e('v_cmp_gt_u32 vcc, 128, v%d' % c_tid)
    e('v_cndmask_b32 v%d, v%d, v%d, vcc' % (c_pa2, c_v1, c_pa))
    e('s_lshr_b32 s%d, s%d, 1' % (c_pb, p_n2))
    e('s_mul_i32 s%d, s%d, 36864' % (c_pb, c_pb))
    e('s_and_b32 s%d, s%d, 1' % (c_t1, p_n2))
    e('s_lshl_b32 s%d, s%d, 7' % (c_t1, c_t1))
    e('s_add_u32 s%d, s%d, s%d' % (c_pb, c_pb, c_t1))
    e('s_add_u32 s%d, s%d, 0x%x' % (c_pb, c_pb, P_OFF))
    e('s_cmp_ge_u32 s%d, 5' % s_wave)
    e('s_cbranch_scc1 .Lk3_nor8')
    e.cond_begin()
    for k1 in range(8):
        c, s = c_tw + 2 * k1, c_tw + 2 * k1 + 1
        e('v_cvt_f32_f16 v%d, v%d' % (c_v0, YR + k1))
        e('v_cvt_f32_f16_sdwa v%d, v%d dst_sel:DWORD dst_unused:UNUSED_PAD src0_sel:WORD_1' % (c_v1, YR + k1))
        d = 72 + 2 * k1
        e('v_mul_f32 v%d, s%d, v%d' % (d, c, c_v0))
        e('v_mul_f32 v%d, s%d, v%d' % (d + 1, c, c_v1))
        e('v_mul_f32 v%d, s%d, v%d' % (c_v1, s, c_v1))
        e('v_mul_f32 v%d, s%d, v%d' % (c_v0, s, c_v0))
        e('v_add_f32 v%d, v%d, v%d' % (d, d, c_v1))
        e('v_sub_f32 v%d, v%d, v%d' % (d + 1, d + 1, c_v0))
    X = radix8(e, 72, 88, None, inverse=True)
    e('v_cmp_ne_u32 vcc, 0, v%d' % c_tid)
    e('v_mov_b32 v%d, 0x120' % c_v0)
    e('v_cmp_ne_u32 s[%d:%d], v%d, v%d' % (100, 101, c_v0, c_tid))
    e('s_and_b64 vcc, vcc, s[100:101]')
    e('v_lshlrev_b32 v%d, 2, v%d' % (c_v0, c_tid))
    e('v_min_u32 v%d, %d, v%d' % (c_v0, 295 * 4, c_v0))
    for n in range(8):
        e('v_cndmask_b32 v%d, 0, v%d, vcc' % (X[n] + 1, X[n] + 1))
        e('v_cvt_pk_f16_f32 v%d, v%d, v%d' % (64 + n, X[n], X[n] + 1))
        e('ds_write_b32 v%d, v%d offset:%d' % (c_v0, 64 + n, YLs + n * TB.YL_ROW))
    e.cond_end()
    e.label('.Lk3_nor8')
    e('s_waitcnt lgkmcnt(0)')
    e('s_barrier', needs=[('t3', 0), ('t3', 1), ('ps', 0)])
    flag_store(e, 2, p_xo, 120)
    stamp(e, 'P published')
    for q in (12, 13, 0, 1, 2, 3, 4, 5, 6, 7, 8, 9, 10, 11):
        e('ds_read_b128 %s, v%d offset:%d' % (vr(TB3 + 4 * q, 4), c_tl, q * 1024))
    e('s_mul_i32 s%d, s%d, %d' % (c_t0, s_wave, TB.YL_ROW))
    for i in range(8):
        e('v_add_u32 v%d, s%d, v%d' % (TB3 + 48 + i, c_t0, TB3 + 48 + i))
    for i in range(8):
        e('ds_read_b32 v%d, v%d offset:%d' % (64 + i, TB3 + 48 + i, YLs))
    wscale(e, None, 104, c_v0, False)
    for ct in range(2):
        e('v_mfma_f32_16x16x32_f16 %s, %s, %s, 0' % (vr(72 + ct * 8, 4), vr(64 + 4 * ct, 4), vr(TB3, 4)))
        e('v_mfma_f32_16x16x32_f16 %s, %s, %s, 0' % (vr(76 + ct * 8, 4), vr(64 + 4 * ct, 4), vr(TB3 + 4, 4)))
    for ct in range(2):
        cmul_regs(e, 88, 92, 72 + ct * 8, 76 + ct * 8, TB3 + 8 + ct * 8, TB3 + 12 + ct * 8)
        for r in range(4):
            e('v_cvt_pk_f16_f32 v%d, v%d, v%d' % (64 + 4 * ct + r, 88 + r, 92 + r))
    for ta in range(3):
        e('v_mfma_f32_16x16x32_f16 %s, v[64:67], %s, 0' % (vr(72 + 4 * ta, 4), vr(TB3 + 24 + ta * 8, 4)))
    for ta in range(3):
        e('v_mfma_f32_16x16x32_f16 %s, v[68:71], %s, %s' % (vr(72 + 4 * ta, 4), vr(TB3 + 28 + ta * 8, 4), vr(72 + 4 * ta, 4)))
    e('s_lshr_b32 s%d, s%d, 4' % (c_t0, p_n2))
    e('s_lshl_b32 s%d, s%d, 4' % (c_t0, c_t0))
    wait_flags(e, [(2, c_t0, 16)], 120)
    stamp(e, 'P flags ok')
    for ks in range(4):
        for j in range(3):
            e('s_add_u32 s%d, s%d, 0x%x' % (c_po, c_pb, ks * 128 * 36864 + j * 16384))
            e('buffer_load_dwordx4 %s, v%d, %s, s%d offen sc1' % (vr(PR + (ks * 3 + j) * 4, 4), c_pa if j < 2 else c_pa2, WS, c_po))
    e('v_and_b32 v%d, 15, v0' % c_v0)
    e('v_lshrrev_b32 v%d, 4, v0' % c_v1)
    e('v_lshl_add_u32 v%d, v%d, 2, v%d' % (c_v0, c_v0, c_v1))
    e('v_lshlrev_b32 v%d, 4, v%d' % (c_v0, c_v0))
    e('s_mul_i32 s%d, s%d, 3072' % (c_t0, s_wave))
    e('s_add_u32 s%d, s%d, %d' % (c_t0, c_t0, OL))
    e('v_add_u32 v%d, s%d, v%d' % (c_v0, c_t0, c_v0))
    e('v_add_u32 v%d, s%d, v%d' % (c_v1, c_t0, v_l16))
    wr = []
    for ta in range(3):
        wr.append(e('ds_write_b128 v%d, %s offset:%d' % (c_v0, vr(72 + 4 * ta, 4), ta * 1024)))
    for ta in range(3):
        e('ds_read_b128 %s, v%d offset:%d' % (vr(84 + 4 * ta, 4), c_v1, ta * 1024), needs=wr)
    U = 8
    O = [PR + i for i in range(12)]
    Bv = [U + i for i in range(12)]
    Xv = [U + 12 + i for i in range(12)]
    Tv = [U + 24 + i for i in range(12)]
    Sv = [84 + i for i in range(12)]

    def round_pairs(regs):
        for i in range(0, len(regs), 2):
            e('v_cvt_pk_bf16_f32 v%d, v%d, v%d' % (regs[i + 1], regs[i], regs[i + 1]))
        for i in range(0, len(regs), 2):
            e('v_lshlrev_b32 v%d, 16, v%d' % (regs[i], regs[i + 1]))
            e('v_and_b32 v%d, 0xffff0000, v%d' % (regs[i + 1], regs[i + 1]))
    for i in range(6):
        e('v_lshlrev_b32 v%d, 16, v%d' % (Bv[2 * i], BR2 + i))
        e('v_and_b32 v%d, 0xffff0000, v%d' % (Bv[2 * i + 1], BR2 + i))
        e('v_lshlrev_b32 v%d, 16, v%d' % (Xv[2 * i], XR + i))
        e('v_and_b32 v%d, 0xffff0000, v%d' % (Xv[2 * i + 1], XR + i))
    for i in range(12):
        e('v_mul_f32 v%d, v104, v%d' % (Sv[i], Sv[i]))
    round_pairs(Sv)
    for j in range(3):
        for r in range(4):
            i0 = PR + j * 4 + r
            e('v_add_f32 v%d, v%d, v%d' % (i0, i0, i0 + 12))
            e('v_add_f32 v%d, v%d, v%d' % (i0 + 24, i0 + 24, i0 + 36))
    for j in range(3):
        for r in range(4):
            i0 = PR + j * 4 + r
            e('v_add_f32 v%d, v%d, v%d' % (i0, i0, i0 + 24))
    e('v_and_b32 v%d, 7, v%d' % (c_v0, c_tid))
    e('v_mul_u32_u24 v%d, 2320, v%d' % (c_v0, c_v0))
    e('v_lshrrev_b32 v%d, 3, v%d' % (c_v1, c_tid))
    e('v_lshl_add_u32 v%d, v%d, 4, v%d' % (c_v0, c_v1, c_v0))
    e('ds_write_b128 v%d, %s offset:%d' % (c_v0, vr(PR, 4), OS))
    e('ds_write_b128 v%d, %s offset:%d' % (c_v0, vr(PR + 4, 4), OS + 1024))
    e('s_cmp_ge_u32 s%d, 2' % s_wave)
    e('s_cbranch_scc1 .Lk3_now2')
    e.cond_begin()
    e('ds_write_b128 v%d, %s offset:%d' % (c_v0, vr(PR + 8, 4), OS + 2048))
    e.cond_end()
    e.label('.Lk3_now2')
    e('s_mul_i32 s%d, s%d, 2320' % (c_t0, s_wave))
    e('v_add_u32 v%d, s%d, v%d' % (c_v1, c_t0, v_l16))
    e('s_waitcnt lgkmcnt(0)')
    e('s_barrier')
    for j in range(3):
        e('ds_read_b128 %s, v%d offset:%d' % (vr(PR + 4 * j, 4), c_v1, OS + j * 1024))
    round_pairs(O)
    for i in range(12):
        e('v_add_f32 v%d, v%d, v%d' % (O[i], O[i], Bv[i]))
    round_pairs(O)
    for i in range(12):
        e('v_mul_f32 v%d, s%d, v%d' % (Tv[i], c_l2e, O[i]))
    for i in range(12):
        e('v_exp_f32 v%d, v%d' % (Tv[i], Tv[i]))
    for i in range(12):
        e('v_add_f32 v%d, 1.0, v%d' % (Tv[i], Tv[i]))
    for i in range(12):
        e('v_rcp_f32 v%d, v%d' % (Tv[i], Tv[i]))
    for i in range(12):
        e('v_mul_f32 v%d, v%d, v%d' % (O[i], O[i], Tv[i]))
    round_pairs(O)
    for i in range(12):
        e('v_mul_f32 v%d, v%d, v%d' % (O[i], O[i], Sv[i]))
    round_pairs(O)
    for i in range(12):
        e('v_add_f32 v%d, v%d, v%d' % (O[i], O[i], Xv[i]))
    for i in range(6):
        e('v_cvt_pk_bf16_f32 v%d, v%d, v%d' % (Tv[i], O[2 * i], O[2 * i + 1]))
    for j in range(3):
        e('buffer_store_dwordx2 %s, v%d, s[%d:%d], s%d offen offset:%d' % (vr(Tv[2 * j], 2), c_l8 if j < 2 else c_l82, S_O, S_O + 3, c_row, j * 512))
    stamp(e, 'end')
    stamp_flush(e)
    e.label('.Lmega_end')
    e('s_endpgm')
    return e


if __name__ == '__main__':
    ks = [('mega_kernel', gen_mega(), 256, 512, 163840, 256, 102, 256)]
    dst = sys.argv[1] if len(sys.argv) > 1 else 'cdna_kernels/%s.s' % NAME
    open(dst, 'w').write(build(ks))
    print('wrote', dst)
```
